```python
import torch

def _softmax(x, axis=-1):
    return torch.softmax(x, dim=axis)

def _gelu(x):
    return torch.nn.functional.gelu(x, approximate='tanh')

def _silu(x):
    return torch.nn.functional.silu(x)

def _sigmoid(x):
    return torch.sigmoid(x)

def _layernorm(x, axis=-1, eps=1e-05):
    m = x.mean(dim=axis, keepdim=True)
    v = x.var(dim=axis, keepdim=True, unbiased=False)
    return (x - m) / torch.sqrt(v + eps)

def _scatter_add(tgt, idx, src, axis=0):
    return tgt.clone().index_add_(axis, idx, src)

def _segment_sum(src, seg, n):
    out = torch.zeros((n,) + src.shape[1:], dtype=src.dtype)
    return out.index_add_(0, seg, src)

def _pad(x, pw):
    flat = tuple((v for pair in reversed(pw) for v in pair))
    return torch.nn.functional.pad(x, flat)
kernel_name = 'adaLN_cond__sliding_block_cached__geglu_ffn__decode'

def setup_inputs():

    _w = lambda a: (lambda t: t.to(torch.bfloat16) if t.is_floating_point() else t)(torch.as_tensor(a))

    def _A_setup():
        B, Sq, D = (1, 1, 1024)
        Hq, Hkv, Sk, Dh = (32, 4, 65536, 128)
        assert Hq % Hkv == 0, (Hq, Hkv)
        return {'x': _w((lambda *s: torch.randn(*s, dtype=torch.bfloat16) * 0.05)(B, Sq, D)), 'k_cache': _w((lambda *s: torch.randn(*s, dtype=torch.bfloat16) * 3.2)(B, Hkv, Sk, Dh)), 'v_cache': _w((lambda *s: torch.randn(*s, dtype=torch.bfloat16) * 0.4)(B, Hkv, Sk, Dh)), 'wq': _w((lambda *s: torch.randn(*s, dtype=torch.bfloat16) * 3.2)(D, Hq * Dh) * D ** (-0.5)), 'wo': _w((lambda *s: torch.randn(*s, dtype=torch.bfloat16) * 0.4)(Hq * Dh, D) * (Hq * Dh) ** (-0.5))}
    _A_in = _A_setup()

    def _B_setup():
        B, S, D, F = (1, 1, 1024, 3584)
        return {'x': _w((lambda *s: torch.randn(*s, dtype=torch.bfloat16) * 0.05)(B, S, D)), 'w_gate': _w((lambda *s: torch.randn(*s, dtype=torch.bfloat16) * 0.05)(D, F)), 'w_up': _w((lambda *s: torch.randn(*s, dtype=torch.bfloat16) * 0.05)(D, F)), 'w_down': _w((lambda *s: torch.randn(*s, dtype=torch.bfloat16) * 0.05)(F, D))}
    _B_in = _B_setup()
    return {'A_x': _A_in['x'], 'A_k_cache': _A_in['k_cache'], 'A_v_cache': _A_in['v_cache'], 'A_wq': _A_in['wq'], 'A_wo': _A_in['wo'], 'B_x': _B_in['x'], 'B_w_gate': _B_in['w_gate'], 'B_w_up': _B_in['w_up'], 'B_w_down': _B_in['w_down'], 'c': _w((lambda *s: torch.randn(*s, dtype=torch.bfloat16) * 0.2)(1, 1024) * 8.0), 'w_mod': _w((lambda *s: torch.randn(*s, dtype=torch.bfloat16) * 0.2)(1024, 6 * 1024) * 1024 ** (-0.5) * 8.0)}

def reference(A_x, A_k_cache, A_v_cache, A_wq, A_wo, B_x, B_w_gate, B_w_up, B_w_down, c, w_mod):

    def _A_ref(x, k_cache, v_cache, wq, wo):
        B, Sq, D = x.shape
        Hq, Dh = (32, 128)
        Hkv, Sk = (k_cache.shape[1], k_cache.shape[2])
        W = min(4096, max(256, Sk // 4))
        rep = Hq // Hkv
        q = (lambda x, *d: x.permute(*d))((x @ wq).reshape(B, Sq, Hq, Dh), 0, 2, 1, 3)
        k = (lambda x, n, axis: torch.repeat_interleave(x, n, dim=axis))(k_cache[:, :, Sk - W:, :], rep, axis=1)
        v = (lambda x, n, axis: torch.repeat_interleave(x, n, dim=axis))(v_cache[:, :, Sk - W:, :], rep, axis=1)
        scores = torch.einsum('bhqd,bhkd->bhqk', q, k) * Dh ** (-0.5)
        p = _softmax(scores, axis=-1)
        o = torch.einsum('bhqk,bhkd->bhqd', p, v)
        return (lambda x, *d: x.permute(*d))(o, 0, 2, 1, 3).reshape(B, Sq, Hq * Dh) @ wo

    def _B_ref(x, w_gate, w_up, w_down):
        return _gelu(x @ w_gate) * (x @ w_up) @ w_down
    x = A_x
    mod = (_silu(c) @ w_mod).reshape(c.shape[0], 6, 1, -1)
    sa, ca, ga, sb, cb, gb = (mod[:, 0].clone(), mod[:, 1].clone(), mod[:, 2].clone(), mod[:, 3].clone(), mod[:, 4].clone(), mod[:, 5].clone())
    h = _layernorm(x, axis=-1) * (1 + ca) + sa
    x = x + ga * _A_ref(h, A_k_cache, A_v_cache, A_wq, A_wo)
    h = _layernorm(x, axis=-1) * (1 + cb) + sb
    x = x + gb * _B_ref(h, B_w_gate, B_w_up, B_w_down)
    return x
```

```python
import re
class Asm:
    def __init__(s):
        s.out=[]; s.hist=[]; s.nl=0
    def regs(s,op):
        op=op.strip()
        m=re.fullmatch(r'-?(?:abs\()?([vs])(\d+)\)?',op)
        if m: return {(m.group(1),int(m.group(2)))}
        m=re.fullmatch(r'([vs])\[(\d+):(\d+)\]',op)
        if m: return {(m.group(1),i) for i in range(int(m.group(2)),int(m.group(3))+1)}
        if op=='vcc': return {('s',106),('s',107)}
        if op=='exec': return {('s',126)}
        if op=='m0': return {('s',124)}
        return set()
    def label(s,n):
        s.out.append(n+':')
    def newl(s,p='L'):
        s.nl+=1; return f'{p}{s.nl}'
    def raw(s,t): s.out.append(t)
    def __call__(s,line):
        for ln in line.strip().split('\n'):
            ln=ln.split(';')[0].strip()
            if ln: s.one(ln)
    def one(s,ln):
        if ln.endswith(':'): s.out.append(ln); return
        mn,_,rest=ln.partition(' ')
        ops=[o.strip() for o in re.split(r',(?![^\[]*\])',rest)] if rest else []
        if ops:
            last=ops[-1].split(' '); ops[-1]=last[0]
        R=[s.regs(o) for o in ops]
        valu=mn.startswith('v_'); mfma=mn.startswith('v_mfma')
        vmem=mn.startswith(('buffer_','global_')); ds=mn.startswith('ds_')
        dpp=('quad_perm' in ln or 'row_' in ln); perml=mn.startswith('v_permlane')
        rdl=mn.startswith(('v_readlane','v_readfirstlane'))
        trans=bool(re.match(r'v_(exp|log|rcp|rsq|sqrt|sin|cos)_',mn))
        if perml: dst=R[0]|R[1]; src=R[0]|R[1]
        elif (vmem and ('store' in mn or ' lds' in ln)) or (ds and not ('read' in mn or 'rtn' in mn or 'permute' in mn)) or mn.startswith('s_cmp') or mn.startswith('s_cbranch'):
            dst=set(); src=set().union(*R) if R else set()
        else:
            dst=R[0] if R else set(); src=set().union(*R[1:]) if len(R)>1 else set()
            if mn.startswith(('v_fmac','v_dot2c')) or dpp: src=src|dst
        if mn=='v_cndmask_b32' and len(ops)==3: src|=s.regs('vcc')
        need=0
        d=0
        for h in reversed(s.hist[-24:]):
            w=0
            vs=lambda X:{r for r in X if r[0]=='v'}
            ss=lambda X:{r for r in X if r[0]=='s'}
            if h['valu'] and not h['mfma']:
                if vs(h['dst'])&src:
                    if dpp or perml or mfma: w=max(w,2)
                    if rdl: w=max(w,1)
                    if h['trans'] and valu: w=max(w,1)
                if ss(h['dst'])&src:
                    if valu: w=max(w,2)
                    if vmem: w=max(w,5)
            if h['mfma']:
                if h['dst']&(src|dst):
                    if mfma and len(R)>3 and h['dst']==R[3] and not (h['dst']&(R[1]|R[2])): pass
                    elif valu or vmem or ds: w=max(w,8)
                if valu and not mfma and h['srcc']&dst: w=max(w,3)
            if h['wstore'] and h['src']&vs(dst): w=max(w,2)
            if ('s',124) in h['dst'] and ' lds' in ln: w=max(w,1)
            need=max(need,w-d)
            d+=h['ws']
        if need>0:
            s.out.append(f'  s_nop {need-1}')
            s.hist.append(dict(valu=0,mfma=0,trans=0,dst=set(),src=set(),srcc=set(),wstore=0,ws=need))
        s.out.append('  '+ln)
        ws=1
        if mn=='s_nop': ws=int(ops[0])+1
        s.hist.append(dict(valu=valu,mfma=mfma,trans=trans,dst=dst,src=src,srcc=(R[3] if mfma and len(R)>3 else set()),
            wstore=(vmem and 'store' in mn and ('x4' in mn or 'x3' in mn)),ws=ws))
    def text(s): return '\n'.join(s.out)+'\n'
```

```python
import sys,struct
from asmlib import Asm
P=dict(DIAG=0,NT=' nt',N0=32,N1=20,N2=20,N3=20,SLEEP=1,PRESPIN=1,WARM=0)
for a in sys.argv[2:]:
    k,v=a.split('='); P[k]=v if k=='NT' else int(v)
if P['NT']=='0': P['NT']=''
NAME='adaLN_cond__sliding_block_cached__geglu_ffn__decode'
def f2u(x): return '0x%08x'%struct.unpack('<I',struct.pack('<f',x))[0]
E1,E2,E3O,E3M,M2,E4,E5,E6,WSEND=0x1000,0x21000,0x41000,0x141000,0x149000,0x159000,0x169000,0x177000,0x187000
DG=0x190000
R0,RK,RV,R2,R3,W=0,32768,65536,81920,114688,147456
FL=W; RED0=W+128; RED1=RED0+4096; QL=RED1+4096; SC=QL+2176; X2=QL; LDSZ=SC+2176
F_LAND,F_FR0,F_FR2,C_P1,C_P2,C_Q,C_S,C_M2,C_P4,C_X,C_P5,C_P6=[FL+4*i for i in range(12)]
a=Asm()
T=['s5','s44','s45','s46']
def v(i,n=1): return f'v{i}' if n==1 else f'v[{i}:{i+n-1}]'
def srd(d,p,n): a(f's_mov_b32 s{d}, s{p}\ns_mov_b32 s{d+1}, s{p+1}\ns_mov_b32 s{d+2}, {n}\ns_mov_b32 s{d+3}, 0x20000')
def stamp(i):
    if P['DIAG']:
        a(f'''s_memrealtime s[76:77]
        s_lshl_b32 s78, s3, 8
        s_lshl_b32 s79, s4, 4
        s_waitcnt lgkmcnt(0)
        s_mul_i32 s78, s78, 9
        s_lshl_b32 s79, s79, 4
        s_add_u32 s78, s78, s79
        s_add_u32 s78, s78, {DG+4*i}
        v_mov_b32 v160, s76
        v_mov_b32 v161, s78
        s_mov_b64 s[80:81], exec
        s_mov_b64 exec, 1
        buffer_store_dword v160, v161, s[36:39], 0 offen
        s_mov_b64 exec, s[80:81]''')
def budget(): a('s_sub_u32 s49, s49, 1\ns_cbranch_scc1 TIMEOUT')
def spin(addr,thr):
    L=a.newl(); a.label(L); budget()
    a(f'ds_read_b32 v14, v15 offset:{addr-FL}\ns_waitcnt lgkmcnt(0)\nv_cmp_gt_i32 vcc, {thr}, v14\ns_cbranch_vccnz {L}')
def arrive(addr):
    a(f's_waitcnt lgkmcnt(0)\ns_mov_b64 exec, 1\nds_add_u32 v15, v162 offset:{addr-FL}\ns_mov_b64 exec, -1')
def landed(c):
    if isinstance(c,int): a(f's_add_u32 s50, s4, {c+1}'); c='s50'
    spin(F_LAND,c)
def chk(regs,fmt,acc='v165'):
    first=True
    for g in regs:
        if fmt==24: lst=[(g+i,T[i]) for i in range(4)]
        else: lst=[(g+1,T[0]),(g+3,T[0])]
        for r,t in lst:
            if first: a(f'v_xor_b32 {acc}, {t}, v{r}'); first=False
            else: a(f'v_bitop3_b32 {acc}, {acc}, v{r}, {t} bitop3:0xf6')
    if fmt==24: a(f'v_and_b32 {acc}, 0xff, {acc}')
    a(f'v_cmp_ne_u32 vcc, 0, {acc}')
def poll(loads,fmt):
    def loop(ls):
        L=a.newl(); D=a.newl(); a.label(L)
        for g,t in ls: a(t)
        a('s_waitcnt vmcnt(0)')
        chk([g for g,t in ls],fmt)
        a(f's_cbranch_vccz {D}'); budget()
        if P['SLEEP']: a(f's_sleep {P["SLEEP"]}')
        a(f's_branch {L}'); a.label(D)
    if len(loads)>1 and P['PRESPIN']: loop(loads[-1:]); loop(loads[:-1])
    else: loop(loads)
def ld(g,va,so,off=0): return (g,f'buffer_load_dwordx4 {v(g,4)}, {va}, s[36:39], {so} offen offset:{off} sc1')
def mask(g,n=4):
    for i in range(n): a(f'v_and_b32 v{g+i}, v7, v{g+i}')
DP=['quad_perm:[1,0,3,2]','quad_perm:[2,3,0,1]','row_half_mirror','row_mirror']
def dppred(regs,steps,op='add'):
    for s_ in steps:
        for r in regs: a(f'v_{op}_f32_dpp v{r}, v{r}, v{r} {DP[s_]} row_mask:0xf bank_mask:0xf')
def swapred(regs,tmp,op='add',which=(16,32)):
    for w_ in which:
        for i,r in enumerate(regs): a(f'v_mov_b32 v{tmp+i}, v{r}')
        for i,r in enumerate(regs): a(f'v_permlane{w_}_swap_b32 v{r}, v{tmp+i}')
        for i,r in enumerate(regs): a(f'v_{op}_f32 v{r}, v{r}, v{tmp+i}')
def rnd(regs,tmp):
    for i in range(0,len(regs),2): a(f'v_cvt_pk_bf16_f32 v{tmp+i//2}, v{regs[i]}, v{regs[i+1]}')
    for i in range(0,len(regs),2): a(f'v_lshlrev_b32 v{regs[i]}, 16, v{tmp+i//2}\nv_and_b32 v{regs[i+1]}, s48, v{tmp+i//2}')
def rnd1(r): a(f'v_cvt_pk_bf16_f32 v{r}, v{r}, v{r}\nv_and_b32 v{r}, s48, v{r}')
def dup(dst,src):
    for i in range(4): a(f'v_cvt_pk_bf16_f32 v{dst+i}, v{src+i}, v{src+i}')
def unpk(dst,src,n):
    for i in reversed(range(n)): a(f'v_and_b32 v{dst+2*i+1}, s48, v{src+i}\nv_lshlrev_b32 v{dst+2*i}, 16, v{src+i}')
def gemv(hh,wt,first=True):
    for t in range(4):
        A=48+4*(t&1)
        for q in range(4): a(f'v_and_b32 v{A+q}, v{hh+t}, v{3+q}')
        a(f'v_mfma_f32_16x16x32_bf16 v[44:47], {v(A,4)}, {v(wt+4*t,4)}, {"0" if first and t==0 else "v[44:47]"}')
def rdw(dst,base):
    for t in range(4): a(f'ds_read_b128 {v(dst+4*t,4)}, v12 offset:{1024*t}')
def reduce(buf,cnt,n,form,skip):
    a(f'''s_mov_b64 exec, s[52:53]
    ds_write_b128 v8, v[44:47] offset:{buf-RED0}
    s_waitcnt lgkmcnt(0)
    s_mov_b64 exec, 1
    ds_add_rtn_u32 v14, v15, v162 offset:{cnt-FL}
    s_mov_b64 exec, -1
    s_waitcnt lgkmcnt(0)
    v_readfirstlane_b32 s50, v14
    s_cmp_lg_u32 s50, {n-1}
    s_cbranch_scc1 {skip}''')
    if form=='A':
        a(f'v_lshlrev_b32 v12, 2, v1\nv_add_u32 v12, {buf}, v12')
        for i in range(n): a(f'ds_read2st64_b32 {v(96+2*i,2)}, v12 offset0:{2*i} offset1:{2*i+1}')
        a('s_waitcnt lgkmcnt(0)')
        m=2*n
        while m>2:
            m//=2
            for i in range(0,m,2): a(f'v_pk_add_f32 {v(96+i,2)}, {v(96+i,2)}, {v(96+m+i,2)}')
        a('v_add_f32 v44, v96, v97\nv_mov_b32 v45, s5')
    else:
        for k in range(4): a(f'ds_read_b128 {v(96+4*k,4)}, v10 offset:{buf-RED0+256*k}')
        a('s_waitcnt lgkmcnt(0)')
        a('v_pk_add_f32 v[96:97], v[96:97], v[100:101]\nv_pk_add_f32 v[98:99], v[98:99], v[102:103]')
        a('v_pk_add_f32 v[104:105], v[104:105], v[108:109]\nv_pk_add_f32 v[106:107], v[106:107], v[110:111]')
        a('v_pk_add_f32 v[44:45], v[96:97], v[104:105]\nv_pk_add_f32 v[46:47], v[98:99], v[106:107]')
        swapred([44,45,46,47],96)
def pub24(g,va,so,ex):
    for i in range(4): a(f'v_bfi_b32 v{g+i}, v7, v{g+i}, {T[i]}')
    a(f's_mov_b64 exec, {ex}\nbuffer_store_dwordx4 {v(g,4)}, {va}, s[36:39], {so} offen sc1\ns_mov_b64 exec, -1')
def stats(X):
    a(f'v_pk_add_f32 v[56:57], {v(X,2)}, {v(X+2,2)}\nv_pk_add_f32 v[58:59], {v(X+4,2)}, {v(X+6,2)}')
    a(f'v_pk_add_f32 v[56:57], v[56:57], {v(X+8,2)}\nv_pk_add_f32 v[58:59], v[58:59], {v(X+10,2)}')
    a(f'v_pk_add_f32 v[56:57], v[56:57], {v(X+12,2)}\nv_pk_add_f32 v[58:59], v[58:59], {v(X+14,2)}')
    a('v_pk_add_f32 v[56:57], v[56:57], v[58:59]\nv_add_f32 v60, v56, v57')
    dppred([60],[0,1,2,3]); swapred([60],62)
    a(f'v_mul_f32 v60, {f2u(-1/1024)}, v60')
    for i in range(0,16,2): a(f'v_pk_add_f32 {v(X+i,2)}, {v(X+i,2)}, v[60:61] op_sel_hi:[1,0]')
    a(f'v_pk_mul_f32 v[56:57], {v(X,2)}, {v(X,2)}\nv_pk_mul_f32 v[58:59], {v(X+2,2)}, {v(X+2,2)}')
    for i in range(4,16,2): a(f'v_pk_fma_f32 {v(56+(i&2),2)}, {v(X+i,2)}, {v(X+i,2)}, {v(56+(i&2),2)}')
    a('v_pk_add_f32 v[56:57], v[56:57], v[58:59]\nv_add_f32 v61, v56, v57')
    dppred([61],[0,1,2,3]); swapred([61],62)
    a(f'v_mul_f32 v61, {f2u(1/1024)}, v61\nv_sub_f32 v60, 0, v60')
    rnd([60,61],62); a(f'v_add_f32 v61, {f2u(1e-5)}, v61'); rnd1(61); a('v_sqrt_f32 v61, v61'); rnd1(61); a('v_rcp_f32 v61, v61')
def norm(X,n,tmp):
    R=list(range(X,X+n))
    for r in R: a(f'v_sub_f32 v{r}, v{r}, v60')
    rnd(R,tmp)
    for r in R: a(f'v_mul_f32 v{r}, v{r}, v61')
    rnd(R,tmp)
def sigm(X,Y,n):
    for i in range(n): a(f'v_exp_f32 v{Y+i}, v{Y+i}')
    for i in range(n): a(f'v_add_f32 v{Y+i}, 1.0, v{Y+i}')
    for i in range(n): a(f'v_rcp_f32 v{Y+i}, v{Y+i}')
    for i in range(n): a(f'v_mul_f32 v{X+i}, v{X+i}, v{Y+i}')
def silu(dst,src):
    unpk(56,src,2)
    for i in range(4): a(f'v_mul_f32 v{60+i}, {f2u(-1.4426950408889634)}, v{56+i}')
    sigm(56,60,4); dup(dst,56)

a('''s_cmp_ge_u32 s2, 256
s_cbranch_scc1 TIMEOUT
s_load_dwordx16 s[8:23], s[0:1], 0
s_load_dwordx8 s[24:31], s[0:1], 64
s_load_dwordx4 s[32:35], s[0:1], 96
v_lshrrev_b32 v2, 6, v0
v_and_b32 v1, 63, v0
s_and_b32 s3, s2, 7
s_lshl_b32 s3, s3, 5
s_lshr_b32 s6, s2, 3
s_add_u32 s3, s3, s6
v_readfirstlane_b32 s4, v2
v_lshrrev_b32 v2, 3, v1
v_and_b32 v9, 7, v1
v_lshlrev_b32 v9, 4, v9
s_mov_b32 s49, 0x200000
s_and_b32 s54, s3, 63
s_lshr_b32 s55, s3, 6
s_and_b32 s56, s3, 15
s_lshr_b32 s57, s3, 4
s_cmp_ge_u32 s3, 112
s_cselect_b32 s58, 1, 0
s_mul_i32 s6, s58, 112
s_sub_u32 s60, s3, s6
s_cmp_ge_u32 s60, 56
s_cselect_b32 s59, 1, 0
s_mul_i32 s6, s59, 56
s_sub_u32 s60, s60, s6
v_mov_b32 v15, %d
v_mov_b32 v162, 1
v_mov_b32 v14, 0
v_lshl_add_u32 v12, v1, 2, v15
s_mov_b64 exec, 0xffff
ds_write_b32 v12, v14
s_mov_b64 exec, -1
s_waitcnt lgkmcnt(0)
s_barrier
s_cmp_eq_u32 s4, 8
s_cbranch_scc1 LOADER'''%FL)
a('''s_lshl_b32 s61, s4, 5
s_lshr_b32 s6, s3, 5
s_lshl_b32 s6, s6, 7
s_add_u32 s62, s6, s61
s_lshl_b32 s6, s55, 8
s_add_u32 s63, s6, s61
v_mul_u32_u24 v12, 49152, v2
v_add_u32 v12, v12, v9
s_mul_i32 s64, s62, 12288
s_and_b32 s6, s3, 31
s_lshl_b32 s6, s6, 7
s_add_u32 s64, s64, s6
v_lshlrev_b32 v13, 3, v2
v_lshlrev_b32 v14, 5, v1
s_lshl_b32 s65, s62, 1
s_lshl_b32 s66, s63, 1
s_load_dword s5, s[34:35], 0''')
srd(40,28,12582912)
a('s_cmp_ge_u32 s4, 4\ns_cbranch_scc1 NOP1LD')
for t in range(4): a(f'buffer_load_dwordx4 {v(64+4*t,4)}, v12, s[40:43], s64 offen{P["NT"]}\ns_add_u32 s64, s64, 12288')
a.label('NOP1LD')
srd(40,26,2048)
a('buffer_load_dwordx2 v[20:21], v13, s[40:43], s65 offen\nbuffer_load_dwordx2 v[22:23], v13, s[40:43], s66 offen')
srd(40,8,2048)
a('''buffer_load_dwordx2 v[24:25], v13, s[40:43], s66 offen
buffer_load_dwordx4 v[136:139], v14, s[40:43], 0 offen
buffer_load_dwordx4 v[140:143], v14, s[40:43], 0 offen offset:16
v_and_b32 v12, 31, v1
v_lshlrev_b32 v12, 3, v12
s_lshl_b32 s6, s4, 8
buffer_load_dwordx2 v[156:157], v12, s[40:43], s6 offen''')
srd(36,34,WSEND if not P['DIAG'] else DG+0x100000)
a(f'''s_mov_b32 s48, 0xffff0000
v_mov_b32 v7, 0xffffff00
v_and_b32 v12, 1, v1
v_cmp_eq_u32 vcc, 1, v12
v_mov_b32 v13, 0xffff
v_mov_b32 v14, s48
v_cndmask_b32 v13, v13, v14, vcc
v_bfe_u32 v12, v1, 1, 2''')
for q in range(4): a(f'v_cmp_eq_u32 vcc, {q}, v12\nv_cndmask_b32 v{3+q}, 0, v13, vcc')
a(f'''v_lshrrev_b32 v12, 5, v1
v_lshlrev_b32 v8, 8, v12
v_lshl_add_u32 v8, v9, 1, v8
v_and_b32 v12, 16, v1
v_add_u32 v8, v8, v12
s_lshl_b32 s6, s4, 9
s_add_u32 s6, s6, {RED0}
v_add_u32 v8, s6, v8
v_and_b32 v163, 15, v1
v_lshlrev_b32 v163, 4, v163
v_lshrrev_b32 v164, 4, v1
v_lshl_add_u32 v10, v164, 10, v163
v_add_u32 v10, {RED0}, v10
s_lshl_b32 s6, s4, 12
v_lshlrev_b32 v11, 4, v1
v_add_u32 v11, s6, v11
s_mov_b32 s52, 0x00ff00ff
s_mov_b32 s53, 0xff00ff00
s_waitcnt lgkmcnt(0)
s_add_u32 s5, s5, 1
s_lshr_b32 s44, s5, 8
s_lshr_b32 s45, s5, 16
s_lshr_b32 s46, s5, 24''')
stamp(0)
a('s_cmp_ge_u32 s4, 4\ns_cbranch_scc1 P1DONE\ns_waitcnt vmcnt(5)')
silu(16,20)
stamp(1)
gemv(16,64)
reduce(RED0,C_P1,4,'A','P1DONE')
a(f'''s_and_b32 s6, s3, 31
s_lshl_b32 s6, s6, 12
s_lshr_b32 s7, s3, 5
s_lshl_b32 s7, s7, 9
s_add_u32 s6, s6, s7
s_add_u32 s6, s6, {E1}
v_lshlrev_b32 v12, 3, v1
buffer_store_dwordx2 v[44:45], v12, s[36:39], s6 offen sc1''')
stamp(2)
a.label('P1DONE')
a('s_waitcnt vmcnt(1)')
silu(20,22)
unpk(104,136,8); unpk(16,24,2)
stats(104); norm(16,4,56)
landed(0); a(f'v_add_u32 v12, {R0}, v11'); rdw(64,0); arrive(F_FR0)
a(f'''s_lshr_b32 s6, s63, 6
s_lshl_b32 s6, s6, 12
s_and_b32 s7, s63, 63
s_lshl_b32 s7, s7, 3
s_add_u32 s6, s6, s7
s_add_u32 s6, s6, {E1}
s_add_u32 s7, s6, 65536
v_lshlrev_b32 v12, 5, v9
v_lshl_add_u32 v12, v2, 5, v12''')
stamp(3)
poll([ld(96,'v12','s6'),ld(100,'v12','s6',16),ld(104,'v12','s7'),ld(108,'v12','s7',16)],8)
stamp(4)
sa=[96,98,100,102]; ca=[104,106,108,110]
dppred(sa+ca,[0,1,2]); rnd(sa+ca,56)
for r in ca: a(f'v_add_f32 v{r}, 1.0, v{r}')
rnd(ca,56)
for i in range(4): a(f'v_mul_f32 v{16+i}, v{16+i}, v{ca[i]}')
rnd([16,17,18,19],56)
for i in range(4): a(f'v_add_f32 v{16+i}, v{16+i}, v{sa[i]}')
dup(56,16); gemv(56,64)
reduce(RED1,C_P2,8,'A','P2DONE')
a(f'''s_lshl_b32 s6, s54, 11
s_lshl_b32 s7, s55, 9
s_add_u32 s6, s6, s7
s_add_u32 s6, s6, {E2}
v_lshlrev_b32 v12, 3, v1
buffer_store_dwordx2 v[44:45], v12, s[36:39], s6 offen sc1''')
stamp(5)
a.label('P2DONE')
a('s_cmp_ge_u32 s4, 4\ns_cbranch_scc1 NOK')
landed(8)
a(f'''v_and_b32 v13, 15, v1
v_xor_b32 v12, v164, v13
v_lshlrev_b32 v12, 4, v12
v_lshl_add_u32 v12, v13, 8, v12
s_lshl_b32 s6, s4, 12
s_add_u32 s6, s6, {RK}
v_add_u32 v12, s6, v12''')
for s_ in range(4): a(f'v_xor_b32 v13, {64*s_}, v12\nds_read_b128 {v(136+4*s_,4)}, v13')
arrive(F_FR0)
a.label('NOK')
a('s_mov_b32 s50, 16'); landed('s50')
a(f'''v_bfe_u32 v12, v1, 2, 2
v_lshl_add_u32 v13, v164, 3, v12
v_and_b32 v14, 15, v13
v_bfe_u32 v12, v1, 1, 1
s_lshl_b32 s6, s4, 1
v_add_u32 v12, s6, v12
v_xor_b32 v12, v12, v14
v_lshlrev_b32 v12, 4, v12
v_lshl_add_u32 v12, v13, 8, v12
v_and_b32 v13, 1, v1
v_lshl_add_u32 v12, v13, 3, v12
v_add_u32 v12, {RV}, v12
v_xor_b32 v13, 64, v12
ds_read_b64_tr_b16 v[128:129], v12
ds_read_b64_tr_b16 v[130:131], v13 offset:1024
ds_read_b64_tr_b16 v[132:133], v12 offset:8192
ds_read_b64_tr_b16 v[134:135], v13 offset:9216
s_lshl_b32 s6, s55, 15
s_lshl_b32 s7, s4, 12
s_add_u32 s6, s6, s7
s_add_u32 s6, s6, {E2}
v_and_b32 v13, 31, v1
v_lshlrev_b32 v13, 4, v13
v_lshrrev_b32 v12, 5, v1
v_lshl_add_u32 v12, v12, 11, v13''')
stamp(6)
poll([ld(96+4*k,'v12','s6',512*k) for k in range(4)],8)
stamp(7)
a(f'''v_add_f32 v96, v96, v100
v_add_f32 v98, v98, v102
v_add_f32 v104, v104, v108
v_add_f32 v106, v106, v110
v_add_f32 v96, v96, v104
v_add_f32 v98, v98, v106
s_mul_i32 s6, s4, 272
s_add_u32 s6, s6, {QL}
v_lshl_add_u32 v12, v1, 2, s6
v_cvt_pk_bf16_f32 v96, v96, v98
ds_write_b32 v12, v96''')
arrive(C_Q)
a(f'''v_and_b32 v13, 7, v1
v_mul_u32_u24 v13, 272, v13
s_cmp_ge_u32 s4, 4
s_cbranch_scc1 NOQK
v_lshl_add_u32 v12, v164, 4, v13
v_add_u32 v12, {QL}, v12''')
spin(C_Q,8)
for s_ in range(4): a(f'ds_read_b128 {v(96+4*s_,4)}, v12 offset:{64*s_}')
for s_ in range(4): a(f's_waitcnt lgkmcnt({3-s_})\nv_mfma_f32_16x16x32_bf16 v[44:47], {v(136+4*s_,4)}, {v(96+4*s_,4)}, {"0" if s_==0 else "v[44:47]"}')
a(f's_lshl_b32 s6, s4, 6\ns_add_u32 s6, s6, {SC-QL}\nv_add_u32 v12, s6, v12')
rnd([44,45,46,47],56)
for i in range(4): a(f'v_mul_f32 v{44+i}, 0x3db504f3, v{44+i}')
rnd([44,45,46,47],56)
a('s_mov_b32 exec_lo, s52\ns_mov_b32 exec_hi, s52\nds_write_b128 v12, v[44:47]\ns_mov_b64 exec, -1')
arrive(C_S)
a.label('NOQK')
a(f'v_lshl_add_u32 v12, v164, 5, v13\nv_add_u32 v12, {SC}, v12')
spin(C_S,4)
for i,o in enumerate([0,16,128,144]): a(f'ds_read_b128 {v(96+4*i,4)}, v12 offset:{o}')
a('s_waitcnt lgkmcnt(0)\nv_max3_f32 v56, v96, v97, v98')
for i in range(99,111,2): a(f'v_max3_f32 v56, v56, v{i}, v{i+1}')
a('v_max_f32 v56, v56, v111'); swapred([56],58,'max')
a(f'v_mul_f32 v57, {f2u(-1.4426950408889634)}, v56\ns_mov_b32 s6, 0x3fb8aa3b')
for i in range(96,112): a(f'v_fma_f32 v{i}, v{i}, s6, v57')
for i in range(96,112): a(f'v_exp_f32 v{i}, v{i}')
for i in range(8): a(f'v_cvt_pk_bf16_f32 v{112+i}, v{96+2*i}, v{97+2*i}')
a('v_mfma_f32_16x16x32_bf16 v[44:47], v[128:131], v[112:115], 0\nv_mfma_f32_16x16x32_bf16 v[44:47], v[132:135], v[116:119], v[44:47]')
a(f'''s_lshl_b32 s6, s3, 12
s_lshl_b32 s7, s4, 6
s_add_u32 s6, s6, s7
s_add_u32 s6, s6, {E3O}
v_lshlrev_b32 v12, 5, v9
v_lshl_add_u32 v12, v164, 4, v12
s_mov_b32 s50, s52
s_mov_b32 s51, s52''')
pub24(44,'v12','s6','s[50:51]')
a('s_cmp_lg_u32 s4, 0\ns_cbranch_scc1 NOML')
for m in (8,4,2):
    for i in range(0,m,2): a(f'v_pk_add_f32 {v(96+i,2)}, {v(96+i,2)}, {v(96+m+i,2)}')
a('v_add_f32 v57, v96, v97'); swapred([57],58)
a(f'''s_lshl_b32 s6, s55, 13
s_lshl_b32 s7, s54, 4
s_add_u32 s6, s6, s7
s_add_u32 s6, s6, {E3M}
v_lshlrev_b32 v12, 10, v1
v_mov_b32 v58, 0
v_mov_b32 v59, 0''')
pub24(56,'v12','s6','0xff')
a.label('NOML')
stamp(8)
landed(16); a(f'v_add_u32 v12, {R2}, v11'); rdw(64,0); arrive(F_FR2); gemv(20,64)
reduce(RED0,C_M2,8,'B','M2DONE')
a(f's_lshl_b32 s6, s55, 14\ns_lshl_b32 s7, s54, 8\ns_add_u32 s6, s6, s7\ns_add_u32 s6, s6, {M2}')
pub24(44,'v163','s6','0xffff')
a.label('M2DONE')
stamp(9)
landed(24); a(f'v_add_u32 v12, {R3}, v11'); rdw(64,0)
a(f'''s_lshl_b32 s6, s57, 1
s_lshr_b32 s7, s4, 2
s_add_u32 s6, s6, s7
s_lshl_b32 s7, s6, 10
s_add_u32 s7, s7, {E3M}
v_lshlrev_b32 v12, 4, v1''')
stamp(10)
poll([ld(56,'v12','s7')],24)
a(f'''s_lshr_b32 s7, s6, 3
s_lshl_b32 s7, s7, 18
s_and_b32 s6, s6, 7
s_lshl_b32 s6, s6, 9
s_add_u32 s6, s6, s7
s_and_b32 s7, s4, 3
s_lshl_b32 s7, s7, 7
s_add_u32 s64, s6, s7
s_add_u32 s64, s64, {E3O}
v_lshlrev_b32 v12, 11, v9
v_lshl_add_u32 v12, v2, 4, v12''')
for n in range(1,8): a(f's_add_u32 s{64+n}, s64, {4096*n}')
OL=[ld(96+4*n,'v12',f's{64+n}') for n in range(8)]
for g,t in OL: a(t)
mask(56,2)
a('v_mov_b32 v58, v56'); dppred([58],[0,1,2,3],'max'); swapred([58],59,'max')
a(f'''v_sub_f32 v56, v56, v58
v_mul_f32 v56, 0x3fb8aa3b, v56
v_exp_f32 v56, v56
s_lshl_b32 s6, s4, 9
s_add_u32 s6, s6, {RED1}
v_lshl_add_u32 v13, v1, 2, s6
v_lshl_add_u32 v14, v9, 1, s6
ds_write_b32 v13, v56
ds_read_b128 v[136:139], v14
ds_read_b128 v[140:143], v14 offset:16
v_mul_f32 v57, v56, v57''')
dppred([57],[0,1,2,3]); swapred([57],59); a('v_rcp_f32 v57, v57\ns_waitcnt vmcnt(0)')
chk([g for g,t in OL],24); a('s_cbranch_vccz ODONE')
sv=P['PRESPIN']; P['PRESPIN']=0; poll(OL,24); P['PRESPIN']=sv
a.label('ODONE')
stamp(11)
a(f's_lshl_b32 s6, s56, 8\ns_add_u32 s6, s6, {M2}\nv_lshl_add_u32 v12, v164, 14, v163')
GA=ld(24,'v12','s6'); a(GA[1])
mask(96,32); a('s_waitcnt lgkmcnt(0)')
for n in range(8):
    for h in (0,2):
        sel='op_sel_hi:[1,0,1]' if n%2==0 else 'op_sel:[0,1,0] op_sel_hi:[1,1,1]'
        if n==0: a(f'v_pk_mul_f32 {v(60+h,2)}, {v(96+h,2)}, v[136:137] op_sel_hi:[1,0]')
        else: a(f'v_pk_fma_f32 {v(60+h,2)}, {v(96+4*n+h,2)}, {v(136+(n&~1),2)}, {v(60+h,2)} {sel}')
dppred([60,61,62,63],[0,1,2])
for i in range(4): a(f'v_mul_f32 v{60+i}, v{60+i}, v57')
dup(56,60); gemv(56,64)
reduce(RED1,C_P4,8,'B','P4DONE')
a('v_lshl_add_u32 v12, v164, 14, v163\ns_waitcnt vmcnt(0)'); chk([24],24); a('s_cbranch_vccz GADONE'); poll([GA],24); a.label('GADONE')
mask(24); swapred([24,25,26,27],96); rnd([24,25,26,27],96)
for i in range(4): a(f'v_mul_f32 v{44+i}, v{44+i}, v{24+i}')
a(f's_lshl_b32 s6, s56, 12\ns_lshl_b32 s7, s57, 8\ns_add_u32 s6, s6, s7\ns_add_u32 s6, s6, {E4}')
pub24(44,'v163','s6','0xffff')
stamp(12)
a.label('P4DONE')
a(f'''s_cmp_ge_u32 s3, 224
s_cbranch_scc1 P5DONE
s_lshl_b32 s62, s58, 9
s_lshl_b32 s6, s4, 6
s_add_u32 s62, s62, s6
s_lshl_b32 s62, s62, 2
s_add_u32 s6, s62, {M2+4096}
v_and_b32 v12, 3, v1
v_lshlrev_b32 v12, 14, v12
v_bfe_u32 v13, v1, 2, 1
v_lshl_add_u32 v12, v13, 12, v12
v_lshl_add_u32 v12, v2, 4, v12''')
poll([ld(28,'v12','s6'),ld(32,'v12','s6',128)],24)
unpk(152,156,2); mask(28,8); dppred(list(range(28,36)),[0,1]); rnd(list(range(28,36)),56)
a('v_cmp_eq_u32 vcc, 1, v13')
for i in range(8): a(f'v_mov_b32_dpp v{96+i}, v{28+i} row_half_mirror row_mask:0xf bank_mask:0xf')
for i in range(8): a(f'v_cndmask_b32 v{36+i}, v{28+i}, v{96+i}, vcc\nv_cndmask_b32 v{28+i}, v{96+i}, v{28+i}, vcc')
for i in range(8): a(f'v_add_f32 v{28+i}, 1.0, v{28+i}')
rnd(list(range(28,36)),56)
a(f'''s_lshl_b32 s6, s4, 13
s_add_u32 s6, s6, {E4}
v_and_b32 v13, 1, v164
v_lshl_add_u32 v12, v13, 12, v163
v_lshrrev_b32 v13, 5, v1
v_lshl_add_u32 v12, v13, 11, v12''')
stamp(13)
poll([ld(96+4*n,'v12','s6',256*n) for n in range(8)],24)
stamp(14)
mask(96,32)
for m in (16,8,4):
    for i in range(0,m,2): a(f'v_pk_add_f32 {v(96+i,2)}, {v(96+i,2)}, {v(96+m+i,2)}')
swapred([96,97,98,99],100,which=(32,)); rnd([96,97,98,99],100)
for i in range(4): a(f'v_add_f32 v{96+i}, v{96+i}, v{152+i}')
rnd([96,97,98,99],100)
a(f'''s_lshl_b32 s6, s4, 9
s_add_u32 s6, s6, {X2}
v_and_b32 v12, 31, v1
v_lshl_add_u32 v12, v12, 4, s6
ds_write_b128 v12, v[96:99]''')
arrive(C_X)
a(f's_add_u32 s6, s62, {X2}\nv_lshl_add_u32 v13, v2, 4, s6\nv_lshlrev_b32 v12, 4, v1\nv_add_u32 v12, {X2}, v12')
spin(C_X,8)
for i in range(4): a(f'ds_read_b128 {v(96+4*i,4)}, v12 offset:{1024*i}')
a('ds_read_b128 v[112:115], v13\nds_read_b128 v[116:119], v13 offset:128\ns_waitcnt lgkmcnt(2)')
stats(96); a('s_waitcnt lgkmcnt(0)'); norm(112,8,96)
for i in range(8): a(f'v_mul_f32 v{112+i}, v{112+i}, v{28+i}')
rnd(list(range(112,120)),96)
for i in range(8): a(f'v_add_f32 v{112+i}, v{112+i}, v{36+i}')
dup(56,112); dup(60,116)
a('s_lshl_b32 s50, s4, 1\ns_add_u32 s50, s50, 34\ns_lshl_b32 s6, s4, 12\nv_add_u32 v12, s6, v11'); landed('s50')
stamp(15)
for t in range(8): a(f'ds_read_b128 {v(64+4*t,4)}, v12 offset:{1024*t}')
a('s_waitcnt lgkmcnt(4)'); gemv(56,64); a('s_waitcnt lgkmcnt(0)'); gemv(60,80,False)
reduce(RED0,C_P5,8,'B','P5DONE')
a(f's_lshl_b32 s6, s59, 1\ns_add_u32 s6, s6, s58\ns_mul_i32 s6, s6, 14336\ns_lshl_b32 s7, s60, 8\ns_add_u32 s6, s6, s7\ns_add_u32 s6, s6, {E5}')
pub24(44,'v163','s6','0xffff')
stamp(16)
a.label('P5DONE')
a(f'v_subrev_u32 v8, {RED0-RV}, v8\nv_subrev_u32 v10, {RED0-RV}, v10')
a('v_mov_b32 v44, 0\nv_mov_b32 v45, 0\nv_mov_b32 v46, 0\nv_mov_b32 v47, 0\ns_cmp_eq_u32 s4, 7\ns_cbranch_scc1 P6RED')
landed(48); a(f'v_add_u32 v12, {R2}, v11'); rdw(64,0)
a(f'''s_mul_i32 s6, s57, 896
s_lshl_b32 s7, s4, 7
s_add_u32 s6, s6, s7
s_add_u32 s6, s6, {E5}
v_and_b32 v13, 3, v1
v_mul_u32_u24 v12, 14336, v13
v_lshl_add_u32 v12, v2, 4, v12''')
stamp(17)
poll([ld(96,'v12','s6')],24)
stamp(18)
mask(96); dppred([96,97,98,99],[0]); rnd([96,97,98,99],56)
a('v_cmp_lt_u32 vcc, 1, v13')
for i in range(4): a(f'v_mov_b32_dpp v{100+i}, v{96+i} quad_perm:[2,3,0,1] row_mask:0xf bank_mask:0xf')
for i in range(4): a(f'v_cndmask_b32 v{104+i}, v{96+i}, v{100+i}, vcc\nv_cndmask_b32 v{108+i}, v{100+i}, v{96+i}, vcc')
c1=2*0.7978845608028654*1.4426950408889634
a(f's_mov_b32 s6, {f2u(-c1*0.044715)}\nv_mov_b32 v100, {f2u(-c1)}')
for i in range(4): a(f'v_mul_f32 v{96+i}, v{104+i}, v{104+i}')
for i in range(4): a(f'v_fma_f32 v{96+i}, v{96+i}, s6, v100')
for i in range(4): a(f'v_mul_f32 v{96+i}, v{96+i}, v{104+i}')
sigm(104,96,4); rnd([104,105,106,107],56)
for i in range(4): a(f'v_mul_f32 v{104+i}, v{104+i}, v{108+i}')
dup(56,104); a('s_waitcnt lgkmcnt(0)'); gemv(56,64)
a.label('P6RED')
reduce(RED0,C_P6,8,'B','P6DONE')
a(f's_lshl_b32 s6, s57, 12\ns_lshl_b32 s7, s56, 8\ns_add_u32 s6, s6, s7\ns_add_u32 s6, s6, {E6}')
pub24(44,'v163','s6','0xffff')
stamp(19)
a.label('P6DONE')
a(f'''s_cmp_lg_u32 s4, 7
s_cbranch_scc1 TIMEOUT
s_cmp_ge_u32 s3, 64
s_cbranch_scc1 TIMEOUT
s_lshl_b32 s62, s3, 6
s_add_u32 s6, s62, {M2+12288}
v_and_b32 v12, 3, v1
v_lshlrev_b32 v12, 14, v12
v_lshl_add_u32 v12, v164, 4, v12
s_add_u32 s7, s62, {X2}
v_lshl_add_u32 v13, v164, 4, s7
ds_read_b128 v[28:31], v13''')
poll([ld(24,'v12','s6')],24)
mask(24); dppred([24,25,26,27],[0,1]); rnd([24,25,26,27],56)
a(f's_add_u32 s6, s62, {E6}\nv_lshlrev_b32 v12, 8, v163\nv_lshl_add_u32 v12, v164, 4, v12')
srd(40,30,2048)
poll([ld(96,'v12','s6')],24)
mask(96); dppred([96,97,98,99],[0,1,2,3]); rnd([96,97,98,99],56)
for i in range(4): a(f'v_mul_f32 v{96+i}, v{96+i}, v{24+i}')
rnd([96,97,98,99],56); a('s_waitcnt lgkmcnt(0)')
for i in range(4): a(f'v_add_f32 v{96+i}, v{96+i}, v{28+i}')
a('''v_cvt_pk_bf16_f32 v96, v96, v97
v_cvt_pk_bf16_f32 v97, v98, v99
v_lshlrev_b32 v12, 3, v164
s_lshl_b32 s6, s3, 5
s_mov_b32 exec_lo, 0x10001
s_mov_b32 exec_hi, 0x10001
buffer_store_dwordx2 v[96:97], v12, s[40:43], s6 offen''')
stamp(20)
a('''s_cmp_lg_u32 s3, 0
s_cbranch_scc1 TIMEOUT
s_mov_b64 exec, 1
v_mov_b32 v12, 0
v_mov_b32 v13, s5
buffer_store_dword v13, v12, s[36:39], 0 offen sc1
TIMEOUT:
s_endpgm''')
a.label('LOADER')
def stream(ptr,nbytes,vo,S,BS,nblk,lds,N,flag=True):
    srd(40,ptr,nbytes)
    a(f's_mov_b32 m0, {lds}\ns_add_u32 s51, s50, {nblk}')
    L=a.newl(); a.label(L)
    for t in range(4):
        a(f'buffer_load_dwordx4 {vo[t]}, s[40:43], s6 offen{P["NT"]} lds\ns_add_u32 m0, m0, 0x400\ns_add_u32 s6, s6, {S if t<3 else BS-3*S}')
    a('s_add_u32 s50, s50, 1')
    if flag: a(f's_sub_u32 s7, s50, {N//4}\nv_mov_b32 v14, s7\ns_waitcnt vmcnt({N})\nds_max_i32 v15, v14')
    a(f's_cmp_lt_u32 s50, s51\ns_cbranch_scc1 {L}')
def drain(N):
    for k in range(N-4,-1,-4): a(f's_sub_u32 s7, s50, {k//4}\nv_mov_b32 v14, s7\ns_waitcnt vmcnt({k})\nds_max_i32 v15, v14')
def waitfree(addr,n,N):
    D=a.newl()
    a(f'ds_read_b32 v14, v15 offset:{addr-FL}\ns_waitcnt lgkmcnt(0)\nv_cmp_gt_i32 vcc, {n}, v14\ns_cbranch_vccz {D}')
    drain(N); spin(addr,n); a.label(D)
a('''v_lshl_add_u32 v3, v2, 15, v9
s_lshl_b32 s6, s55, 21
s_lshl_b32 s7, s54, 7
s_add_u32 s6, s6, s7
s_mov_b32 s50, 0''')
stream(14,8388608,['v3']*4,8192,32*8192,8,R0,32,False)
a('''v_lshrrev_b32 v4, 4, v1
v_and_b32 v5, 15, v1
v_xor_b32 v5, v5, v4
v_lshlrev_b32 v5, 4, v5
v_lshl_add_u32 v4, v4, 8, v5
v_xor_b32 v5, 64, v4
v_xor_b32 v6, 128, v4
v_xor_b32 v7, 192, v4
s_lshl_b32 s61, s55, 24
s_lshl_b32 s7, s54, 14
s_add_u32 s61, s61, s7
s_add_u32 s61, s61, %d
s_mov_b32 s6, s61'''%(61440*256))
if P['DIAG']: srd(36,34,DG+0x100000)
KV=['v4','v5','v6','v7']
stream(10,67108864,KV,1024,4096,4,RK,P['N0']); stamp(0)
a('s_mov_b32 s6, s61'); stream(12,67108864,KV,1024,4096,4,RV,P['N1']); stamp(1)
a('v_mul_u32_u24 v3, 49152, v2\nv_add_u32 v3, v3, v9\ns_mul_i32 s6, s55, 3145728\ns_lshl_b32 s7, s54, 7\ns_add_u32 s6, s6, s7\ns_add_u32 s6, s6, 4096')
stream(28,12582912,['v3']*4,12288,32*12288,8,R2,P['N1']); stamp(2)
a('v_lshl_add_u32 v8, v2, 13, v9\ns_lshl_b32 s6, s57, 19\ns_lshl_b32 s7, s56, 7\ns_add_u32 s6, s6, s7')
stream(16,8388608,['v8']*4,2048,32*2048,8,R3,P['N2']); stamp(3)
a('s_cmp_ge_u32 s3, 224\ns_cbranch_scc1 NOP5')
waitfree(F_FR0,12,P['N2'])
a('''v_mul_u32_u24 v3, 28672, v2
v_add_u32 v3, v3, v9
s_mul_i32 s6, s58, 3670016
s_lshl_b32 s7, s60, 7
s_add_u32 s6, s6, s7
s_cmp_eq_u32 s59, 1
s_cselect_b32 s62, s22, s20
s_cselect_b32 s63, s23, s21''')
stream(62,7340032,['v3']*4,7168,32*7168,16,R0,P['N3']); stamp(4)
a('s_branch YESP5'); a.label('NOP5'); drain(P['N2']); a('s_mov_b32 s50, 48'); a.label('YESP5')
waitfree(F_FR2,8,P['N3'])
a('s_mul_i32 s6, s57, 458752\ns_lshl_b32 s7, s56, 7\ns_add_u32 s6, s6, s7')
stream(24,7340032,['v8']*4,2048,32*2048,7,R2,P['N3'])
drain(P['N3']); stamp(5)
a('s_waitcnt lgkmcnt(0)\ns_endpgm')
ref=open('cdna_kernels/'+NAME+'.s.ref').read()
head=ref[:ref.index('; Override launch')]
txt=head+('; DIAG\n' if P['DIAG'] else '')+f'''; @launch grid=(256,1,1) block=(576,1,1) lds={LDSZ}
.amdgcn_target "amdgcn-amd-amdhsa--gfx950"
.text
.globl {NAME}_kernel
.p2align 8
.type {NAME}_kernel,@function
{NAME}_kernel:
'''+a.text()+f'''.section .rodata,"a"
.p2align 6
.amdhsa_kernel {NAME}_kernel
  .amdhsa_next_free_vgpr 168
  .amdhsa_next_free_sgpr 96
  .amdhsa_accum_offset 168
  .amdhsa_group_segment_fixed_size 0
  .amdhsa_kernarg_size 112
  .amdhsa_user_sgpr_count 2
  .amdhsa_user_sgpr_kernarg_segment_ptr 1
  .amdhsa_system_sgpr_workgroup_id_x 1
.end_amdhsa_kernel
'''
open(sys.argv[1],'w').write(txt)
```

```python
import sys,struct
from asmlib import Asm
P=dict(DIAG=0,NT=' nt',N0=32,N1=20,N2=20,N3=20,SLEEP=1,PRESPIN=1,WARM=0,PRE3=0,PRE4=0,E3PRE=0)
for a in sys.argv[2:]:
    k,v=a.split('='); P[k]=v if k=='NT' else int(v)
if P['NT']=='0': P['NT']=''
NAME='adaLN_cond__sliding_block_cached__geglu_ffn__decode'
def f2u(x): return '0x%08x'%struct.unpack('<I',struct.pack('<f',x))[0]
E1,E2,E3O,E3M,M2,E4,E5,E6,WSEND=0x1000,0x21000,0x41000,0x141000,0x149000,0x159000,0x169000,0x177000,0x187000
DG=0x190000
R0,RK,RV,R2,R3,W=0,32768,65536,81920,114688,147456
FL=W; RED0=W+128; RED1=RED0+4096; QL=RED1+4096; SC=QL+2176; X2=QL; LDSZ=SC+2176
F_LAND,F_FR0,F_FR2,C_P1,C_P2,C_Q,C_S,C_M2,C_P4,C_X,C_P5,C_P6,C_O=[FL+4*i for i in range(13)]
a=Asm()
T=['s5','s44','s45','s46']
def v(i,n=1): return f'v{i}' if n==1 else f'v[{i}:{i+n-1}]'
def srd(d,p,n): a(f's_mov_b32 s{d}, s{p}\ns_mov_b32 s{d+1}, s{p+1}\ns_mov_b32 s{d+2}, {n}\ns_mov_b32 s{d+3}, 0x20000')
def stamp(i,ins='s_memrealtime'):
    if P['DIAG']:
        if ins=='cnt': a(f'v_writelane_b32 v126, s49, {i}')
        else: a(f'{ins} s[76:77]\ns_waitcnt lgkmcnt(0)\nv_writelane_b32 v126, s76, {i}')
def flush():
    if P['DIAG']:
        srd(36,34,DG+0x100000)
        a(f's_mul_i32 s78, s3, 2304\ns_lshl_b32 s79, s4, 8\ns_add_u32 s78, s78, s79\ns_add_u32 s78, s78, {DG}\ns_mov_b64 exec, -1\nv_lshlrev_b32 v127, 2, v1\nbuffer_store_dword v126, v127, s[36:39], s78 offen')
def budget(): a('s_sub_u32 s49, s49, 1\ns_cbranch_scc1 TIMEOUT')
def spin(addr,thr):
    L=a.newl(); a.label(L); budget()
    a(f'ds_read_b32 v14, v15 offset:{addr-FL}\ns_waitcnt lgkmcnt(0)\nv_cmp_gt_i32 vcc, {thr}, v14\ns_cbranch_vccnz {L}')
def arrive(addr):
    a(f's_waitcnt lgkmcnt(0)\ns_mov_b64 exec, 1\nds_add_u32 v15, v162 offset:{addr-FL}\ns_mov_b64 exec, -1')
def landed(c):
    if isinstance(c,int): a(f's_add_u32 s50, s4, {c+1}'); c='s50'
    spin(F_LAND,c)
def chk(regs,fmt,acc='v165'):
    if fmt==0:
        R=[g+i for g in regs for i in range(4)]
        a(f'v_max3_u32 {acc}, v{R[0]}, v{R[1]}, v{R[2]}')
        for i in range(3,len(R)-1,2): a(f'v_max3_u32 {acc}, {acc}, v{R[i]}, v{R[i+1]}')
        a(f'v_max_u32 {acc}, {acc}, v{R[-1]}\nv_cmp_eq_u32 vcc, -1, {acc}'); return
    first=True
    for g in regs:
        if fmt==24: lst=[(g+i,T[i]) for i in range(4)]
        else: lst=[(g+1,T[0]),(g+3,T[0])]
        for r,t in lst:
            if first: a(f'v_xor_b32 {acc}, {t}, v{r}'); first=False
            else: a(f'v_bitop3_b32 {acc}, {acc}, v{r}, {t} bitop3:0xf6')
    if fmt==24: a(f'v_and_b32 {acc}, 0xff, {acc}')
    a(f'v_cmp_ne_u32 vcc, 0, {acc}')
def poll(loads,fmt,pre=None):
    if pre is None: pre=P['PRESPIN']
    def loop(ls):
        L=a.newl(); D=a.newl(); a.label(L)
        for g,t in ls: a(t)
        a('s_waitcnt vmcnt(0)')
        chk([g for g,t in ls],fmt)
        a(f's_cbranch_vccz {D}'); budget()
        if P['SLEEP']: a(f's_sleep {P["SLEEP"]}')
        a(f's_branch {L}'); a.label(D)
    if len(loads)>1 and pre: loop(loads[-1:]); loop(loads[:-1])
    else: loop(loads)
def ld(g,va,so,off=0): return (g,f'buffer_load_dwordx4 {v(g,4)}, {va}, s[36:39], {so} offen offset:{off} sc1')
def mask(g,n=4):
    for i in range(n): a(f'v_and_b32 v{g+i}, v7, v{g+i}')
DP=['quad_perm:[1,0,3,2]','quad_perm:[2,3,0,1]','row_half_mirror','row_mirror']
def dppred(regs,steps,op='add'):
    for s_ in steps:
        for r in regs: a(f'v_{op}_f32_dpp v{r}, v{r}, v{r} {DP[s_]} row_mask:0xf bank_mask:0xf')
def swapred(regs,tmp,op='add',which=(16,32)):
    for w_ in which:
        for i,r in enumerate(regs): a(f'v_mov_b32 v{tmp+i}, v{r}')
        for i,r in enumerate(regs): a(f'v_permlane{w_}_swap_b32 v{r}, v{tmp+i}')
        for i,r in enumerate(regs): a(f'v_{op}_f32 v{r}, v{r}, v{tmp+i}')
def rnd(regs,tmp):
    for i in range(0,len(regs),2): a(f'v_cvt_pk_bf16_f32 v{tmp+i//2}, v{regs[i]}, v{regs[i+1]}')
    for i in range(0,len(regs),2): a(f'v_lshlrev_b32 v{regs[i]}, 16, v{tmp+i//2}\nv_and_b32 v{regs[i+1]}, s48, v{tmp+i//2}')
def rnd1(r): a(f'v_cvt_pk_bf16_f32 v{r}, v{r}, v{r}\nv_and_b32 v{r}, s48, v{r}')
def dup(dst,src):
    for i in range(4): a(f'v_cvt_pk_bf16_f32 v{dst+i}, v{src+i}, v{src+i}')
def unpk(dst,src,n):
    for i in reversed(range(n)): a(f'v_and_b32 v{dst+2*i+1}, s48, v{src+i}\nv_lshlrev_b32 v{dst+2*i}, 16, v{src+i}')
def gemv(hh,wt,first=True):
    for t in range(4):
        A=48+4*(t&1)
        for q in range(4): a(f'v_and_b32 v{A+q}, v{hh+t}, v{3+q}')
        a(f'v_mfma_f32_16x16x32_bf16 v[44:47], {v(A,4)}, {v(wt+4*t,4)}, {"0" if first and t==0 else "v[44:47]"}')
def rdw(dst,base):
    for t in range(4): a(f'ds_read_b128 {v(dst+4*t,4)}, v12 offset:{1024*t}')
def reduce(buf,cnt,n,form,skip,mid=None,ns=8):
    a(f's_mov_b64 exec, s[52:53]\nds_write_b128 v8, v[44:47] offset:{buf-RED0}')
    if mid: a.label(mid)
    a(f'''s_waitcnt lgkmcnt(0)
    s_mov_b64 exec, 1
    ds_add_rtn_u32 v14, v15, v162 offset:{cnt-FL}
    s_mov_b64 exec, -1
    s_waitcnt lgkmcnt(0)
    v_readfirstlane_b32 s50, v14
    s_cmp_lg_u32 s50, {n-1}
    s_cbranch_scc1 {skip}''')
    if form=='A':
        a(f'v_lshlrev_b32 v12, 2, v1\nv_add_u32 v12, {buf}, v12')
        for i in range(ns): a(f'ds_read2st64_b32 {v(96+2*i,2)}, v12 offset0:{2*i} offset1:{2*i+1}')
        a('s_waitcnt lgkmcnt(0)')
        m=2*ns
        while m>2:
            m//=2
            for i in range(0,m,2): a(f'v_pk_add_f32 {v(96+i,2)}, {v(96+i,2)}, {v(96+m+i,2)}')
        a('v_add_f32 v44, v96, v97\nv_mov_b32 v45, s5\nv_mov_b32 v47, s5\nv_lshlrev_b32 v12, 3, v1\nv_mov_b32_dpp v46, v44 quad_perm:[1,0,3,2] row_mask:0xf bank_mask:0xf')
    else:
        for k in range(4): a(f'ds_read_b128 {v(96+4*k,4)}, v10 offset:{buf-RED0+256*k}')
        a('s_waitcnt lgkmcnt(0)')
        a('v_pk_add_f32 v[96:97], v[96:97], v[100:101]\nv_pk_add_f32 v[98:99], v[98:99], v[102:103]')
        a('v_pk_add_f32 v[104:105], v[104:105], v[108:109]\nv_pk_add_f32 v[106:107], v[106:107], v[110:111]')
        a('v_pk_add_f32 v[44:45], v[96:97], v[104:105]\nv_pk_add_f32 v[46:47], v[98:99], v[106:107]')
        swapred([44,45,46,47],96)
def pub24(g,va,so,ex,n=4):
    a(f's_mov_b64 exec, {ex}\nbuffer_store_dwordx{n} {v(g,n)}, {va}, s[36:39], {so} offen sc1\ns_mov_b64 exec, -1')
def stats(X):
    a(f'v_pk_add_f32 v[56:57], {v(X,2)}, {v(X+2,2)}\nv_pk_add_f32 v[58:59], {v(X+4,2)}, {v(X+6,2)}')
    a(f'v_pk_add_f32 v[56:57], v[56:57], {v(X+8,2)}\nv_pk_add_f32 v[58:59], v[58:59], {v(X+10,2)}')
    a(f'v_pk_add_f32 v[56:57], v[56:57], {v(X+12,2)}\nv_pk_add_f32 v[58:59], v[58:59], {v(X+14,2)}')
    a('v_pk_add_f32 v[56:57], v[56:57], v[58:59]\nv_add_f32 v60, v56, v57')
    dppred([60],[0,1,2,3]); swapred([60],62)
    a(f'v_mul_f32 v60, {f2u(-1/1024)}, v60')
    for i in range(0,16,2): a(f'v_pk_add_f32 {v(X+i,2)}, {v(X+i,2)}, v[60:61] op_sel_hi:[1,0]')
    a(f'v_pk_mul_f32 v[56:57], {v(X,2)}, {v(X,2)}\nv_pk_mul_f32 v[58:59], {v(X+2,2)}, {v(X+2,2)}')
    for i in range(4,16,2): a(f'v_pk_fma_f32 {v(56+(i&2),2)}, {v(X+i,2)}, {v(X+i,2)}, {v(56+(i&2),2)}')
    a('v_pk_add_f32 v[56:57], v[56:57], v[58:59]\nv_add_f32 v61, v56, v57')
    dppred([61],[0,1,2,3]); swapred([61],62)
    a(f'v_mul_f32 v61, {f2u(1/1024)}, v61\nv_sub_f32 v60, 0, v60')
    rnd([60,61],62); a(f'v_add_f32 v61, {f2u(1e-5)}, v61'); rnd1(61); a('v_sqrt_f32 v61, v61'); rnd1(61); a('v_rcp_f32 v61, v61')
def norm(X,n,tmp):
    R=list(range(X,X+n))
    for r in R: a(f'v_sub_f32 v{r}, v{r}, v60')
    rnd(R,tmp)
    for r in R: a(f'v_mul_f32 v{r}, v{r}, v61')
    rnd(R,tmp)
def sigm(X,Y,n):
    for i in range(n): a(f'v_exp_f32 v{Y+i}, v{Y+i}')
    for i in range(n): a(f'v_add_f32 v{Y+i}, 1.0, v{Y+i}')
    for i in range(n): a(f'v_rcp_f32 v{Y+i}, v{Y+i}')
    for i in range(n): a(f'v_mul_f32 v{X+i}, v{X+i}, v{Y+i}')
def silu(dst,src):
    unpk(56,src,2)
    for i in range(4): a(f'v_mul_f32 v{60+i}, {f2u(-1.4426950408889634)}, v{56+i}')
    sigm(56,60,4); dup(dst,56)

a('''s_cmp_ge_u32 s2, 256
s_cbranch_scc1 EXIT
s_load_dwordx16 s[8:23], s[0:1], 0
s_load_dwordx8 s[24:31], s[0:1], 64
s_load_dwordx4 s[32:35], s[0:1], 96
v_lshrrev_b32 v2, 6, v0
v_and_b32 v1, 63, v0
s_and_b32 s3, s2, 7
s_lshl_b32 s3, s3, 5
s_lshr_b32 s6, s2, 3
s_add_u32 s3, s3, s6
v_readfirstlane_b32 s4, v2
v_lshrrev_b32 v2, 3, v1
v_and_b32 v9, 7, v1
v_lshlrev_b32 v9, 4, v9
s_mov_b32 s49, 0x200000
s_and_b32 s54, s3, 63
s_lshr_b32 s55, s3, 6
s_and_b32 s56, s3, 15
s_lshr_b32 s57, s3, 4
s_cmp_ge_u32 s3, 112
s_cselect_b32 s58, 1, 0
s_mul_i32 s6, s58, 112
s_sub_u32 s60, s3, s6
s_cmp_ge_u32 s60, 56
s_cselect_b32 s59, 1, 0
s_mul_i32 s6, s59, 56
s_sub_u32 s60, s60, s6
v_mov_b32 v15, %d
v_mov_b32 v162, 1
v_mov_b32 v126, 0
v_mov_b32 v14, 0
v_lshl_add_u32 v12, v1, 2, v15
s_mov_b64 exec, 0xffff
ds_write_b32 v12, v14
s_mov_b64 exec, -1
s_waitcnt lgkmcnt(0)
s_cmp_eq_u32 s4, 8
s_cbranch_scc1 LOADER'''%FL)
stamp(29)
a('''s_lshl_b32 s61, s4, 5
s_lshr_b32 s6, s3, 5
s_lshl_b32 s6, s6, 7
s_add_u32 s62, s6, s61
s_lshl_b32 s6, s55, 8
s_add_u32 s63, s6, s61
v_mul_u32_u24 v12, 49152, v2
v_add_u32 v12, v12, v9
s_mul_i32 s64, s62, 12288
s_and_b32 s6, s3, 31
s_lshl_b32 s6, s6, 7
s_add_u32 s64, s64, s6
v_lshlrev_b32 v13, 3, v2
v_lshlrev_b32 v14, 5, v1
s_lshl_b32 s65, s62, 1
s_lshl_b32 s66, s63, 1
s_load_dword s5, s[34:35], 0''')
srd(40,28,12582912)
a('s_cmp_ge_u32 s4, 4\ns_cbranch_scc1 NOP1LD')
for t in range(4): a(f'buffer_load_dwordx4 {v(64+4*t,4)}, v12, s[40:43], s64 offen{P["NT"]}\ns_add_u32 s64, s64, 12288')
a.label('NOP1LD')
srd(40,26,2048)
a('buffer_load_dwordx2 v[20:21], v13, s[40:43], s65 offen\nbuffer_load_dwordx2 v[22:23], v13, s[40:43], s66 offen')
srd(40,8,2048)
a('''buffer_load_dwordx2 v[24:25], v13, s[40:43], s66 offen
buffer_load_dwordx4 v[136:139], v14, s[40:43], 0 offen
buffer_load_dwordx4 v[140:143], v14, s[40:43], 0 offen offset:16
v_and_b32 v12, 15, v1
v_lshlrev_b32 v12, 4, v12
v_bfe_u32 v14, v1, 4, 1
v_lshl_add_u32 v12, v14, 3, v12
s_lshl_b32 s6, s4, 8
buffer_load_dwordx2 v[156:157], v12, s[40:43], s6 offen''')
srd(36,34,WSEND if not P['DIAG'] else DG+0x100000)
a(f'''s_barrier
s_mov_b32 s48, 0xffff0000
s_mov_b32 s82, 0x55555555
s_mov_b32 s83, s82
v_and_b32 v12, 1, v1
v_cmp_eq_u32 vcc, 1, v12
v_mov_b32 v13, 0xffff
v_mov_b32 v14, s48
v_cndmask_b32 v13, v13, v14, vcc
v_bfe_u32 v12, v1, 1, 2''')
for q in range(4): a(f'v_cmp_eq_u32 vcc, {q}, v12\nv_cndmask_b32 v{3+q}, 0, v13, vcc')
a(f'''v_lshrrev_b32 v12, 5, v1
v_lshlrev_b32 v8, 8, v12
v_lshl_add_u32 v8, v9, 1, v8
v_and_b32 v12, 16, v1
v_add_u32 v8, v8, v12
s_lshl_b32 s6, s4, 9
s_add_u32 s6, s6, {RED0}
v_add_u32 v8, s6, v8
v_and_b32 v163, 15, v1
v_lshlrev_b32 v163, 4, v163
v_lshrrev_b32 v164, 4, v1
v_lshl_add_u32 v10, v164, 10, v163
v_add_u32 v10, {RED0}, v10
s_lshl_b32 s6, s4, 12
v_lshlrev_b32 v11, 4, v1
v_add_u32 v11, s6, v11
s_mov_b32 s52, 0x00ff00ff
s_mov_b32 s53, 0xff00ff00
s_waitcnt lgkmcnt(0)
s_add_u32 s5, s5, 1
''')
for q in range(4): a(f'v_and_b32 v{156+2+q}, 0x3f803f80, v{3+q}')
stamp(0); stamp(30,'s_memtime')
a('s_cmp_ge_u32 s4, 4\ns_cbranch_scc1 CLEAR\ns_waitcnt vmcnt(5)')
silu(16,20)
stamp(1)
gemv(16,64)
reduce(RED0,C_P1,8,'A','P1DONE','P1MID',4)
a(f'''s_and_b32 s6, s3, 31
s_lshl_b32 s6, s6, 12
s_lshr_b32 s7, s3, 5
s_lshl_b32 s7, s7, 9
s_add_u32 s6, s6, s7
s_add_u32 s6, s6, {E1}
s_mov_b64 exec, s[82:83]
buffer_store_dwordx4 v[44:47], v12, s[36:39], s6 offen sc1
s_mov_b64 exec, -1''')
stamp(2)
a.label('P1DONE')
a('s_waitcnt vmcnt(1)')
silu(20,22)
unpk(104,136,8); unpk(16,24,2)
stats(104); norm(16,4,56)
landed(0); a(f'v_add_u32 v12, {R0}, v11'); rdw(64,0); arrive(F_FR0)
a(f'''s_lshr_b32 s6, s63, 6
s_lshl_b32 s6, s6, 12
s_and_b32 s7, s63, 63
s_lshl_b32 s7, s7, 3
s_add_u32 s6, s6, s7
s_add_u32 s6, s6, {E1}
s_add_u32 s7, s6, 65536
v_lshlrev_b32 v12, 5, v9
v_lshl_add_u32 v12, v2, 5, v12''')
stamp(3); stamp(21,'cnt')
poll([ld(96,'v12','s6'),ld(100,'v12','s6',16),ld(104,'v12','s7'),ld(108,'v12','s7',16)],8)
stamp(4); stamp(22,'cnt')
sa=[96,98,100,102]; ca=[104,106,108,110]
dppred(sa+ca,[0,1,2]); rnd(sa+ca,56)
for r in ca: a(f'v_add_f32 v{r}, 1.0, v{r}')
rnd(ca,56)
for i in range(4): a(f'v_mul_f32 v{16+i}, v{16+i}, v{ca[i]}')
rnd([16,17,18,19],56)
for i in range(4): a(f'v_add_f32 v{16+i}, v{16+i}, v{sa[i]}')
dup(56,16); gemv(56,64)
reduce(RED1,C_P2,8,'A','P2DONE')
a(f'''s_lshl_b32 s6, s54, 11
s_lshl_b32 s7, s55, 9
s_add_u32 s6, s6, s7
s_add_u32 s6, s6, {E2}
s_mov_b64 exec, s[82:83]
buffer_store_dwordx4 v[44:47], v12, s[36:39], s6 offen sc1
s_mov_b64 exec, -1''')
stamp(5)
a.label('P2DONE')
a('s_cmp_ge_u32 s4, 4\ns_cbranch_scc1 NOK')
landed(8)
a(f'''v_and_b32 v13, 15, v1
v_xor_b32 v12, v164, v13
v_lshlrev_b32 v12, 4, v12
v_lshl_add_u32 v12, v13, 8, v12
s_lshl_b32 s6, s4, 12
s_add_u32 s6, s6, {RK}
v_add_u32 v12, s6, v12''')
for s_ in range(4): a(f'v_xor_b32 v13, {64*s_}, v12\nds_read_b128 {v(136+4*s_,4)}, v13')
arrive(F_FR0)
a.label('NOK')
a('s_mov_b32 s50, 16'); landed('s50')
a(f'''v_bfe_u32 v12, v1, 2, 2
v_lshl_add_u32 v13, v164, 3, v12
v_and_b32 v14, 15, v13
v_bfe_u32 v12, v1, 1, 1
s_lshl_b32 s6, s4, 1
v_add_u32 v12, s6, v12
v_xor_b32 v12, v12, v14
v_lshlrev_b32 v12, 4, v12
v_lshl_add_u32 v12, v13, 8, v12
v_and_b32 v13, 1, v1
v_lshl_add_u32 v12, v13, 3, v12
v_add_u32 v12, {RV}, v12
v_xor_b32 v13, 64, v12
ds_read_b64_tr_b16 v[128:129], v12
ds_read_b64_tr_b16 v[130:131], v13 offset:1024
ds_read_b64_tr_b16 v[132:133], v12 offset:8192
ds_read_b64_tr_b16 v[134:135], v13 offset:9216
s_lshl_b32 s6, s55, 15
s_lshl_b32 s7, s4, 12
s_add_u32 s6, s6, s7
s_add_u32 s6, s6, {E2}
v_and_b32 v13, 31, v1
v_lshlrev_b32 v13, 4, v13
v_lshrrev_b32 v12, 5, v1
v_lshl_add_u32 v12, v12, 11, v13''')
stamp(6); stamp(23,'cnt')
poll([ld(96+4*k,'v12','s6',512*k) for k in range(4)],8)
stamp(7); stamp(24,'cnt')
a(f'''v_add_f32 v96, v96, v100
v_add_f32 v98, v98, v102
v_add_f32 v104, v104, v108
v_add_f32 v106, v106, v110
v_add_f32 v96, v96, v104
v_add_f32 v98, v98, v106
s_mul_i32 s6, s4, 272
s_add_u32 s6, s6, {QL}
v_lshl_add_u32 v12, v1, 2, s6
v_cvt_pk_bf16_f32 v96, v96, v98
ds_write_b32 v12, v96''')
arrive(C_Q)
a(f'''v_and_b32 v13, 7, v1
v_mul_u32_u24 v13, 272, v13
s_cmp_ge_u32 s4, 4
s_cbranch_scc1 NOQK
v_lshl_add_u32 v12, v164, 4, v13
v_add_u32 v12, {QL}, v12''')
spin(C_Q,8)
for s_ in range(4): a(f'ds_read_b128 {v(96+4*s_,4)}, v12 offset:{64*s_}')
for s_ in range(4): a(f's_waitcnt lgkmcnt({3-s_})\nv_mfma_f32_16x16x32_bf16 v[44:47], {v(136+4*s_,4)}, {v(96+4*s_,4)}, {"0" if s_==0 else "v[44:47]"}')
a(f's_lshl_b32 s6, s4, 6\ns_add_u32 s6, s6, {SC-QL}\nv_add_u32 v12, s6, v12')
rnd([44,45,46,47],56)
for i in range(4): a(f'v_mul_f32 v{44+i}, 0x3db504f3, v{44+i}')
rnd([44,45,46,47],56)
a('s_mov_b32 exec_lo, s52\ns_mov_b32 exec_hi, s52\nds_write_b128 v12, v[44:47]\ns_mov_b64 exec, -1')
arrive(C_S)
a.label('NOQK')
a(f'v_lshl_add_u32 v12, v164, 5, v13\nv_add_u32 v12, {SC}, v12')
spin(C_S,4)
for i,o in enumerate([0,16,128,144]): a(f'ds_read_b128 {v(96+4*i,4)}, v12 offset:{o}')
a('s_waitcnt lgkmcnt(0)\nv_max3_f32 v56, v96, v97, v98')
for i in range(99,111,2): a(f'v_max3_f32 v56, v56, v{i}, v{i+1}')
a('v_max_f32 v56, v56, v111'); swapred([56],58,'max')
a(f'v_mul_f32 v57, {f2u(-1.4426950408889634)}, v56\ns_mov_b32 s6, 0x3fb8aa3b')
for i in range(96,112): a(f'v_fma_f32 v{i}, v{i}, s6, v57')
for i in range(96,112): a(f'v_exp_f32 v{i}, v{i}')
for i in range(8): a(f'v_cvt_pk_bf16_f32 v{112+i}, v{96+2*i}, v{97+2*i}')
a('v_mfma_f32_16x16x32_bf16 v[44:47], v[128:131], v[112:115], 0\nv_mfma_f32_16x16x32_bf16 v[44:47], v[132:135], v[116:119], v[44:47]')
a(f'''s_lshl_b32 s6, s55, 17
s_lshl_b32 s7, s54, 7
s_add_u32 s6, s6, s7
s_lshr_b32 s7, s4, 2
s_lshl_b32 s7, s7, 13
s_add_u32 s6, s6, s7
s_and_b32 s7, s4, 3
s_lshl_b32 s7, s7, 5
s_add_u32 s6, s6, s7
s_add_u32 s6, s6, {E3O}
v_lshlrev_b32 v12, 10, v9
v_lshl_add_u32 v12, v164, 3, v12
s_mov_b32 s50, 0xff
s_mov_b32 s51, 0xff
v_cvt_pk_bf16_f32 v44, v44, v45
v_cvt_pk_bf16_f32 v45, v46, v47
v_mov_b32 v46, v44
v_mov_b32 v47, v45
v_permlane16_swap_b32 v44, v46
v_permlane16_swap_b32 v45, v47''')
pub24(44,'v12','s6','s[50:51]')
a('s_cmp_lg_u32 s4, 0\ns_cbranch_scc1 NOML')
for m in (8,4,2):
    for i in range(0,m,2): a(f'v_pk_add_f32 {v(96+i,2)}, {v(96+i,2)}, {v(96+m+i,2)}')
a('v_add_f32 v57, v96, v97'); swapred([57],58)
a(f'''s_lshl_b32 s6, s55, 12
s_lshl_b32 s7, s54, 3
s_add_u32 s6, s6, s7
s_add_u32 s6, s6, {E3M}
v_lshlrev_b32 v12, 9, v1''')
pub24(56,'v12','s6','0xff',2)
a.label('NOML')
stamp(8)
landed(16); a(f'v_add_u32 v12, {R2}, v11'); rdw(64,0); arrive(F_FR2); gemv(20,64)
reduce(RED0,C_M2,8,'B','M2DONE')
a(f's_lshl_b32 s6, s55, 14\ns_lshl_b32 s7, s54, 8\ns_add_u32 s6, s6, s7\ns_add_u32 s6, s6, {M2}')
pub24(44,'v163','s6','0xffff')
a.label('M2DONE')
stamp(9)
def e4addr(): a(f's_lshr_b32 s6, s56, 1\ns_lshl_b32 s6, s6, 12\ns_lshl_b32 s7, s57, 8\ns_add_u32 s6, s6, s7\ns_and_b32 s7, s56, 1\ns_lshl_b32 s7, s7, 7\ns_add_u32 s6, s6, s7\ns_add_u32 s64, s6, {E4}\ns_mov_b32 s6, s64')
def e5addr(): a(f's_lshl_b32 s6, s59, 1\ns_add_u32 s6, s6, s58\ns_mul_i32 s6, s6, 14336\ns_lshl_b32 s7, s60, 8\ns_add_u32 s6, s6, s7\ns_add_u32 s6, s6, {E5}')
R8='row_ror:8 row_mask:0xf bank_mask:0xf'
landed(24); a(f'v_add_u32 v12, {R3}, v11'); rdw(64,0)
e4addr()
a(f'''s_and_b32 s6, s4, 3
s_lshl_b32 s7, s57, 2
s_add_u32 s6, s6, s7
s_lshr_b32 s7, s6, 1
s_lshl_b32 s7, s7, 9
s_add_u32 s72, s7, {E3M}
s_lshr_b32 s7, s4, 2
v_and_b32 v13, 1, v1
v_xor_b32 v13, s7, v13
v_lshlrev_b32 v13, 8, v13
v_lshl_add_u32 v13, v2, 5, v13
s_lshl_b32 s6, s6, 1
s_add_u32 s6, s6, s7
s_lshl_b32 s6, s6, 12
s_add_u32 s65, s6, {E3O}
v_lshl_add_u32 v12, v2, 9, v9
s_lshr_b32 s6, s4, 1
s_lshl_b32 s6, s6, 9
s_and_b32 s7, s4, 1
s_lshl_b32 s7, s7, 7
s_add_u32 s6, s6, s7
s_add_u32 s6, s6, {RED1}
v_lshl_add_u32 v166, v2, 4, s6
s_lshl_b32 s66, s56, 8
s_add_u32 s66, s66, {M2}
v_lshl_add_u32 v167, v164, 14, v163''')
stamp(10); stamp(25,'cnt')
poll([ld(96+4*t,'v12','s65',128*t) for t in range(4)]+[ld(112,'v13','s72'),ld(116,'v13','s72',16)],0,P['PRE3'])
stamp(11); stamp(26,'cnt')
GA=ld(24,'v167','s66'); a(GA[1])
a(f'v_max3_f32 v58, v112, v114, v116\nv_max_f32 v58, v58, v118'); dppred([58],[0],'max'); a(f'v_max_f32_dpp v58, v58, v58 {R8}'); swapred([58],59,'max')
a(f'v_mul_f32 v58, {f2u(-1.4426950408889634)}, v58\ns_mov_b32 s6, 0x3fb8aa3b')
for t in range(4): a(f'v_fma_f32 v{60+t}, v{112+2*t}, s6, v58')
for t in range(4): a(f'v_exp_f32 v{60+t}, v{60+t}')
dup(60,60)
for t in range(4): a(f'v_mov_b32_dpp v{56+t}, v{60+t} quad_perm:[0,0,2,2] row_mask:0xf bank_mask:0xf')
gemv(56,96)
for t in range(4): a(f'v_and_b32 v{60+t}, s48, v{60+t}')
a('v_mul_f32 v57, v60, v113\nv_fmac_f32 v57, v61, v115\nv_fmac_f32 v57, v62, v117\nv_fmac_f32 v57, v63, v119')
dppred([57],[0]); a(f'v_add_f32_dpp v57, v57, v57 {R8}'); swapred([57],59); a('v_rcp_f32 v57, v57')
for i in range(4): a(f'v_mul_f32 v{44+i}, v{44+i}, v57')
a(f's_mov_b64 exec, s[52:53]\nds_write_b128 v8, v[44:47] offset:{RED1-RED0}'); arrive(C_O); spin(C_O,8)
for i,o in enumerate([0,256,2048,2304]): a(f'ds_read_b128 {v(96+4*i,4)}, v166 offset:{o}')
a('''s_waitcnt lgkmcnt(2)
v_pk_add_f32 v[96:97], v[96:97], v[100:101]
v_pk_add_f32 v[98:99], v[98:99], v[102:103]
s_waitcnt lgkmcnt(0)
v_pk_add_f32 v[104:105], v[104:105], v[108:109]
v_pk_add_f32 v[106:107], v[106:107], v[110:111]
v_pk_add_f32 v[96:97], v[96:97], v[104:105]
v_pk_add_f32 v[98:99], v[98:99], v[106:107]''')
dup(56,96); gemv(56,64)
a('s_waitcnt vmcnt(0)'); chk([24],0); a('s_cbranch_vccz GADONE'); poll([GA],0); a.label('GADONE')
swapred([24,25,26,27],96); rnd([24,25,26,27],96)
reduce(RED0,C_P4,8,'B','P4DONE')
a('''v_pk_mul_f32 v[44:45], v[44:45], v[24:25]
v_pk_mul_f32 v[46:47], v[46:47], v[26:27]
v_lshrrev_b32 v12, 1, v163
v_cvt_pk_bf16_f32 v44, v44, v45
v_cvt_pk_bf16_f32 v45, v46, v47
v_mov_b32_dpp v46, v44 quad_perm:[1,0,3,2] row_mask:0xf bank_mask:0xf
v_mov_b32_dpp v47, v45 quad_perm:[1,0,3,2] row_mask:0xf bank_mask:0xf''')
pub24(44,'v12','s64','0x5555')
stamp(12)
a.label('P4DONE')
a(f'''s_cmp_ge_u32 s3, 224
s_cbranch_scc1 P5DONE
s_lshl_b32 s62, s58, 9
s_lshl_b32 s6, s4, 6
s_add_u32 s62, s62, s6
s_lshl_b32 s62, s62, 2
s_add_u32 s6, s62, {M2+4096}
v_and_b32 v12, 3, v1
v_lshlrev_b32 v12, 14, v12
v_bfe_u32 v13, v1, 2, 1
v_lshl_add_u32 v12, v13, 12, v12
v_lshl_add_u32 v12, v2, 4, v12''')
poll([ld(28,'v12','s6'),ld(32,'v12','s6',128)],0,0)
unpk(152,156,2); dppred(list(range(28,36)),[0,1]); rnd(list(range(28,36)),56)
a('v_cmp_eq_u32 vcc, 1, v13')
for i in range(8): a(f'v_mov_b32_dpp v{96+i}, v{28+i} row_half_mirror row_mask:0xf bank_mask:0xf')
for i in range(8): a(f'v_cndmask_b32 v{36+i}, v{28+i}, v{96+i}, vcc\nv_cndmask_b32 v{28+i}, v{96+i}, v{28+i}, vcc')
for i in range(8): a(f'v_add_f32 v{28+i}, 1.0, v{28+i}')
rnd(list(range(28,36)),56)
e5addr()
a(f'''s_mov_b32 s64, s6
s_lshl_b32 s6, s4, 9
s_add_u32 s6, s6, {X2}
v_lshl_add_u32 v166, v163, 1, s6
v_lshl_add_u32 v166, v164, 4, v166
s_add_u32 s6, s62, {X2}
v_lshl_add_u32 v13, v2, 4, s6
v_lshlrev_b32 v12, 4, v1
v_add_u32 v167, {X2}, v12
s_lshl_b32 s51, s4, 1
s_add_u32 s51, s51, 34
s_lshl_b32 s6, s4, 12
v_add_u32 v16, s6, v11
s_add_u32 s6, s6, {E4}
ds_read_b32 v14, v15
s_waitcnt lgkmcnt(0)
v_cmp_gt_i32 vcc, s51, v14
s_mov_b32 s65, 0
s_cbranch_vccnz NOEARLY
s_mov_b32 s65, 1''')
for t in range(8): a(f'ds_read_b128 {v(64+4*t,4)}, v16 offset:{1024*t}')
a.label('NOEARLY')
stamp(13); stamp(27,'cnt')
poll([ld(96+4*n,'v12','s6',1024*n) for n in range(4)],0,P['PRE4'])
stamp(14); stamp(28,'cnt')
for n in range(4): a(f'v_mfma_f32_16x16x32_bf16 v[44:47], v[158:161], {v(96+4*n,4)}, {"v[152:155]" if n==0 else "v[44:47]"}')
a('s_mov_b32 exec_hi, 0\nds_write_b128 v166, v[44:47]')
arrive(C_X); spin(C_X,8)
a('ds_read_b32 v60, v15 offset:%d'%(X2-FL))
for i in range(4): a(f'ds_read_b128 {v(96+4*i,4)}, v167 offset:{1024*i}')
a('ds_read_b128 v[112:115], v13\nds_read_b128 v[116:119], v13 offset:128\ns_waitcnt lgkmcnt(5)')
for i in range(0,16,2):
    if i in (4,8,12): a(f's_waitcnt lgkmcnt({5-i//4})')
    a(f'v_pk_add_f32 {v(96+i,2)}, {v(96+i,2)}, v[60:61] op_sel_hi:[1,0] neg_lo:[0,1] neg_hi:[0,1]')
a('v_pk_add_f32 v[56:57], v[96:97], v[98:99]\nv_pk_mul_f32 v[58:59], v[96:97], v[96:97]\nv_pk_fma_f32 v[58:59], v[98:99], v[98:99], v[58:59]')
for i in range(4,16,2): a(f'v_pk_add_f32 v[56:57], v[56:57], {v(96+i,2)}\nv_pk_fma_f32 v[58:59], {v(96+i,2)}, {v(96+i,2)}, v[58:59]')
a('v_add_f32 v56, v56, v57\nv_add_f32 v57, v58, v59')
dppred([56,57],[0,1,2,3]); swapred([56,57],58)
a(f'''v_mul_f32 v56, {f2u(1/1024)}, v56
v_mul_f32 v57, {f2u(1/1024)}, v57
v_fma_f32 v57, -v56, v56, v57
v_add_f32 v60, v60, v56
v_add_f32 v57, {f2u(1e-5)}, v57
v_rsq_f32 v58, v57
s_waitcnt lgkmcnt(0)''')
for i in range(0,8,2): a(f'v_pk_add_f32 {v(112+i,2)}, {v(112+i,2)}, v[60:61] op_sel_hi:[1,0] neg_lo:[0,1] neg_hi:[0,1]')
for i in range(0,8,2): a(f'v_pk_mul_f32 {v(28+i,2)}, {v(28+i,2)}, v[58:59] op_sel_hi:[1,0]')
for i in range(0,8,2): a(f'v_pk_fma_f32 {v(112+i,2)}, {v(112+i,2)}, {v(28+i,2)}, {v(36+i,2)}')
dup(56,112); dup(60,116)
a('s_cmp_eq_u32 s65, 1\ns_cbranch_scc1 EARLY'); landed('s51')
for t in range(8): a(f'ds_read_b128 {v(64+4*t,4)}, v16 offset:{1024*t}')
a('s_waitcnt lgkmcnt(0)')
a.label('EARLY')
stamp(15)
gemv(56,64); gemv(60,80,False)
reduce(RED0,C_P5,8,'B','P5DONE')
pub24(44,'v163','s64','0xffff')
stamp(16)
a.label('P5DONE')
a(f'v_subrev_u32 v8, {RED0-RV}, v8\nv_subrev_u32 v10, {RED0-RV}, v10')
a('v_mov_b32 v44, 0\nv_mov_b32 v45, 0\nv_mov_b32 v46, 0\nv_mov_b32 v47, 0\ns_cmp_eq_u32 s4, 7\ns_cbranch_scc1 P6RED')
landed(48); a(f'v_add_u32 v12, {R2}, v11'); rdw(64,0)
a(f'''s_mul_i32 s6, s57, 896
s_lshl_b32 s7, s4, 7
s_add_u32 s6, s6, s7
s_add_u32 s6, s6, {E5}
v_and_b32 v13, 3, v1
v_mul_u32_u24 v12, 14336, v13
v_lshl_add_u32 v12, v2, 4, v12''')
stamp(17)
poll([ld(96,'v12','s6')],0)
stamp(18)
dppred([96,97,98,99],[0])
a('v_cmp_lt_u32 vcc, 1, v13')
for i in range(4): a(f'v_mov_b32_dpp v{100+i}, v{96+i} quad_perm:[2,3,0,1] row_mask:0xf bank_mask:0xf')
for i in range(4): a(f'v_cndmask_b32 v{104+i}, v{96+i}, v{100+i}, vcc\nv_cndmask_b32 v{108+i}, v{100+i}, v{96+i}, vcc')
c1=2*0.7978845608028654*1.4426950408889634
a(f's_mov_b32 s6, {f2u(-c1*0.044715)}\nv_mov_b32 v100, {f2u(-c1)}')
for i in range(4): a(f'v_mul_f32 v{96+i}, v{104+i}, v{104+i}')
for i in range(4): a(f'v_fma_f32 v{96+i}, v{96+i}, s6, v100')
for i in range(4): a(f'v_mul_f32 v{96+i}, v{96+i}, v{104+i}')
sigm(104,96,4)
for i in range(4): a(f'v_mul_f32 v{104+i}, v{104+i}, v{108+i}')
dup(56,104); a('s_waitcnt lgkmcnt(0)'); gemv(56,64)
a.label('P6RED')
reduce(RED0,C_P6,8,'B','P6DONE')
a(f's_lshl_b32 s6, s57, 12\ns_lshl_b32 s7, s56, 8\ns_add_u32 s6, s6, s7\ns_add_u32 s6, s6, {E6}')
pub24(44,'v163','s6','0xffff')
stamp(19)
a.label('P6DONE')
a(f'''s_cmp_lg_u32 s4, 7
s_cbranch_scc1 TIMEOUT
s_cmp_ge_u32 s3, 64
s_cbranch_scc1 TIMEOUT
s_lshl_b32 s62, s3, 6
s_add_u32 s6, s62, {M2+12288}
v_and_b32 v12, 3, v1
v_lshlrev_b32 v12, 14, v12
v_lshl_add_u32 v12, v164, 4, v12
s_add_u32 s7, s62, {X2}
v_lshl_add_u32 v13, v164, 4, s7
ds_read_b128 v[28:31], v13''')
poll([ld(24,'v12','s6')],0)
dppred([24,25,26,27],[0,1]); rnd([24,25,26,27],56)
a(f's_add_u32 s6, s62, {E6}\nv_lshlrev_b32 v12, 8, v163\nv_lshl_add_u32 v12, v164, 4, v12')
srd(40,30,2048)
a('s_waitcnt lgkmcnt(0)'); poll([ld(96,'v12','s6')],0)
dppred([96,97,98,99],[0,1,2,3])
for i in range(4): a(f'v_fma_f32 v{96+i}, v{96+i}, v{24+i}, v{28+i}')
a('''v_cvt_pk_bf16_f32 v96, v96, v97
v_cvt_pk_bf16_f32 v97, v98, v99
v_lshlrev_b32 v12, 3, v164
s_lshl_b32 s6, s3, 5
s_mov_b32 exec_lo, 0x10001
s_mov_b32 exec_hi, 0x10001
buffer_store_dwordx2 v[96:97], v12, s[40:43], s6 offen''')
stamp(20); stamp(31,'s_memtime')
a('''s_cmp_lg_u32 s3, 0
s_cbranch_scc1 TIMEOUT
s_mov_b64 exec, 1
v_mov_b32 v12, 0
v_mov_b32 v13, s5
buffer_store_dword v13, v12, s[36:39], 0 offen sc1
TIMEOUT:''')
flush()
a('EXIT:\ns_endpgm')
a.label('CLEAR')
a(f'''v_mov_b32 v44, -1
v_mov_b32 v45, -1
v_mov_b32 v46, -1
v_mov_b32 v47, -1
s_cmp_eq_u32 s4, 4
s_cbranch_scc0 CLR5
s_lshl_b32 s6, s55, 17
s_lshl_b32 s7, s54, 7
s_add_u32 s6, s6, s7
s_add_u32 s6, s6, {E3O}
s_add_u32 s7, s6, 65536
v_lshl_add_u32 v12, v2, 13, v9
buffer_store_dwordx4 v[44:47], v12, s[36:39], s6 offen sc1
buffer_store_dwordx4 v[44:47], v12, s[36:39], s7 offen sc1
s_branch CLRD
CLR5:
s_cmp_eq_u32 s4, 5
s_cbranch_scc0 CLR6
s_lshl_b32 s6, s55, 12
s_lshl_b32 s7, s54, 3
s_add_u32 s6, s6, s7
s_add_u32 s6, s6, {E3M}
v_lshlrev_b32 v12, 9, v1''')
pub24(44,'v12','s6','0xff',2)
a(f's_lshl_b32 s6, s55, 14\ns_lshl_b32 s7, s54, 8\ns_add_u32 s6, s6, s7\ns_add_u32 s6, s6, {M2}')
pub24(44,'v163','s6','0xffff')
a('s_branch CLRD\nCLR6:\ns_cmp_eq_u32 s4, 6\ns_cbranch_scc0 CLR7')
e4addr(); pub24(44,'v163','s6','0xff')
a(f's_lshl_b32 s6, s57, 12\ns_lshl_b32 s7, s56, 8\ns_add_u32 s6, s6, s7\ns_add_u32 s6, s6, {E6}')
pub24(44,'v163','s6','0xffff')
a('s_branch CLRD\nCLR7:\ns_cmp_ge_u32 s3, 224\ns_cbranch_scc1 CLRD')
e5addr(); pub24(44,'v163','s6','0xffff')
a('CLRD:\ns_waitcnt vmcnt(0)\ns_branch P1MID')
a.label('LOADER')
def stream(ptr,nbytes,vo,S,BS,nblk,lds,N,flag=True):
    srd(40,ptr,nbytes)
    a(f's_mov_b32 m0, {lds}\ns_add_u32 s51, s50, {nblk}')
    L=a.newl(); a.label(L)
    for t in range(4):
        a(f'buffer_load_dwordx4 {vo[t]}, s[40:43], s6 offen{P["NT"]} lds\ns_add_u32 m0, m0, 0x400\ns_add_u32 s6, s6, {S if t<3 else BS-3*S}')
    a('s_add_u32 s50, s50, 1')
    if flag: a(f's_sub_u32 s7, s50, {N//4}\nv_mov_b32 v14, s7\ns_waitcnt vmcnt({N})\nds_max_i32 v15, v14')
    a(f's_cmp_lt_u32 s50, s51\ns_cbranch_scc1 {L}')
def drain(N):
    for k in range(N-4,-1,-4): a(f's_sub_u32 s7, s50, {k//4}\nv_mov_b32 v14, s7\ns_waitcnt vmcnt({k})\nds_max_i32 v15, v14')
def waitfree(addr,n,N):
    D=a.newl()
    a(f'ds_read_b32 v14, v15 offset:{addr-FL}\ns_waitcnt lgkmcnt(0)\nv_cmp_gt_i32 vcc, {n}, v14\ns_cbranch_vccz {D}')
    drain(N); spin(addr,n); a.label(D)
a('''v_lshl_add_u32 v3, v2, 15, v9
s_lshl_b32 s6, s55, 21
s_lshl_b32 s7, s54, 7
s_add_u32 s6, s6, s7
s_mov_b32 s50, 0''')
stream(14,8388608,['v3']*4,8192,32*8192,8,R0,32,False)
a('''v_lshrrev_b32 v4, 4, v1
v_and_b32 v5, 15, v1
v_xor_b32 v5, v5, v4
v_lshlrev_b32 v5, 4, v5
v_lshl_add_u32 v4, v4, 8, v5
v_xor_b32 v5, 64, v4
v_xor_b32 v6, 128, v4
v_xor_b32 v7, 192, v4
s_lshl_b32 s61, s55, 24
s_lshl_b32 s7, s54, 14
s_add_u32 s61, s61, s7
s_add_u32 s61, s61, %d
s_mov_b32 s6, s61
s_barrier'''%(61440*256))
if P['DIAG']: srd(36,34,DG+0x100000)
KV=['v4','v5','v6','v7']
stream(10,67108864,KV,1024,4096,4,RK,P['N0']); stamp(0)
a('s_mov_b32 s6, s61'); stream(12,67108864,KV,1024,4096,4,RV,P['N1']); stamp(1)
a('v_mul_u32_u24 v3, 49152, v2\nv_add_u32 v3, v3, v9\ns_mul_i32 s6, s55, 3145728\ns_lshl_b32 s7, s54, 7\ns_add_u32 s6, s6, s7\ns_add_u32 s6, s6, 4096')
stream(28,12582912,['v3']*4,12288,32*12288,8,R2,P['N1']); stamp(2)
a('v_lshl_add_u32 v8, v2, 13, v9\ns_lshl_b32 s6, s57, 19\ns_lshl_b32 s7, s56, 7\ns_add_u32 s6, s6, s7')
stream(16,8388608,['v8']*4,2048,32*2048,8,R3,P['N2']); stamp(3)
a('s_cmp_ge_u32 s3, 224\ns_cbranch_scc1 NOP5')
waitfree(F_FR0,12,P['N2'])
a('''v_mul_u32_u24 v3, 28672, v2
v_add_u32 v3, v3, v9
s_mul_i32 s6, s58, 3670016
s_lshl_b32 s7, s60, 7
s_add_u32 s6, s6, s7
s_cmp_eq_u32 s59, 1
s_cselect_b32 s62, s22, s20
s_cselect_b32 s63, s23, s21''')
stream(62,7340032,['v3']*4,7168,32*7168,16,R0,P['N3']); stamp(4)
a('s_branch YESP5'); a.label('NOP5'); drain(P['N2']); a('s_mov_b32 s50, 48'); a.label('YESP5')
waitfree(F_FR2,8,P['N3'])
a('s_mul_i32 s6, s57, 458752\ns_lshl_b32 s7, s56, 7\ns_add_u32 s6, s6, s7')
stream(24,7340032,['v8']*4,2048,32*2048,7,R2,P['N3'])
drain(P['N3']); stamp(5)
flush()
a('s_waitcnt lgkmcnt(0)\ns_endpgm')
ref=open('cdna_kernels/'+NAME+'.s.ref').read()
head=ref[:ref.index('; Override launch')]
txt=head+('; DIAG\n' if P['DIAG'] else '')+f'''; @launch grid=(256,1,1) block=(576,1,1) lds={LDSZ}
.amdgcn_target "amdgcn-amd-amdhsa--gfx950"
.text
.globl {NAME}_kernel
.p2align 8
.type {NAME}_kernel,@function
{NAME}_kernel:
'''+a.text()+f'''.section .rodata,"a"
.p2align 6
.amdhsa_kernel {NAME}_kernel
  .amdhsa_next_free_vgpr %d
  .amdhsa_next_free_sgpr 96
  .amdhsa_accum_offset %d
  .amdhsa_group_segment_fixed_size 0
  .amdhsa_kernarg_size 112
  .amdhsa_user_sgpr_count 2
  .amdhsa_user_sgpr_kernarg_segment_ptr 1
  .amdhsa_system_sgpr_workgroup_id_x 1
.end_amdhsa_kernel
'''%((168,168))
open(sys.argv[1],'w').write(txt)
```

```python
import sys,struct
from asmlib import Asm
P=dict(DIAG=0,NT=' nt',N0=32,N1=20,N2=20,N3=20,SLEEP=1,PRESPIN=1,WARM=0,PRE3=0,PRE4=0,E3PRE=0)
for a in sys.argv[2:]:
    k,v=a.split('='); P[k]=v if k=='NT' else int(v)
if P['NT']=='0': P['NT']=''
NAME='adaLN_cond__sliding_block_cached__geglu_ffn__decode'
def f2u(x): return '0x%08x'%struct.unpack('<I',struct.pack('<f',x))[0]
E1,E2,E3O,E3M,M2,E4,E5,E6,WSEND=0x1000,0x21000,0x41000,0x141000,0x149000,0x159000,0x169000,0x177000,0x187000
DG=0x190000
R0,RK,RV,R2,R3,W=0,32768,65536,81920,114688,147456
FL=W; RED0=W+128; RED1=RED0+4096; QL=RED1+4096; SC=QL+2176; X2=QL; LDSZ=SC+2176
F_LAND,F_FR0,F_FR2,C_P1,C_P2,C_Q,C_S,C_M2,C_P4,C_X,C_P5,C_P6,C_O=[FL+4*i for i in range(13)]
a=Asm()
T=['s5','s44','s45','s46']
def v(i,n=1): return f'v{i}' if n==1 else f'v[{i}:{i+n-1}]'
def srd(d,p,n): a(f's_mov_b32 s{d}, s{p}\ns_mov_b32 s{d+1}, s{p+1}\ns_mov_b32 s{d+2}, {n}\ns_mov_b32 s{d+3}, 0x20000')
def stamp(i,ins='s_memrealtime'):
    if P['DIAG']:
        if ins=='cnt': a(f'v_writelane_b32 v126, s49, {i}')
        else: a(f'{ins} s[76:77]\ns_waitcnt lgkmcnt(0)\nv_writelane_b32 v126, s76, {i}')
def flush():
    if P['DIAG']:
        srd(36,34,DG+0x100000)
        a(f's_mul_i32 s78, s3, 2304\ns_lshl_b32 s79, s4, 8\ns_add_u32 s78, s78, s79\ns_add_u32 s78, s78, {DG}\ns_mov_b64 exec, -1\nv_lshlrev_b32 v127, 2, v1\nbuffer_store_dword v126, v127, s[36:39], s78 offen')
def budget(): a('s_sub_u32 s49, s49, 1\ns_cbranch_scc1 TIMEOUT')
def spin(addr,thr):
    L=a.newl(); a.label(L); budget()
    a(f'ds_read_b32 v14, v15 offset:{addr-FL}\ns_waitcnt lgkmcnt(0)\nv_cmp_gt_i32 vcc, {thr}, v14\ns_cbranch_vccnz {L}')
def arrive(addr):
    a(f's_waitcnt lgkmcnt(0)\ns_mov_b64 exec, 1\nds_add_u32 v15, v162 offset:{addr-FL}\ns_mov_b64 exec, -1')
def landed(c):
    if isinstance(c,int): a(f's_add_u32 s50, s4, {c+1}'); c='s50'
    spin(F_LAND,c)
def chk(regs,fmt,acc='v165'):
    if fmt==0:
        R=[g+i for g in regs for i in range(4)]
        a(f'v_max3_u32 {acc}, v{R[0]}, v{R[1]}, v{R[2]}')
        for i in range(3,len(R)-1,2): a(f'v_max3_u32 {acc}, {acc}, v{R[i]}, v{R[i+1]}')
        a(f'v_max_u32 {acc}, {acc}, v{R[-1]}\nv_cmp_eq_u32 vcc, -1, {acc}'); return
    first=True
    for g in regs:
        if fmt==24: lst=[(g+i,T[i]) for i in range(4)]
        else: lst=[(g+1,T[0]),(g+3,T[0])]
        for r,t in lst:
            if first: a(f'v_xor_b32 {acc}, {t}, v{r}'); first=False
            else: a(f'v_bitop3_b32 {acc}, {acc}, v{r}, {t} bitop3:0xf6')
    if fmt==24: a(f'v_and_b32 {acc}, 0xff, {acc}')
    a(f'v_cmp_ne_u32 vcc, 0, {acc}')
def poll(loads,fmt,scout=None,plain=True):
    D=a.newl()
    def body(ls,pl):
        for g,t in ls: a(t.replace(' sc1','') if pl else t)
        a('s_waitcnt vmcnt(0)'); chk([g for g,t in ls],fmt)
    def again(L):
        budget()
        if P['SLEEP']: a(f's_sleep {P["SLEEP"]}')
        a(f's_branch {L}')
    if scout:
        ex,txt,cmp_=scout
        L=a.newl(); E=a.newl(); a('s_mov_b32 exec_hi, 0' if ex=='LO' else f's_mov_b64 exec, {ex}'); a.label(L)
        a(txt+'\ns_waitcnt vmcnt(0)\n'+cmp_+f'\ns_cbranch_vccz {E}'); again(L); a.label(E); a('s_mov_b64 exec, -1')
    if plain: body(loads,True); a(f's_cbranch_vccz {D}')
    L=a.newl(); a.label(L); body(loads,False); a(f's_cbranch_vccz {D}'); again(L); a.label(D)
def sc(va,so): return f'buffer_load_dwordx2 v[124:125], {va}, s[36:39], {so} offen sc1'
TG='v_cmp_ne_u32 vcc, s5, v125'
SN='v_max_u32 v165, v124, v125\nv_cmp_eq_u32 vcc, -1, v165'
def ld(g,va,so,off=0): return (g,f'buffer_load_dwordx4 {v(g,4)}, {va}, s[36:39], {so} offen offset:{off} sc1')
def mask(g,n=4):
    for i in range(n): a(f'v_and_b32 v{g+i}, v7, v{g+i}')
DP=['quad_perm:[1,0,3,2]','quad_perm:[2,3,0,1]','row_half_mirror','row_mirror']
def dppred(regs,steps,op='add'):
    for s_ in steps:
        for r in regs: a(f'v_{op}_f32_dpp v{r}, v{r}, v{r} {DP[s_]} row_mask:0xf bank_mask:0xf')
def swapred(regs,tmp,op='add',which=(16,32)):
    for w_ in which:
        for i,r in enumerate(regs): a(f'v_mov_b32 v{tmp+i}, v{r}')
        for i,r in enumerate(regs): a(f'v_permlane{w_}_swap_b32 v{r}, v{tmp+i}')
        for i,r in enumerate(regs): a(f'v_{op}_f32 v{r}, v{r}, v{tmp+i}')
def rnd(regs,tmp):
    for i in range(0,len(regs),2): a(f'v_cvt_pk_bf16_f32 v{tmp+i//2}, v{regs[i]}, v{regs[i+1]}')
    for i in range(0,len(regs),2): a(f'v_lshlrev_b32 v{regs[i]}, 16, v{tmp+i//2}\nv_and_b32 v{regs[i+1]}, s48, v{tmp+i//2}')
def rnd1(r): a(f'v_cvt_pk_bf16_f32 v{r}, v{r}, v{r}\nv_and_b32 v{r}, s48, v{r}')
def dup(dst,src):
    for i in range(4): a(f'v_cvt_pk_bf16_f32 v{dst+i}, v{src+i}, v{src+i}')
def unpk(dst,src,n):
    for i in reversed(range(n)): a(f'v_and_b32 v{dst+2*i+1}, s48, v{src+i}\nv_lshlrev_b32 v{dst+2*i}, 16, v{src+i}')
def gemv(hh,wt,first=True):
    for t in range(4):
        A=48+4*(t&1)
        for q in range(4): a(f'v_and_b32 v{A+q}, v{hh+t}, v{3+q}')
        a(f'v_mfma_f32_16x16x32_bf16 v[44:47], {v(A,4)}, {v(wt+4*t,4)}, {"0" if first and t==0 else "v[44:47]"}')
def rdw(dst,base):
    for t in range(4): a(f'ds_read_b128 {v(dst+4*t,4)}, v12 offset:{1024*t}')
def reduce(buf,cnt,n,form,skip,mid=None,ns=8):
    a(f's_mov_b64 exec, s[52:53]\nds_write_b128 v8, v[44:47] offset:{buf-RED0}')
    if mid: a.label(mid)
    a(f'''s_waitcnt lgkmcnt(0)
    s_mov_b64 exec, 1
    ds_add_rtn_u32 v14, v15, v162 offset:{cnt-FL}
    s_mov_b64 exec, -1
    s_waitcnt lgkmcnt(0)
    v_readfirstlane_b32 s50, v14
    s_cmp_lg_u32 s50, {n-1}
    s_cbranch_scc1 {skip}''')
    if form=='A':
        a(f'v_lshlrev_b32 v12, 2, v1\nv_add_u32 v12, {buf}, v12')
        for i in range(ns): a(f'ds_read2st64_b32 {v(96+2*i,2)}, v12 offset0:{2*i} offset1:{2*i+1}')
        a('s_waitcnt lgkmcnt(0)')
        m=2*ns
        while m>2:
            m//=2
            for i in range(0,m,2): a(f'v_pk_add_f32 {v(96+i,2)}, {v(96+i,2)}, {v(96+m+i,2)}')
        a('v_add_f32 v44, v96, v97\nv_mov_b32 v45, s5\nv_mov_b32 v47, s5\nv_lshlrev_b32 v12, 3, v1\nv_mov_b32_dpp v46, v44 quad_perm:[1,0,3,2] row_mask:0xf bank_mask:0xf')
    else:
        for k in range(4): a(f'ds_read_b128 {v(96+4*k,4)}, v10 offset:{buf-RED0+256*k}')
        a('s_waitcnt lgkmcnt(0)')
        a('v_pk_add_f32 v[96:97], v[96:97], v[100:101]\nv_pk_add_f32 v[98:99], v[98:99], v[102:103]')
        a('v_pk_add_f32 v[104:105], v[104:105], v[108:109]\nv_pk_add_f32 v[106:107], v[106:107], v[110:111]')
        a('v_pk_add_f32 v[44:45], v[96:97], v[104:105]\nv_pk_add_f32 v[46:47], v[98:99], v[106:107]')
        swapred([44,45,46,47],96)
def pub24(g,va,so,ex,n=4):
    a(f's_mov_b64 exec, {ex}\nbuffer_store_dwordx{n} {v(g,n)}, {va}, s[36:39], {so} offen sc1\ns_mov_b64 exec, -1')
def stats(X):
    a(f'v_pk_add_f32 v[56:57], {v(X,2)}, {v(X+2,2)}\nv_pk_add_f32 v[58:59], {v(X+4,2)}, {v(X+6,2)}')
    a(f'v_pk_add_f32 v[56:57], v[56:57], {v(X+8,2)}\nv_pk_add_f32 v[58:59], v[58:59], {v(X+10,2)}')
    a(f'v_pk_add_f32 v[56:57], v[56:57], {v(X+12,2)}\nv_pk_add_f32 v[58:59], v[58:59], {v(X+14,2)}')
    a('v_pk_add_f32 v[56:57], v[56:57], v[58:59]\nv_add_f32 v60, v56, v57')
    dppred([60],[0,1,2,3]); swapred([60],62)
    a(f'v_mul_f32 v60, {f2u(-1/1024)}, v60')
    for i in range(0,16,2): a(f'v_pk_add_f32 {v(X+i,2)}, {v(X+i,2)}, v[60:61] op_sel_hi:[1,0]')
    a(f'v_pk_mul_f32 v[56:57], {v(X,2)}, {v(X,2)}\nv_pk_mul_f32 v[58:59], {v(X+2,2)}, {v(X+2,2)}')
    for i in range(4,16,2): a(f'v_pk_fma_f32 {v(56+(i&2),2)}, {v(X+i,2)}, {v(X+i,2)}, {v(56+(i&2),2)}')
    a('v_pk_add_f32 v[56:57], v[56:57], v[58:59]\nv_add_f32 v61, v56, v57')
    dppred([61],[0,1,2,3]); swapred([61],62)
    a(f'v_mul_f32 v61, {f2u(1/1024)}, v61\nv_sub_f32 v60, 0, v60')
    rnd([60,61],62); a(f'v_add_f32 v61, {f2u(1e-5)}, v61'); rnd1(61); a('v_sqrt_f32 v61, v61'); rnd1(61); a('v_rcp_f32 v61, v61')
def norm(X,n,tmp):
    R=list(range(X,X+n))
    for r in R: a(f'v_sub_f32 v{r}, v{r}, v60')
    rnd(R,tmp)
    for r in R: a(f'v_mul_f32 v{r}, v{r}, v61')
    rnd(R,tmp)
def sigm(X,Y,n):
    for i in range(n): a(f'v_exp_f32 v{Y+i}, v{Y+i}')
    for i in range(n): a(f'v_add_f32 v{Y+i}, 1.0, v{Y+i}')
    for i in range(n): a(f'v_rcp_f32 v{Y+i}, v{Y+i}')
    for i in range(n): a(f'v_mul_f32 v{X+i}, v{X+i}, v{Y+i}')
def silu(dst,src):
    unpk(56,src,2)
    for i in range(4): a(f'v_mul_f32 v{60+i}, {f2u(-1.4426950408889634)}, v{56+i}')
    sigm(56,60,4); dup(dst,56)

a('''s_cmp_ge_u32 s2, 256
s_cbranch_scc1 EXIT
s_load_dwordx16 s[8:23], s[0:1], 0
s_load_dwordx8 s[24:31], s[0:1], 64
s_load_dwordx4 s[32:35], s[0:1], 96
v_lshrrev_b32 v2, 6, v0
v_and_b32 v1, 63, v0
s_and_b32 s3, s2, 7
s_lshl_b32 s3, s3, 5
s_lshr_b32 s6, s2, 3
s_add_u32 s3, s3, s6
v_readfirstlane_b32 s4, v2
v_lshrrev_b32 v2, 3, v1
v_and_b32 v9, 7, v1
v_lshlrev_b32 v9, 4, v9
s_mov_b32 s49, 0x200000
s_and_b32 s54, s3, 63
s_lshr_b32 s55, s3, 6
s_and_b32 s56, s3, 15
s_lshr_b32 s57, s3, 4
s_cmp_ge_u32 s3, 112
s_cselect_b32 s58, 1, 0
s_mul_i32 s6, s58, 112
s_sub_u32 s60, s3, s6
s_cmp_ge_u32 s60, 56
s_cselect_b32 s59, 1, 0
s_mul_i32 s6, s59, 56
s_sub_u32 s60, s60, s6
v_mov_b32 v15, %d
v_mov_b32 v162, 1
v_mov_b32 v126, 0
v_mov_b32 v14, 0
v_lshl_add_u32 v12, v1, 2, v15
s_mov_b64 exec, 0xffff
ds_write_b32 v12, v14
s_mov_b64 exec, -1
s_waitcnt lgkmcnt(0)
s_cmp_eq_u32 s4, 8
s_cbranch_scc1 LOADER'''%FL)
stamp(29)
a('''s_lshl_b32 s61, s4, 5
s_lshr_b32 s6, s3, 5
s_lshl_b32 s6, s6, 7
s_add_u32 s62, s6, s61
s_lshl_b32 s6, s55, 8
s_add_u32 s63, s6, s61
v_mul_u32_u24 v12, 49152, v2
v_add_u32 v12, v12, v9
s_mul_i32 s64, s62, 12288
s_and_b32 s6, s3, 31
s_lshl_b32 s6, s6, 7
s_add_u32 s64, s64, s6
v_lshlrev_b32 v13, 3, v2
v_lshlrev_b32 v14, 5, v1
s_lshl_b32 s65, s62, 1
s_lshl_b32 s66, s63, 1
s_load_dword s5, s[34:35], 0''')
srd(40,28,12582912)
a('s_cmp_ge_u32 s4, 4\ns_cbranch_scc1 CLEAR')
for t in range(4): a(f'buffer_load_dwordx4 {v(64+4*t,4)}, v12, s[40:43], s64 offen{P["NT"]}\ns_add_u32 s64, s64, 12288')
a.label('NOP1LD')
srd(40,26,2048)
a('buffer_load_dwordx2 v[20:21], v13, s[40:43], s65 offen\nbuffer_load_dwordx2 v[22:23], v13, s[40:43], s66 offen')
srd(40,8,2048)
a('''buffer_load_dwordx2 v[24:25], v13, s[40:43], s66 offen
buffer_load_dwordx4 v[136:139], v14, s[40:43], 0 offen
buffer_load_dwordx4 v[140:143], v14, s[40:43], 0 offen offset:16
v_and_b32 v12, 15, v1
v_lshlrev_b32 v12, 4, v12
v_bfe_u32 v14, v1, 4, 1
v_lshl_add_u32 v12, v14, 3, v12
s_lshl_b32 s6, s4, 8
buffer_load_dwordx2 v[156:157], v12, s[40:43], s6 offen''')
srd(36,34,WSEND if not P['DIAG'] else DG+0x100000)
a(f'''s_barrier
s_mov_b32 s48, 0xffff0000
s_mov_b32 s82, 0x55555555
s_mov_b32 s83, s82
v_and_b32 v12, 1, v1
v_cmp_eq_u32 vcc, 1, v12
v_mov_b32 v13, 0xffff
v_mov_b32 v14, s48
v_cndmask_b32 v13, v13, v14, vcc
v_bfe_u32 v12, v1, 1, 2''')
for q in range(4): a(f'v_cmp_eq_u32 vcc, {q}, v12\nv_cndmask_b32 v{3+q}, 0, v13, vcc')
a(f'''v_lshrrev_b32 v12, 5, v1
v_lshlrev_b32 v8, 8, v12
v_lshl_add_u32 v8, v9, 1, v8
v_and_b32 v12, 16, v1
v_add_u32 v8, v8, v12
s_lshl_b32 s6, s4, 9
s_add_u32 s6, s6, {RED0}
v_add_u32 v8, s6, v8
v_and_b32 v163, 15, v1
v_lshlrev_b32 v163, 4, v163
v_lshrrev_b32 v164, 4, v1
v_lshl_add_u32 v10, v164, 10, v163
v_add_u32 v10, {RED0}, v10
s_lshl_b32 s6, s4, 12
v_lshlrev_b32 v11, 4, v1
v_add_u32 v11, s6, v11
s_mov_b32 s52, 0x00ff00ff
s_mov_b32 s53, 0xff00ff00
s_waitcnt lgkmcnt(0)
s_add_u32 s5, s5, 1
''')
for q in range(4): a(f'v_and_b32 v{156+2+q}, 0x3f803f80, v{3+q}')
stamp(0); stamp(30,'s_memtime')
a('s_cmp_ge_u32 s4, 4\ns_cbranch_scc1 CLRW\ns_waitcnt vmcnt(5)')
silu(16,20)
stamp(1)
gemv(16,64)
reduce(RED0,C_P1,8,'A','P1DONE','P1MID',4)
a(f'''s_and_b32 s6, s3, 31
s_lshl_b32 s6, s6, 12
s_lshr_b32 s7, s3, 5
s_lshl_b32 s7, s7, 9
s_add_u32 s6, s6, s7
s_add_u32 s6, s6, {E1}
s_mov_b64 exec, s[82:83]
buffer_store_dwordx4 v[44:47], v12, s[36:39], s6 offen sc1
s_mov_b64 exec, -1''')
stamp(2)
a.label('P1DONE')
a('s_waitcnt vmcnt(1)')
silu(20,22)
unpk(104,136,8); unpk(16,24,2)
stats(104); norm(16,4,56)
landed(0); a(f'v_add_u32 v12, {R0}, v11'); rdw(64,0); arrive(F_FR0)
a(f'''s_lshr_b32 s6, s63, 6
s_lshl_b32 s6, s6, 12
s_and_b32 s7, s63, 63
s_lshl_b32 s7, s7, 3
s_add_u32 s6, s6, s7
s_add_u32 s6, s6, {E1}
s_add_u32 s7, s6, 65536
v_lshlrev_b32 v12, 5, v9
v_lshl_add_u32 v12, v2, 5, v12''')
stamp(3); stamp(21,'cnt')
a('v_lshlrev_b32 v13, 5, v9\nv_lshl_add_u32 v13, v2, 16, v13')
poll([ld(96,'v12','s6'),ld(100,'v12','s6',16),ld(104,'v12','s7'),ld(108,'v12','s7',16)],8,('0xffff',sc('v13','s6'),TG))
stamp(4); stamp(22,'cnt')
sa=[96,98,100,102]; ca=[104,106,108,110]
dppred(sa+ca,[0,1,2]); rnd(sa+ca,56)
for r in ca: a(f'v_add_f32 v{r}, 1.0, v{r}')
rnd(ca,56)
for i in range(4): a(f'v_mul_f32 v{16+i}, v{16+i}, v{ca[i]}')
rnd([16,17,18,19],56)
for i in range(4): a(f'v_add_f32 v{16+i}, v{16+i}, v{sa[i]}')
dup(56,16); gemv(56,64)
reduce(RED1,C_P2,8,'A','P2DONE')
a(f'''s_lshl_b32 s6, s54, 11
s_lshl_b32 s7, s55, 9
s_add_u32 s6, s6, s7
s_add_u32 s6, s6, {E2}
s_mov_b64 exec, s[82:83]
buffer_store_dwordx4 v[44:47], v12, s[36:39], s6 offen sc1
s_mov_b64 exec, -1''')
stamp(5)
a.label('P2DONE')
a('s_cmp_ge_u32 s4, 4\ns_cbranch_scc1 NOK')
landed(8)
a(f'''v_and_b32 v13, 15, v1
v_xor_b32 v12, v164, v13
v_lshlrev_b32 v12, 4, v12
v_lshl_add_u32 v12, v13, 8, v12
s_lshl_b32 s6, s4, 12
s_add_u32 s6, s6, {RK}
v_add_u32 v12, s6, v12''')
for s_ in range(4): a(f'v_xor_b32 v13, {64*s_}, v12\nds_read_b128 {v(136+4*s_,4)}, v13')
arrive(F_FR0)
a.label('NOK')
a('s_mov_b32 s50, 16'); landed('s50')
a(f'''v_bfe_u32 v12, v1, 2, 2
v_lshl_add_u32 v13, v164, 3, v12
v_and_b32 v14, 15, v13
v_bfe_u32 v12, v1, 1, 1
s_lshl_b32 s6, s4, 1
v_add_u32 v12, s6, v12
v_xor_b32 v12, v12, v14
v_lshlrev_b32 v12, 4, v12
v_lshl_add_u32 v12, v13, 8, v12
v_and_b32 v13, 1, v1
v_lshl_add_u32 v12, v13, 3, v12
v_add_u32 v12, {RV}, v12
v_xor_b32 v13, 64, v12
ds_read_b64_tr_b16 v[128:129], v12
ds_read_b64_tr_b16 v[130:131], v13 offset:1024
ds_read_b64_tr_b16 v[132:133], v12 offset:8192
ds_read_b64_tr_b16 v[134:135], v13 offset:9216
s_lshl_b32 s6, s55, 15
s_lshl_b32 s7, s4, 12
s_add_u32 s6, s6, s7
s_add_u32 s6, s6, {E2}
v_and_b32 v13, 31, v1
v_lshlrev_b32 v13, 4, v13
v_lshrrev_b32 v12, 5, v1
v_lshl_add_u32 v12, v12, 11, v13''')
stamp(6); stamp(23,'cnt')
a('v_lshlrev_b32 v13, 9, v1')
poll([ld(96+4*k,'v12','s6',512*k) for k in range(4)],8,('0xff',sc('v13','s6'),TG))
stamp(7); stamp(24,'cnt')
a(f'''v_add_f32 v96, v96, v100
v_add_f32 v98, v98, v102
v_add_f32 v104, v104, v108
v_add_f32 v106, v106, v110
v_add_f32 v96, v96, v104
v_add_f32 v98, v98, v106
s_mul_i32 s6, s4, 272
s_add_u32 s6, s6, {QL}
v_lshl_add_u32 v12, v1, 2, s6
v_cvt_pk_bf16_f32 v96, v96, v98
ds_write_b32 v12, v96''')
arrive(C_Q)
a(f'''v_and_b32 v13, 7, v1
v_mul_u32_u24 v13, 272, v13
s_cmp_ge_u32 s4, 4
s_cbranch_scc1 NOQK
v_lshl_add_u32 v12, v164, 4, v13
v_add_u32 v12, {QL}, v12''')
spin(C_Q,8)
for s_ in range(4): a(f'ds_read_b128 {v(96+4*s_,4)}, v12 offset:{64*s_}')
for s_ in range(4): a(f's_waitcnt lgkmcnt({3-s_})\nv_mfma_f32_16x16x32_bf16 v[44:47], {v(136+4*s_,4)}, {v(96+4*s_,4)}, {"0" if s_==0 else "v[44:47]"}')
a(f's_lshl_b32 s6, s4, 6\ns_add_u32 s6, s6, {SC-QL}\nv_add_u32 v12, s6, v12')
rnd([44,45,46,47],56)
for i in range(4): a(f'v_mul_f32 v{44+i}, 0x3db504f3, v{44+i}')
rnd([44,45,46,47],56)
a('s_mov_b32 exec_lo, s52\ns_mov_b32 exec_hi, s52\nds_write_b128 v12, v[44:47]\ns_mov_b64 exec, -1')
arrive(C_S)
a.label('NOQK')
a(f'v_lshl_add_u32 v12, v164, 5, v13\nv_add_u32 v12, {SC}, v12')
spin(C_S,4)
for i,o in enumerate([0,16,128,144]): a(f'ds_read_b128 {v(96+4*i,4)}, v12 offset:{o}')
a('s_waitcnt lgkmcnt(0)\nv_max3_f32 v56, v96, v97, v98')
for i in range(99,111,2): a(f'v_max3_f32 v56, v56, v{i}, v{i+1}')
a('v_max_f32 v56, v56, v111'); swapred([56],58,'max')
a(f'v_mul_f32 v57, {f2u(-1.4426950408889634)}, v56\ns_mov_b32 s6, 0x3fb8aa3b')
for i in range(96,112): a(f'v_fma_f32 v{i}, v{i}, s6, v57')
for i in range(96,112): a(f'v_exp_f32 v{i}, v{i}')
for i in range(8): a(f'v_cvt_pk_bf16_f32 v{112+i}, v{96+2*i}, v{97+2*i}')
a('v_mfma_f32_16x16x32_bf16 v[44:47], v[128:131], v[112:115], 0\nv_mfma_f32_16x16x32_bf16 v[44:47], v[132:135], v[116:119], v[44:47]')
a(f'''s_lshl_b32 s6, s55, 17
s_lshl_b32 s7, s54, 7
s_add_u32 s6, s6, s7
s_lshr_b32 s7, s4, 2
s_lshl_b32 s7, s7, 13
s_add_u32 s6, s6, s7
s_and_b32 s7, s4, 3
s_lshl_b32 s7, s7, 5
s_add_u32 s6, s6, s7
s_add_u32 s6, s6, {E3O}
v_lshlrev_b32 v12, 10, v9
v_lshl_add_u32 v12, v164, 3, v12
s_mov_b32 s50, 0xff
s_mov_b32 s51, 0xff
v_cvt_pk_bf16_f32 v44, v44, v45
v_cvt_pk_bf16_f32 v45, v46, v47
v_mov_b32 v46, v44
v_mov_b32 v47, v45
v_permlane16_swap_b32 v44, v46
v_permlane16_swap_b32 v45, v47''')
pub24(44,'v12','s6','s[50:51]')
a('s_cmp_lg_u32 s4, 0\ns_cbranch_scc1 NOML')
for m in (8,4,2):
    for i in range(0,m,2): a(f'v_pk_add_f32 {v(96+i,2)}, {v(96+i,2)}, {v(96+m+i,2)}')
a('v_add_f32 v57, v96, v97'); swapred([57],58)
a(f'''s_lshl_b32 s6, s55, 12
s_lshl_b32 s7, s54, 3
s_add_u32 s6, s6, s7
s_add_u32 s6, s6, {E3M}
v_lshlrev_b32 v12, 9, v1''')
pub24(56,'v12','s6','0xff',2)
a.label('NOML')
stamp(8)
landed(16); a(f'v_add_u32 v12, {R2}, v11'); rdw(64,0); arrive(F_FR2); gemv(20,64)
reduce(RED0,C_M2,8,'B','M2DONE')
a(f's_lshl_b32 s6, s55, 14\ns_lshl_b32 s7, s54, 8\ns_add_u32 s6, s6, s7\ns_add_u32 s6, s6, {M2}')
pub24(44,'v163','s6','0xffff')
a.label('M2DONE')
stamp(9)
def e4addr(): a(f's_lshr_b32 s6, s56, 1\ns_lshl_b32 s6, s6, 12\ns_lshl_b32 s7, s57, 8\ns_add_u32 s6, s6, s7\ns_and_b32 s7, s56, 1\ns_lshl_b32 s7, s7, 7\ns_add_u32 s6, s6, s7\ns_add_u32 s64, s6, {E4}\ns_mov_b32 s6, s64')
def e5addr(): a(f's_lshl_b32 s6, s59, 1\ns_add_u32 s6, s6, s58\ns_mul_i32 s6, s6, 14336\ns_lshl_b32 s7, s60, 8\ns_add_u32 s6, s6, s7\ns_add_u32 s6, s6, {E5}')
R8='row_ror:8 row_mask:0xf bank_mask:0xf'
landed(24); a(f'v_add_u32 v12, {R3}, v11'); rdw(64,0)
e4addr()
a(f'''s_and_b32 s6, s4, 3
s_lshl_b32 s7, s57, 2
s_add_u32 s6, s6, s7
s_lshr_b32 s7, s6, 1
s_lshl_b32 s7, s7, 9
s_add_u32 s72, s7, {E3M}
s_lshr_b32 s7, s4, 2
v_and_b32 v13, 1, v1
v_xor_b32 v13, s7, v13
v_lshlrev_b32 v13, 8, v13
v_lshl_add_u32 v13, v2, 5, v13
s_lshl_b32 s6, s6, 1
s_add_u32 s6, s6, s7
s_lshl_b32 s6, s6, 12
s_add_u32 s65, s6, {E3O}
v_lshl_add_u32 v12, v2, 9, v9
s_lshr_b32 s6, s4, 1
s_lshl_b32 s6, s6, 9
s_and_b32 s7, s4, 1
s_lshl_b32 s7, s7, 7
s_add_u32 s6, s6, s7
s_add_u32 s6, s6, {RED1}
v_lshl_add_u32 v166, v2, 4, s6
s_lshl_b32 s66, s56, 8
s_add_u32 s66, s66, {M2}
v_lshl_add_u32 v167, v164, 14, v163''')
a('v_lshlrev_b32 v14, 3, v1')
stamp(10); stamp(25,'cnt')
poll([ld(96+4*t,'v12','s65',128*t) for t in range(4)]+[ld(112,'v13','s72'),ld(116,'v13','s72',16)],0,('-1',sc('v14','s72'),SN))
stamp(11); stamp(26,'cnt')
GA=ld(24,'v167','s66'); a(GA[1].replace(' sc1',''))
a(f'v_max3_f32 v58, v112, v114, v116\nv_max_f32 v58, v58, v118'); dppred([58],[0],'max'); a(f'v_max_f32_dpp v58, v58, v58 {R8}'); swapred([58],59,'max')
a(f'v_mul_f32 v58, {f2u(-1.4426950408889634)}, v58\ns_mov_b32 s6, 0x3fb8aa3b')
for t in range(4): a(f'v_fma_f32 v{60+t}, v{112+2*t}, s6, v58')
for t in range(4): a(f'v_exp_f32 v{60+t}, v{60+t}')
dup(60,60)
for t in range(4): a(f'v_mov_b32_dpp v{56+t}, v{60+t} quad_perm:[0,0,2,2] row_mask:0xf bank_mask:0xf')
gemv(56,96)
for t in range(4): a(f'v_and_b32 v{60+t}, s48, v{60+t}')
a('v_mul_f32 v57, v60, v113\nv_fmac_f32 v57, v61, v115\nv_fmac_f32 v57, v62, v117\nv_fmac_f32 v57, v63, v119')
dppred([57],[0]); a(f'v_add_f32_dpp v57, v57, v57 {R8}'); swapred([57],59); a('v_rcp_f32 v57, v57')
for i in range(4): a(f'v_mul_f32 v{44+i}, v{44+i}, v57')
a(f's_mov_b64 exec, s[52:53]\nds_write_b128 v8, v[44:47] offset:{RED1-RED0}'); arrive(C_O); spin(C_O,8)
for i,o in enumerate([0,256,2048,2304]): a(f'ds_read_b128 {v(96+4*i,4)}, v166 offset:{o}')
a('''s_waitcnt lgkmcnt(2)
v_pk_add_f32 v[96:97], v[96:97], v[100:101]
v_pk_add_f32 v[98:99], v[98:99], v[102:103]
s_waitcnt lgkmcnt(0)
v_pk_add_f32 v[104:105], v[104:105], v[108:109]
v_pk_add_f32 v[106:107], v[106:107], v[110:111]
v_pk_add_f32 v[96:97], v[96:97], v[104:105]
v_pk_add_f32 v[98:99], v[98:99], v[106:107]''')
dup(56,96); gemv(56,64)
a('s_waitcnt vmcnt(0)'); chk([24],0); a('s_cbranch_vccz GADONE'); poll([GA],0,plain=False); a.label('GADONE')
swapred([24,25,26,27],96); rnd([24,25,26,27],96)
reduce(RED0,C_P4,8,'B','P4DONE')
a('''v_pk_mul_f32 v[44:45], v[44:45], v[24:25]
v_pk_mul_f32 v[46:47], v[46:47], v[26:27]
v_lshrrev_b32 v12, 1, v163
v_cvt_pk_bf16_f32 v44, v44, v45
v_cvt_pk_bf16_f32 v45, v46, v47
v_mov_b32_dpp v46, v44 quad_perm:[1,0,3,2] row_mask:0xf bank_mask:0xf
v_mov_b32_dpp v47, v45 quad_perm:[1,0,3,2] row_mask:0xf bank_mask:0xf''')
pub24(44,'v12','s64','0x5555')
stamp(12)
a.label('P4DONE')
a(f'''s_cmp_ge_u32 s3, 224
s_cbranch_scc1 P5DONE
s_lshl_b32 s62, s58, 9
s_lshl_b32 s6, s4, 6
s_add_u32 s62, s62, s6
s_lshl_b32 s62, s62, 2
s_add_u32 s6, s62, {M2+4096}
v_and_b32 v12, 3, v1
v_lshlrev_b32 v12, 14, v12
v_bfe_u32 v13, v1, 2, 1
v_lshl_add_u32 v12, v13, 12, v12
v_lshl_add_u32 v12, v2, 4, v12''')
poll([ld(28,'v12','s6'),ld(32,'v12','s6',128)],0)
unpk(152,156,2); dppred(list(range(28,36)),[0,1]); rnd(list(range(28,36)),56)
a('v_cmp_eq_u32 vcc, 1, v13')
for i in range(8): a(f'v_mov_b32_dpp v{96+i}, v{28+i} row_half_mirror row_mask:0xf bank_mask:0xf')
for i in range(8): a(f'v_cndmask_b32 v{36+i}, v{28+i}, v{96+i}, vcc\nv_cndmask_b32 v{28+i}, v{96+i}, v{28+i}, vcc')
for i in range(8): a(f'v_add_f32 v{28+i}, 1.0, v{28+i}')
rnd(list(range(28,36)),56)
e5addr()
a(f'''s_mov_b32 s64, s6
s_lshl_b32 s6, s4, 9
s_add_u32 s6, s6, {X2}
v_lshl_add_u32 v166, v163, 1, s6
v_lshl_add_u32 v166, v164, 4, v166
s_add_u32 s6, s62, {X2}
v_lshl_add_u32 v13, v2, 4, s6
v_lshlrev_b32 v12, 4, v1
v_add_u32 v167, {X2}, v12
s_lshl_b32 s51, s4, 1
s_add_u32 s51, s51, 34
s_lshl_b32 s6, s4, 12
v_add_u32 v16, s6, v11
s_add_u32 s6, s6, {E4}
ds_read_b32 v14, v15
s_waitcnt lgkmcnt(0)
v_cmp_gt_i32 vcc, s51, v14
s_mov_b32 s65, 0
s_cbranch_vccnz NOEARLY
s_mov_b32 s65, 1''')
for t in range(8): a(f'ds_read_b128 {v(64+4*t,4)}, v16 offset:{1024*t}')
a.label('NOEARLY')
a('v_lshlrev_b32 v14, 7, v1')
stamp(13); stamp(27,'cnt')
poll([ld(96+4*n,'v12','s6',1024*n) for n in range(4)],0,('LO',sc('v14','s6'),SN))
stamp(14); stamp(28,'cnt')
for n in range(4): a(f'v_mfma_f32_16x16x32_bf16 v[44:47], v[158:161], {v(96+4*n,4)}, {"v[152:155]" if n==0 else "v[44:47]"}')
a('s_mov_b32 exec_hi, 0\nds_write_b128 v166, v[44:47]')
arrive(C_X); spin(C_X,8)
a('ds_read_b32 v60, v15 offset:%d'%(X2-FL))
for i in range(4): a(f'ds_read_b128 {v(96+4*i,4)}, v167 offset:{1024*i}')
a('ds_read_b128 v[112:115], v13\nds_read_b128 v[116:119], v13 offset:128\ns_waitcnt lgkmcnt(5)')
for i in range(0,16,2):
    if i in (4,8,12): a(f's_waitcnt lgkmcnt({5-i//4})')
    a(f'v_pk_add_f32 {v(96+i,2)}, {v(96+i,2)}, v[60:61] op_sel_hi:[1,0] neg_lo:[0,1] neg_hi:[0,1]')
a('v_pk_add_f32 v[56:57], v[96:97], v[98:99]\nv_pk_mul_f32 v[58:59], v[96:97], v[96:97]\nv_pk_fma_f32 v[58:59], v[98:99], v[98:99], v[58:59]')
for i in range(4,16,2): a(f'v_pk_add_f32 v[56:57], v[56:57], {v(96+i,2)}\nv_pk_fma_f32 v[58:59], {v(96+i,2)}, {v(96+i,2)}, v[58:59]')
a('v_add_f32 v56, v56, v57\nv_add_f32 v57, v58, v59')
dppred([56,57],[0,1,2,3]); swapred([56,57],58)
a(f'''v_mul_f32 v56, {f2u(1/1024)}, v56
v_mul_f32 v57, {f2u(1/1024)}, v57
v_fma_f32 v57, -v56, v56, v57
v_add_f32 v60, v60, v56
v_add_f32 v57, {f2u(1e-5)}, v57
v_rsq_f32 v58, v57
s_waitcnt lgkmcnt(0)''')
for i in range(0,8,2): a(f'v_pk_add_f32 {v(112+i,2)}, {v(112+i,2)}, v[60:61] op_sel_hi:[1,0] neg_lo:[0,1] neg_hi:[0,1]')
for i in range(0,8,2): a(f'v_pk_mul_f32 {v(28+i,2)}, {v(28+i,2)}, v[58:59] op_sel_hi:[1,0]')
for i in range(0,8,2): a(f'v_pk_fma_f32 {v(112+i,2)}, {v(112+i,2)}, {v(28+i,2)}, {v(36+i,2)}')
dup(56,112); dup(60,116)
a('s_cmp_eq_u32 s65, 1\ns_cbranch_scc1 EARLY'); landed('s51')
for t in range(8): a(f'ds_read_b128 {v(64+4*t,4)}, v16 offset:{1024*t}')
a('s_waitcnt lgkmcnt(0)')
a.label('EARLY')
stamp(15)
gemv(56,64); gemv(60,80,False)
reduce(RED0,C_P5,8,'B','P5DONE')
pub24(44,'v163','s64','0xffff')
stamp(16)
a.label('P5DONE')
a(f'v_subrev_u32 v8, {RED0-RV}, v8\nv_subrev_u32 v10, {RED0-RV}, v10')
a('v_mov_b32 v44, 0\nv_mov_b32 v45, 0\nv_mov_b32 v46, 0\nv_mov_b32 v47, 0\ns_cmp_eq_u32 s4, 7\ns_cbranch_scc1 P6RED')
landed(48); a(f'v_add_u32 v12, {R2}, v11'); rdw(64,0)
a(f'''s_mul_i32 s6, s57, 896
s_lshl_b32 s7, s4, 7
s_add_u32 s6, s6, s7
s_add_u32 s6, s6, {E5}
v_and_b32 v13, 3, v2
v_mul_u32_u24 v12, 14336, v13
v_add_u32 v12, v12, v9
v_lshlrev_b32 v13, 2, v2
s_mov_b32 exec_hi, 0''')
stamp(17)
poll([ld(96,'v12','s6')],0,plain=False)
a('s_mov_b64 exec, -1')
stamp(18)
for i in range(4): a(f'v_add_f32_dpp v{104+i}, v{96+i}, v{96+i} {R8}')
for i in range(4): a(f'v_mov_b32 v{108+i}, v{104+i}')
for i in range(4): a(f'v_permlane16_swap_b32 v{104+i}, v{108+i}')
c1=2*0.7978845608028654*1.4426950408889634
a(f's_mov_b32 s6, {f2u(-c1*0.044715)}\nv_mov_b32 v100, {f2u(-c1)}')
for i in range(4): a(f'v_mul_f32 v{96+i}, v{104+i}, v{104+i}')
for i in range(4): a(f'v_fma_f32 v{96+i}, v{96+i}, s6, v100')
for i in range(4): a(f'v_mul_f32 v{96+i}, v{96+i}, v{104+i}')
sigm(104,96,4)
for i in range(4): a(f'v_mul_f32 v{104+i}, v{104+i}, v{108+i}')
dup(60,104)
for i in range(4): a(f'ds_bpermute_b32 v{56+i}, v13, v{60+i}')
a('s_waitcnt lgkmcnt(0)'); gemv(56,64)
a.label('P6RED')
reduce(RED0,C_P6,8,'B','P6DONE')
a(f's_lshl_b32 s6, s57, 12\ns_lshl_b32 s7, s56, 8\ns_add_u32 s6, s6, s7\ns_add_u32 s6, s6, {E6}')
pub24(44,'v163','s6','0xffff')
stamp(19)
a.label('P6DONE')
a(f'''s_cmp_lg_u32 s4, 7
s_cbranch_scc1 TIMEOUT
s_cmp_ge_u32 s3, 64
s_cbranch_scc1 TIMEOUT
s_lshl_b32 s62, s3, 6
s_add_u32 s6, s62, {M2+12288}
v_and_b32 v12, 3, v1
v_lshlrev_b32 v12, 14, v12
v_lshl_add_u32 v12, v164, 4, v12
s_add_u32 s7, s62, {X2}
v_lshl_add_u32 v13, v164, 4, s7
ds_read_b128 v[28:31], v13''')
poll([ld(24,'v12','s6')],0)
dppred([24,25,26,27],[0,1]); rnd([24,25,26,27],56)
a(f's_add_u32 s6, s62, {E6}\nv_lshlrev_b32 v12, 8, v163\nv_lshl_add_u32 v12, v164, 4, v12')
srd(40,30,2048)
a('s_waitcnt lgkmcnt(0)'); poll([ld(96,'v12','s6')],0,plain=False)
dppred([96,97,98,99],[0,1,2,3])
for i in range(4): a(f'v_fma_f32 v{96+i}, v{96+i}, v{24+i}, v{28+i}')
a('''v_cvt_pk_bf16_f32 v96, v96, v97
v_cvt_pk_bf16_f32 v97, v98, v99
v_lshlrev_b32 v12, 3, v164
s_lshl_b32 s6, s3, 5
s_mov_b32 exec_lo, 0x10001
s_mov_b32 exec_hi, 0x10001
buffer_store_dwordx2 v[96:97], v12, s[40:43], s6 offen''')
stamp(20); stamp(31,'s_memtime')
a('''s_cmp_lg_u32 s3, 0
s_cbranch_scc1 TIMEOUT
s_mov_b64 exec, 1
v_mov_b32 v12, 0
v_mov_b32 v13, s5
buffer_store_dword v13, v12, s[36:39], 0 offen sc1
TIMEOUT:''')
flush()
a('EXIT:\ns_endpgm')
a.label('CLEAR')
srd(36,34,WSEND)
a('v_and_b32 v163, 15, v1\nv_lshlrev_b32 v163, 4, v163')
a(f'''v_mov_b32 v44, -1
v_mov_b32 v45, -1
v_mov_b32 v46, -1
v_mov_b32 v47, -1
s_cmp_eq_u32 s4, 4
s_cbranch_scc0 CLR5
s_lshl_b32 s6, s55, 17
s_lshl_b32 s7, s54, 7
s_add_u32 s6, s6, s7
s_add_u32 s6, s6, {E3O}
s_add_u32 s7, s6, 65536
v_lshl_add_u32 v12, v2, 13, v9
buffer_store_dwordx4 v[44:47], v12, s[36:39], s6 offen sc1
buffer_store_dwordx4 v[44:47], v12, s[36:39], s7 offen sc1
s_branch CLRD
CLR5:
s_cmp_eq_u32 s4, 5
s_cbranch_scc0 CLR6
s_lshl_b32 s6, s55, 12
s_lshl_b32 s7, s54, 3
s_add_u32 s6, s6, s7
s_add_u32 s6, s6, {E3M}
v_lshlrev_b32 v12, 9, v1''')
pub24(44,'v12','s6','0xff',2)
a(f's_lshl_b32 s6, s55, 14\ns_lshl_b32 s7, s54, 8\ns_add_u32 s6, s6, s7\ns_add_u32 s6, s6, {M2}')
pub24(44,'v163','s6','0xffff')
a('s_branch CLRD\nCLR6:\ns_cmp_eq_u32 s4, 6\ns_cbranch_scc0 CLR7')
e4addr(); pub24(44,'v163','s6','0xff')
a(f's_lshl_b32 s6, s57, 12\ns_lshl_b32 s7, s56, 8\ns_add_u32 s6, s6, s7\ns_add_u32 s6, s6, {E6}')
pub24(44,'v163','s6','0xffff')
a('s_branch CLRD\nCLR7:\ns_cmp_ge_u32 s3, 224\ns_cbranch_scc1 CLRD')
e5addr(); pub24(44,'v163','s6','0xffff')
a('CLRD:\ns_branch NOP1LD\nCLRW:\ns_waitcnt vmcnt(0)\ns_branch P1MID')
a.label('LOADER')
def stream(ptr,nbytes,vo,S,BS,nblk,lds,N,flag=True):
    srd(40,ptr,nbytes)
    a(f's_mov_b32 m0, {lds}\ns_add_u32 s51, s50, {nblk}')
    L=a.newl(); a.label(L)
    for t in range(4):
        a(f'buffer_load_dwordx4 {vo[t]}, s[40:43], s6 offen{P["NT"]} lds\ns_add_u32 m0, m0, 0x400\ns_add_u32 s6, s6, {S if t<3 else BS-3*S}')
    a('s_add_u32 s50, s50, 1')
    if flag: a(f's_sub_u32 s7, s50, {N//4}\nv_mov_b32 v14, s7\ns_waitcnt vmcnt({N})\nds_max_i32 v15, v14')
    a(f's_cmp_lt_u32 s50, s51\ns_cbranch_scc1 {L}')
def drain(N):
    for k in range(N-4,-1,-4): a(f's_sub_u32 s7, s50, {k//4}\nv_mov_b32 v14, s7\ns_waitcnt vmcnt({k})\nds_max_i32 v15, v14')
def waitfree(addr,n,N):
    D=a.newl()
    a(f'ds_read_b32 v14, v15 offset:{addr-FL}\ns_waitcnt lgkmcnt(0)\nv_cmp_gt_i32 vcc, {n}, v14\ns_cbranch_vccz {D}')
    drain(N); spin(addr,n); a.label(D)
a('''v_lshl_add_u32 v3, v2, 15, v9
s_lshl_b32 s6, s55, 21
s_lshl_b32 s7, s54, 7
s_add_u32 s6, s6, s7
s_mov_b32 s50, 0''')
stream(14,8388608,['v3']*4,8192,32*8192,8,R0,32,False)
a('''v_lshrrev_b32 v4, 4, v1
v_and_b32 v5, 15, v1
v_xor_b32 v5, v5, v4
v_lshlrev_b32 v5, 4, v5
v_lshl_add_u32 v4, v4, 8, v5
v_xor_b32 v5, 64, v4
v_xor_b32 v6, 128, v4
v_xor_b32 v7, 192, v4
s_lshl_b32 s61, s55, 24
s_lshl_b32 s7, s54, 14
s_add_u32 s61, s61, s7
s_add_u32 s61, s61, %d
s_mov_b32 s6, s61
s_barrier'''%(61440*256))
if P['DIAG']: srd(36,34,DG+0x100000)
KV=['v4','v5','v6','v7']
stream(10,67108864,KV,1024,4096,4,RK,P['N0']); stamp(0)
a('s_mov_b32 s6, s61'); stream(12,67108864,KV,1024,4096,4,RV,P['N1']); stamp(1)
a('v_mul_u32_u24 v3, 49152, v2\nv_add_u32 v3, v3, v9\ns_mul_i32 s6, s55, 3145728\ns_lshl_b32 s7, s54, 7\ns_add_u32 s6, s6, s7\ns_add_u32 s6, s6, 4096')
stream(28,12582912,['v3']*4,12288,32*12288,8,R2,P['N1']); stamp(2)
a('v_lshl_add_u32 v8, v2, 13, v9\ns_lshl_b32 s6, s57, 19\ns_lshl_b32 s7, s56, 7\ns_add_u32 s6, s6, s7')
stream(16,8388608,['v8']*4,2048,32*2048,8,R3,P['N2']); stamp(3)
a('s_cmp_ge_u32 s3, 224\ns_cbranch_scc1 NOP5')
waitfree(F_FR0,12,P['N2'])
a('''v_mul_u32_u24 v3, 28672, v2
v_add_u32 v3, v3, v9
s_mul_i32 s6, s58, 3670016
s_lshl_b32 s7, s60, 7
s_add_u32 s6, s6, s7
s_cmp_eq_u32 s59, 1
s_cselect_b32 s62, s22, s20
s_cselect_b32 s63, s23, s21''')
stream(62,7340032,['v3']*4,7168,32*7168,16,R0,P['N3']); stamp(4)
a('s_branch YESP5'); a.label('NOP5'); drain(P['N2']); a('s_mov_b32 s50, 48'); a.label('YESP5')
waitfree(F_FR2,8,P['N3'])
a('s_mul_i32 s6, s57, 458752\ns_lshl_b32 s7, s56, 7\ns_add_u32 s6, s6, s7')
stream(24,7340032,['v8']*4,2048,32*2048,7,R2,P['N3'])
drain(P['N3']); stamp(5)
flush()
a('s_waitcnt lgkmcnt(0)\ns_endpgm')
ref=open('cdna_kernels/'+NAME+'.s.ref').read()
head=ref[:ref.index('; Override launch')]
txt=head+('; DIAG\n' if P['DIAG'] else '')+f'''; @launch grid=(256,1,1) block=(576,1,1) lds={LDSZ}
.amdgcn_target "amdgcn-amd-amdhsa--gfx950"
.text
.globl {NAME}_kernel
.p2align 8
.type {NAME}_kernel,@function
{NAME}_kernel:
'''+a.text()+f'''.section .rodata,"a"
.p2align 6
.amdhsa_kernel {NAME}_kernel
  .amdhsa_next_free_vgpr %d
  .amdhsa_next_free_sgpr 96
  .amdhsa_accum_offset %d
  .amdhsa_group_segment_fixed_size 0
  .amdhsa_kernarg_size 112
  .amdhsa_user_sgpr_count 2
  .amdhsa_user_sgpr_kernarg_segment_ptr 1
  .amdhsa_system_sgpr_workgroup_id_x 1
.end_amdhsa_kernel
'''%((168,168))
open(sys.argv[1],'w').write(txt)
```

```python
import sys,struct
from asmlib import Asm
P=dict(DIAG=0,NT=' nt',N0=32,N1=20,N2=20,N3=20,SLEEP=1,PRESPIN=1,WARM=0,PRE3=0,PRE4=0,E3PRE=0)
for a in sys.argv[2:]:
    k,v=a.split('='); P[k]=v if k=='NT' else int(v)
if P['NT']=='0': P['NT']=''
NAME='adaLN_cond__sliding_block_cached__geglu_ffn__decode'
def f2u(x): return '0x%08x'%struct.unpack('<I',struct.pack('<f',x))[0]
E1,E2,E3O,E3M,M2,E4,E5,E6,WSEND=0x1000,0x21000,0x41000,0x141000,0x149000,0x159000,0x169000,0x177000,0x187000
DG=0x190000
R0,RK,RV,R2,R3,W=0,32768,65536,81920,114688,147456
FL=W; RED0=W+128; RED1=RED0+4096; QL=RED1+4096; SC=QL+2176; X2=QL; LDSZ=SC+2176
F_LAND,F_FR0,F_FR2,C_P1,C_P2,C_Q,C_S,C_M2,C_P4,C_X,C_P5,C_P6,C_O=[FL+4*i for i in range(13)]
a=Asm()
T=['s5','s44','s45','s46']
def v(i,n=1): return f'v{i}' if n==1 else f'v[{i}:{i+n-1}]'
def srd(d,p,n): a(f's_mov_b32 s{d}, s{p}\ns_mov_b32 s{d+1}, s{p+1}\ns_mov_b32 s{d+2}, {n}\ns_mov_b32 s{d+3}, 0x20000')
def stamp(i,ins='s_memrealtime'):
    if P['DIAG']:
        if ins=='cnt': a(f'v_writelane_b32 v126, s49, {i}')
        else: a(f'{ins} s[76:77]\ns_waitcnt lgkmcnt(0)\nv_writelane_b32 v126, s76, {i}')
def flush():
    if P['DIAG']==2:
        L=a.newl(); srd(36,32,256)
        a(f's_cmp_lg_u32 s3, 0\ns_cbranch_scc1 {L}\ns_cmp_lg_u32 s4, 7\ns_cbranch_scc1 {L}\nv_readlane_b32 s78, v126, 29\ns_mov_b64 exec, -1\ns_nop 4\nv_subrev_u32 v126, s78, v126\nv_lshlrev_b32 v127, 1, v1\ns_mov_b32 exec_hi, 0\nbuffer_store_short v126, v127, s[36:39], 0 offen'); a.label(L)
    elif P['DIAG']:
        srd(36,34,DG+0x100000)
        a(f's_mul_i32 s78, s3, 2304\ns_lshl_b32 s79, s4, 8\ns_add_u32 s78, s78, s79\ns_add_u32 s78, s78, {DG}\ns_mov_b64 exec, -1\nv_lshlrev_b32 v127, 2, v1\nbuffer_store_dword v126, v127, s[36:39], s78 offen')
def budget(): a('s_sub_u32 s49, s49, 1\ns_cbranch_scc1 TIMEOUT')
def spin(addr,thr):
    L=a.newl(); a.label(L); budget()
    a(f'ds_read_b32 v14, v15 offset:{addr-FL}\ns_waitcnt lgkmcnt(0)\nv_cmp_gt_i32 vcc, {thr}, v14\ns_cbranch_vccnz {L}')
def arrive(addr):
    a(f's_waitcnt lgkmcnt(0)\ns_mov_b64 exec, 1\nds_add_u32 v15, v162 offset:{addr-FL}\ns_mov_b64 exec, -1')
def landed(c):
    if isinstance(c,int): a(f's_add_u32 s50, s4, {c+1}'); c='s50'
    spin(F_LAND,c)
def chk(regs,fmt,acc='v165'):
    if fmt==0:
        R=[g+i for g in regs for i in range(4)]
        a(f'v_max3_u32 {acc}, v{R[0]}, v{R[1]}, v{R[2]}')
        for i in range(3,len(R)-1,2): a(f'v_max3_u32 {acc}, {acc}, v{R[i]}, v{R[i+1]}')
        a(f'v_max_u32 {acc}, {acc}, v{R[-1]}\nv_cmp_eq_u32 vcc, -1, {acc}'); return
    first=True
    for g in regs:
        if fmt==24: lst=[(g+i,T[i]) for i in range(4)]
        else: lst=[(g+1,T[0]),(g+3,T[0])]
        for r,t in lst:
            if first: a(f'v_xor_b32 {acc}, {t}, v{r}'); first=False
            else: a(f'v_bitop3_b32 {acc}, {acc}, v{r}, {t} bitop3:0xf6')
    if fmt==24: a(f'v_and_b32 {acc}, 0xff, {acc}')
    a(f'v_cmp_ne_u32 vcc, 0, {acc}')
def poll(loads,fmt,scout=None,plain=True):
    D=a.newl()
    def body(ls,pl):
        for g,t in ls: a(t.replace(' sc1','') if pl else t)
        a('s_waitcnt vmcnt(0)'); chk([g for g,t in ls],fmt)
    def again(L):
        budget()
        if P['SLEEP']: a(f's_sleep {P["SLEEP"]}')
        a(f's_branch {L}')
    if scout:
        ex,txt,cmp_=scout
        L=a.newl(); E=a.newl(); a('s_mov_b32 exec_hi, 0' if ex=='LO' else f's_mov_b64 exec, {ex}'); a.label(L)
        a(txt+'\ns_waitcnt vmcnt(0)\n'+cmp_+f'\ns_cbranch_vccz {E}'); again(L); a.label(E); a('s_mov_b64 exec, -1')
    if plain: body(loads,True); a(f's_cbranch_vccz {D}')
    L=a.newl(); a.label(L); body(loads,False); a(f's_cbranch_vccz {D}'); again(L); a.label(D)
def sc(va,so): return f'buffer_load_dwordx2 v[124:125], {va}, s[36:39], {so} offen sc1'
TG='v_cmp_ne_u32 vcc, s5, v125'
SN='v_max_u32 v165, v124, v125\nv_cmp_eq_u32 vcc, -1, v165'
def ld(g,va,so,off=0): return (g,f'buffer_load_dwordx4 {v(g,4)}, {va}, s[36:39], {so} offen offset:{off} sc1')
def mask(g,n=4):
    for i in range(n): a(f'v_and_b32 v{g+i}, v7, v{g+i}')
DP=['quad_perm:[1,0,3,2]','quad_perm:[2,3,0,1]','row_half_mirror','row_mirror']
def dppred(regs,steps,op='add'):
    for s_ in steps:
        for r in regs: a(f'v_{op}_f32_dpp v{r}, v{r}, v{r} {DP[s_]} row_mask:0xf bank_mask:0xf')
def swapred(regs,tmp,op='add',which=(16,32)):
    for w_ in which:
        for i,r in enumerate(regs): a(f'v_mov_b32 v{tmp+i}, v{r}')
        for i,r in enumerate(regs): a(f'v_permlane{w_}_swap_b32 v{r}, v{tmp+i}')
        for i,r in enumerate(regs): a(f'v_{op}_f32 v{r}, v{r}, v{tmp+i}')
def rnd(regs,tmp):
    for i in range(0,len(regs),2): a(f'v_cvt_pk_bf16_f32 v{tmp+i//2}, v{regs[i]}, v{regs[i+1]}')
    for i in range(0,len(regs),2): a(f'v_lshlrev_b32 v{regs[i]}, 16, v{tmp+i//2}\nv_and_b32 v{regs[i+1]}, s48, v{tmp+i//2}')
def rnd1(r): a(f'v_cvt_pk_bf16_f32 v{r}, v{r}, v{r}\nv_and_b32 v{r}, s48, v{r}')
def dup(dst,src):
    for i in range(4): a(f'v_cvt_pk_bf16_f32 v{dst+i}, v{src+i}, v{src+i}')
def unpk(dst,src,n):
    for i in reversed(range(n)): a(f'v_and_b32 v{dst+2*i+1}, s48, v{src+i}\nv_lshlrev_b32 v{dst+2*i}, 16, v{src+i}')
def gemv(hh,wt,first=True):
    for t in range(4):
        A=48+4*(t&1)
        for q in range(4): a(f'v_and_b32 v{A+q}, v{hh+t}, v{3+q}')
        a(f'v_mfma_f32_16x16x32_bf16 v[44:47], {v(A,4)}, {v(wt+4*t,4)}, {"0" if first and t==0 else "v[44:47]"}')
def rdw(dst,base):
    for t in range(4): a(f'ds_read_b128 {v(dst+4*t,4)}, v12 offset:{1024*t}')
def reduce(buf,cnt,n,form,skip,mid=None,ns=8):
    a(f's_mov_b64 exec, s[52:53]\nds_write_b128 v8, v[44:47] offset:{buf-RED0}')
    if mid: a.label(mid)
    a(f'''s_waitcnt lgkmcnt(0)
    s_mov_b64 exec, 1
    ds_add_rtn_u32 v14, v15, v162 offset:{cnt-FL}
    s_mov_b64 exec, -1
    s_waitcnt lgkmcnt(0)
    v_readfirstlane_b32 s50, v14
    s_cmp_lg_u32 s50, {n-1}
    s_cbranch_scc1 {skip}''')
    if form=='A':
        a(f'v_lshlrev_b32 v12, 2, v1\nv_add_u32 v12, {buf}, v12')
        for i in range(ns): a(f'ds_read2st64_b32 {v(96+2*i,2)}, v12 offset0:{2*i} offset1:{2*i+1}')
        a('s_waitcnt lgkmcnt(0)')
        m=2*ns
        while m>2:
            m//=2
            for i in range(0,m,2): a(f'v_pk_add_f32 {v(96+i,2)}, {v(96+i,2)}, {v(96+m+i,2)}')
        a('v_add_f32 v44, v96, v97\nv_mov_b32 v45, s5\nv_mov_b32 v47, s5\nv_lshlrev_b32 v12, 3, v1\nv_mov_b32_dpp v46, v44 quad_perm:[1,0,3,2] row_mask:0xf bank_mask:0xf')
    else:
        for k in range(4): a(f'ds_read_b128 {v(96+4*k,4)}, v10 offset:{buf-RED0+256*k}')
        a('s_waitcnt lgkmcnt(0)')
        a('v_pk_add_f32 v[96:97], v[96:97], v[100:101]\nv_pk_add_f32 v[98:99], v[98:99], v[102:103]')
        a('v_pk_add_f32 v[104:105], v[104:105], v[108:109]\nv_pk_add_f32 v[106:107], v[106:107], v[110:111]')
        a('v_pk_add_f32 v[44:45], v[96:97], v[104:105]\nv_pk_add_f32 v[46:47], v[98:99], v[106:107]')
        swapred([44,45,46,47],96)
def pub24(g,va,so,ex,n=4):
    a(f's_mov_b64 exec, {ex}\nbuffer_store_dwordx{n} {v(g,n)}, {va}, s[36:39], {so} offen sc1\ns_mov_b64 exec, -1')
def stats(X):
    a(f'v_pk_add_f32 v[56:57], {v(X,2)}, {v(X+2,2)}\nv_pk_add_f32 v[58:59], {v(X+4,2)}, {v(X+6,2)}')
    a(f'v_pk_add_f32 v[56:57], v[56:57], {v(X+8,2)}\nv_pk_add_f32 v[58:59], v[58:59], {v(X+10,2)}')
    a(f'v_pk_add_f32 v[56:57], v[56:57], {v(X+12,2)}\nv_pk_add_f32 v[58:59], v[58:59], {v(X+14,2)}')
    a('v_pk_add_f32 v[56:57], v[56:57], v[58:59]\nv_add_f32 v60, v56, v57')
    dppred([60],[0,1,2,3]); swapred([60],62)
    a(f'v_mul_f32 v60, {f2u(-1/1024)}, v60')
    for i in range(0,16,2): a(f'v_pk_add_f32 {v(X+i,2)}, {v(X+i,2)}, v[60:61] op_sel_hi:[1,0]')
    a(f'v_pk_mul_f32 v[56:57], {v(X,2)}, {v(X,2)}\nv_pk_mul_f32 v[58:59], {v(X+2,2)}, {v(X+2,2)}')
    for i in range(4,16,2): a(f'v_pk_fma_f32 {v(56+(i&2),2)}, {v(X+i,2)}, {v(X+i,2)}, {v(56+(i&2),2)}')
    a('v_pk_add_f32 v[56:57], v[56:57], v[58:59]\nv_add_f32 v61, v56, v57')
    dppred([61],[0,1,2,3]); swapred([61],62)
    a(f'v_mul_f32 v61, {f2u(1/1024)}, v61\nv_sub_f32 v60, 0, v60')
    rnd([60,61],62); a(f'v_add_f32 v61, {f2u(1e-5)}, v61'); rnd1(61); a('v_sqrt_f32 v61, v61'); rnd1(61); a('v_rcp_f32 v61, v61')
def norm(X,n,tmp):
    R=list(range(X,X+n))
    for r in R: a(f'v_sub_f32 v{r}, v{r}, v60')
    rnd(R,tmp)
    for r in R: a(f'v_mul_f32 v{r}, v{r}, v61')
    rnd(R,tmp)
def sigm(X,Y,n):
    for i in range(n): a(f'v_exp_f32 v{Y+i}, v{Y+i}')
    for i in range(n): a(f'v_add_f32 v{Y+i}, 1.0, v{Y+i}')
    for i in range(n): a(f'v_rcp_f32 v{Y+i}, v{Y+i}')
    for i in range(n): a(f'v_mul_f32 v{X+i}, v{X+i}, v{Y+i}')
def silu(dst,src):
    unpk(56,src,2)
    for i in range(4): a(f'v_mul_f32 v{60+i}, {f2u(-1.4426950408889634)}, v{56+i}')
    sigm(56,60,4); dup(dst,56)

a('''s_cmp_ge_u32 s2, 256
s_cbranch_scc1 EXIT
s_load_dwordx16 s[8:23], s[0:1], 0
s_load_dwordx8 s[24:31], s[0:1], 64
s_load_dwordx4 s[32:35], s[0:1], 96
v_lshrrev_b32 v2, 6, v0
v_and_b32 v1, 63, v0
s_and_b32 s3, s2, 7
s_lshl_b32 s3, s3, 5
s_lshr_b32 s6, s2, 3
s_add_u32 s3, s3, s6
v_readfirstlane_b32 s4, v2
v_lshrrev_b32 v2, 3, v1
v_and_b32 v9, 7, v1
v_lshlrev_b32 v9, 4, v9
s_mov_b32 s49, 0x200000
s_and_b32 s54, s3, 63
s_lshr_b32 s55, s3, 6
s_and_b32 s56, s3, 15
s_lshr_b32 s57, s3, 4
s_cmp_ge_u32 s3, 112
s_cselect_b32 s58, 1, 0
s_mul_i32 s6, s58, 112
s_sub_u32 s60, s3, s6
s_cmp_ge_u32 s60, 56
s_cselect_b32 s59, 1, 0
s_mul_i32 s6, s59, 56
s_sub_u32 s60, s60, s6
v_mov_b32 v15, %d
v_mov_b32 v162, 1
v_mov_b32 v126, 0
v_mov_b32 v14, 0
v_lshl_add_u32 v12, v1, 2, v15
s_mov_b64 exec, 0xffff
ds_write_b32 v12, v14
s_mov_b64 exec, -1
s_waitcnt lgkmcnt(0)
s_cmp_eq_u32 s4, 8
s_cbranch_scc1 LOADER'''%FL)
stamp(29)
a('''s_lshl_b32 s61, s4, 5
s_lshr_b32 s6, s3, 5
s_lshl_b32 s6, s6, 7
s_add_u32 s62, s6, s61
s_lshl_b32 s6, s55, 8
s_add_u32 s63, s6, s61
v_mul_u32_u24 v12, 49152, v2
v_add_u32 v12, v12, v9
s_mul_i32 s64, s62, 12288
s_and_b32 s6, s3, 31
s_lshl_b32 s6, s6, 7
s_add_u32 s64, s64, s6
v_lshlrev_b32 v13, 3, v2
v_lshlrev_b32 v14, 5, v1
s_lshl_b32 s65, s62, 1
s_lshl_b32 s66, s63, 1
s_load_dword s5, s[34:35], 0''')
srd(40,28,12582912)
a('s_cmp_ge_u32 s4, 4\ns_cbranch_scc1 CLEAR')
for t in range(4): a(f'buffer_load_dwordx4 {v(64+4*t,4)}, v12, s[40:43], s64 offen{P["NT"]}\ns_add_u32 s64, s64, 12288')
a.label('NOP1LD')
srd(40,26,2048)
a('buffer_load_dwordx2 v[20:21], v13, s[40:43], s65 offen\nbuffer_load_dwordx2 v[22:23], v13, s[40:43], s66 offen')
srd(40,8,2048)
a('''buffer_load_dwordx2 v[24:25], v13, s[40:43], s66 offen
buffer_load_dwordx4 v[136:139], v14, s[40:43], 0 offen
buffer_load_dwordx4 v[140:143], v14, s[40:43], 0 offen offset:16
v_and_b32 v12, 15, v1
v_lshlrev_b32 v12, 4, v12
v_bfe_u32 v14, v1, 4, 1
v_lshl_add_u32 v12, v14, 3, v12
s_lshl_b32 s6, s4, 8
buffer_load_dwordx2 v[156:157], v12, s[40:43], s6 offen''')
srd(36,34,WSEND if not P['DIAG'] else DG+0x100000)
a(f'''s_barrier
s_mov_b32 s48, 0xffff0000
s_mov_b32 s82, 0x55555555
s_mov_b32 s83, s82
v_and_b32 v12, 1, v1
v_cmp_eq_u32 vcc, 1, v12
v_mov_b32 v13, 0xffff
v_mov_b32 v14, s48
v_cndmask_b32 v13, v13, v14, vcc
v_bfe_u32 v12, v1, 1, 2''')
for q in range(4): a(f'v_cmp_eq_u32 vcc, {q}, v12\nv_cndmask_b32 v{3+q}, 0, v13, vcc')
a(f'''v_lshrrev_b32 v12, 5, v1
v_lshlrev_b32 v8, 8, v12
v_lshl_add_u32 v8, v9, 1, v8
v_and_b32 v12, 16, v1
v_add_u32 v8, v8, v12
s_lshl_b32 s6, s4, 9
s_add_u32 s6, s6, {RED0}
v_add_u32 v8, s6, v8
v_and_b32 v163, 15, v1
v_lshlrev_b32 v163, 4, v163
v_lshrrev_b32 v164, 4, v1
v_lshl_add_u32 v10, v164, 10, v163
v_add_u32 v10, {RED0}, v10
s_lshl_b32 s6, s4, 12
v_lshlrev_b32 v11, 4, v1
v_add_u32 v11, s6, v11
s_mov_b32 s52, 0x00ff00ff
s_mov_b32 s53, 0xff00ff00
s_waitcnt lgkmcnt(0)
s_add_u32 s5, s5, 1
''')
for q in range(4): a(f'v_and_b32 v{156+2+q}, 0x3f803f80, v{3+q}')
stamp(0); stamp(30,'s_memtime')
a('s_cmp_ge_u32 s4, 4\ns_cbranch_scc1 CLRW\ns_waitcnt vmcnt(5)')
silu(16,20)
stamp(1)
gemv(16,64)
reduce(RED0,C_P1,8,'A','P1DONE','P1MID',4)
a(f'''s_and_b32 s6, s3, 31
s_lshl_b32 s6, s6, 12
s_lshr_b32 s7, s3, 5
s_lshl_b32 s7, s7, 9
s_add_u32 s6, s6, s7
s_add_u32 s6, s6, {E1}
s_mov_b64 exec, s[82:83]
buffer_store_dwordx4 v[44:47], v12, s[36:39], s6 offen sc1
s_mov_b64 exec, -1''')
stamp(2)
a.label('P1DONE')
a('s_waitcnt vmcnt(1)')
silu(20,22)
unpk(104,136,8); unpk(16,24,2)
stats(104); norm(16,4,56)
landed(0); a(f'v_add_u32 v12, {R0}, v11'); rdw(64,0); arrive(F_FR0)
a(f'''s_lshr_b32 s6, s63, 6
s_lshl_b32 s6, s6, 12
s_and_b32 s7, s63, 63
s_lshl_b32 s7, s7, 3
s_add_u32 s6, s6, s7
s_add_u32 s6, s6, {E1}
s_add_u32 s7, s6, 65536
v_lshlrev_b32 v12, 5, v9
v_lshl_add_u32 v12, v2, 5, v12''')
stamp(3); stamp(21,'cnt')
a('v_lshlrev_b32 v13, 5, v9\nv_lshl_add_u32 v13, v2, 16, v13')
poll([ld(96,'v12','s6'),ld(100,'v12','s6',16),ld(104,'v12','s7'),ld(108,'v12','s7',16)],8,('0xffff',sc('v13','s6'),TG))
stamp(4); stamp(22,'cnt')
sa=[96,98,100,102]; ca=[104,106,108,110]
dppred(sa+ca,[0,1,2]); rnd(sa+ca,56)
for r in ca: a(f'v_add_f32 v{r}, 1.0, v{r}')
rnd(ca,56)
for i in range(4): a(f'v_mul_f32 v{16+i}, v{16+i}, v{ca[i]}')
rnd([16,17,18,19],56)
for i in range(4): a(f'v_add_f32 v{16+i}, v{16+i}, v{sa[i]}')
dup(56,16); gemv(56,64)
reduce(RED1,C_P2,8,'A','P2DONE')
a(f'''s_lshl_b32 s6, s54, 11
s_lshl_b32 s7, s55, 9
s_add_u32 s6, s6, s7
s_add_u32 s6, s6, {E2}
s_mov_b64 exec, s[82:83]
buffer_store_dwordx4 v[44:47], v12, s[36:39], s6 offen sc1
s_mov_b64 exec, -1''')
stamp(5)
a.label('P2DONE')
a('s_cmp_ge_u32 s4, 4\ns_cbranch_scc1 NOK')
landed(8)
a(f'''v_and_b32 v13, 15, v1
v_xor_b32 v12, v164, v13
v_lshlrev_b32 v12, 4, v12
v_lshl_add_u32 v12, v13, 8, v12
s_lshl_b32 s6, s4, 12
s_add_u32 s6, s6, {RK}
v_add_u32 v12, s6, v12''')
for s_ in range(4): a(f'v_xor_b32 v13, {64*s_}, v12\nds_read_b128 {v(136+4*s_,4)}, v13')
arrive(F_FR0)
a.label('NOK')
a('s_mov_b32 s50, 16'); landed('s50')
a(f'''v_bfe_u32 v12, v1, 2, 2
v_lshl_add_u32 v13, v164, 3, v12
v_and_b32 v14, 15, v13
v_bfe_u32 v12, v1, 1, 1
s_lshl_b32 s6, s4, 1
v_add_u32 v12, s6, v12
v_xor_b32 v12, v12, v14
v_lshlrev_b32 v12, 4, v12
v_lshl_add_u32 v12, v13, 8, v12
v_and_b32 v13, 1, v1
v_lshl_add_u32 v12, v13, 3, v12
v_add_u32 v12, {RV}, v12
v_xor_b32 v13, 64, v12
ds_read_b64_tr_b16 v[128:129], v12
ds_read_b64_tr_b16 v[130:131], v13 offset:1024
ds_read_b64_tr_b16 v[132:133], v12 offset:8192
ds_read_b64_tr_b16 v[134:135], v13 offset:9216
s_lshl_b32 s6, s55, 15
s_lshl_b32 s7, s4, 12
s_add_u32 s6, s6, s7
s_add_u32 s6, s6, {E2}
v_and_b32 v13, 31, v1
v_lshlrev_b32 v13, 4, v13
v_lshrrev_b32 v12, 5, v1
v_lshl_add_u32 v12, v12, 11, v13''')
stamp(6); stamp(23,'cnt')
a('v_lshlrev_b32 v13, 9, v1')
poll([ld(96+4*k,'v12','s6',512*k) for k in range(4)],8,('0xff',sc('v13','s6'),TG))
stamp(7); stamp(24,'cnt')
a(f'''v_add_f32 v96, v96, v100
v_add_f32 v98, v98, v102
v_add_f32 v104, v104, v108
v_add_f32 v106, v106, v110
v_add_f32 v96, v96, v104
v_add_f32 v98, v98, v106
s_mul_i32 s6, s4, 272
s_add_u32 s6, s6, {QL}
v_lshl_add_u32 v12, v1, 2, s6
v_cvt_pk_bf16_f32 v96, v96, v98
ds_write_b32 v12, v96''')
arrive(C_Q)
a(f'''v_and_b32 v13, 7, v1
v_mul_u32_u24 v13, 272, v13
s_cmp_ge_u32 s4, 4
s_cbranch_scc1 NOQK
v_lshl_add_u32 v12, v164, 4, v13
v_add_u32 v12, {QL}, v12''')
spin(C_Q,8)
for s_ in range(4): a(f'ds_read_b128 {v(96+4*s_,4)}, v12 offset:{64*s_}')
for s_ in range(4): a(f's_waitcnt lgkmcnt({3-s_})\nv_mfma_f32_16x16x32_bf16 v[44:47], {v(136+4*s_,4)}, {v(96+4*s_,4)}, {"0" if s_==0 else "v[44:47]"}')
a(f's_lshl_b32 s6, s4, 6\ns_add_u32 s6, s6, {SC-QL}\nv_add_u32 v12, s6, v12')
rnd([44,45,46,47],56)
for i in range(4): a(f'v_mul_f32 v{44+i}, 0x3db504f3, v{44+i}')
rnd([44,45,46,47],56)
a('s_mov_b32 exec_lo, s52\ns_mov_b32 exec_hi, s52\nds_write_b128 v12, v[44:47]\ns_mov_b64 exec, -1')
arrive(C_S)
a.label('NOQK')
a(f'v_lshl_add_u32 v12, v164, 5, v13\nv_add_u32 v12, {SC}, v12')
spin(C_S,4)
for i,o in enumerate([0,16,128,144]): a(f'ds_read_b128 {v(96+4*i,4)}, v12 offset:{o}')
a('s_waitcnt lgkmcnt(0)\nv_max3_f32 v56, v96, v97, v98')
for i in range(99,111,2): a(f'v_max3_f32 v56, v56, v{i}, v{i+1}')
a('v_max_f32 v56, v56, v111'); swapred([56],58,'max')
a(f'v_mul_f32 v57, {f2u(-1.4426950408889634)}, v56\ns_mov_b32 s6, 0x3fb8aa3b')
for i in range(96,112): a(f'v_fma_f32 v{i}, v{i}, s6, v57')
for i in range(96,112): a(f'v_exp_f32 v{i}, v{i}')
for i in range(8): a(f'v_cvt_pk_bf16_f32 v{112+i}, v{96+2*i}, v{97+2*i}')
a('v_mfma_f32_16x16x32_bf16 v[44:47], v[128:131], v[112:115], 0\nv_mfma_f32_16x16x32_bf16 v[44:47], v[132:135], v[116:119], v[44:47]')
a(f'''s_lshl_b32 s6, s55, 17
s_lshl_b32 s7, s54, 7
s_add_u32 s6, s6, s7
s_lshr_b32 s7, s4, 2
s_lshl_b32 s7, s7, 13
s_add_u32 s6, s6, s7
s_and_b32 s7, s4, 3
s_lshl_b32 s7, s7, 5
s_add_u32 s6, s6, s7
s_add_u32 s6, s6, {E3O}
v_lshlrev_b32 v12, 10, v9
v_lshl_add_u32 v12, v164, 3, v12
s_mov_b32 s50, 0xff
s_mov_b32 s51, 0xff
v_cvt_pk_bf16_f32 v44, v44, v45
v_cvt_pk_bf16_f32 v45, v46, v47
v_mov_b32 v46, v44
v_mov_b32 v47, v45
v_permlane16_swap_b32 v44, v46
v_permlane16_swap_b32 v45, v47''')
pub24(44,'v12','s6','s[50:51]')
a('s_cmp_lg_u32 s4, 0\ns_cbranch_scc1 NOML')
for m in (8,4,2):
    for i in range(0,m,2): a(f'v_pk_add_f32 {v(96+i,2)}, {v(96+i,2)}, {v(96+m+i,2)}')
a('v_add_f32 v57, v96, v97'); swapred([57],58)
a(f'''s_lshl_b32 s6, s55, 12
s_lshl_b32 s7, s54, 3
s_add_u32 s6, s6, s7
s_add_u32 s6, s6, {E3M}
v_lshlrev_b32 v12, 9, v1''')
pub24(56,'v12','s6','0xff',2)
a.label('NOML')
stamp(8)
landed(16); a(f'v_add_u32 v12, {R2}, v11'); rdw(64,0); arrive(F_FR2); gemv(20,64)
reduce(RED0,C_M2,8,'B','M2DONE')
a(f's_lshl_b32 s6, s55, 14\ns_lshl_b32 s7, s54, 8\ns_add_u32 s6, s6, s7\ns_add_u32 s6, s6, {M2}')
pub24(44,'v163','s6','0xffff')
a.label('M2DONE')
stamp(9)
def e4addr(): a(f's_lshr_b32 s6, s56, 1\ns_lshl_b32 s6, s6, 12\ns_lshl_b32 s7, s57, 8\ns_add_u32 s6, s6, s7\ns_and_b32 s7, s56, 1\ns_lshl_b32 s7, s7, 7\ns_add_u32 s6, s6, s7\ns_add_u32 s64, s6, {E4}\ns_mov_b32 s6, s64')
def e5addr(): a(f's_lshl_b32 s6, s59, 1\ns_add_u32 s6, s6, s58\ns_mul_i32 s6, s6, 14336\ns_lshl_b32 s7, s60, 8\ns_add_u32 s6, s6, s7\ns_add_u32 s6, s6, {E5}')
R8='row_ror:8 row_mask:0xf bank_mask:0xf'
landed(24); a(f'v_add_u32 v12, {R3}, v11'); rdw(64,0)
e4addr()
a(f'''s_and_b32 s6, s4, 3
s_lshl_b32 s7, s57, 2
s_add_u32 s6, s6, s7
s_lshr_b32 s7, s6, 1
s_lshl_b32 s7, s7, 9
s_add_u32 s72, s7, {E3M}
s_lshr_b32 s7, s4, 2
v_and_b32 v13, 1, v1
v_xor_b32 v13, s7, v13
v_lshlrev_b32 v13, 8, v13
v_lshl_add_u32 v13, v2, 5, v13
s_lshl_b32 s6, s6, 1
s_add_u32 s6, s6, s7
s_lshl_b32 s6, s6, 12
s_add_u32 s65, s6, {E3O}
v_lshl_add_u32 v12, v2, 9, v9
s_lshr_b32 s6, s4, 1
s_lshl_b32 s6, s6, 9
s_and_b32 s7, s4, 1
s_lshl_b32 s7, s7, 7
s_add_u32 s6, s6, s7
s_add_u32 s6, s6, {RED1}
v_lshl_add_u32 v166, v2, 4, s6
s_lshl_b32 s66, s56, 8
s_add_u32 s66, s66, {M2}
v_lshl_add_u32 v167, v164, 14, v163''')
a('v_lshlrev_b32 v14, 3, v1')
stamp(10); stamp(25,'cnt')
poll([ld(96+4*t,'v12','s65',128*t) for t in range(4)]+[ld(112,'v13','s72'),ld(116,'v13','s72',16)],0,('-1',sc('v14','s72'),SN))
stamp(11); stamp(26,'cnt')
GA=ld(24,'v167','s66'); a(GA[1].replace(' sc1',''))
a(f'v_max3_f32 v58, v112, v114, v116\nv_max_f32 v58, v58, v118'); dppred([58],[0],'max'); a(f'v_max_f32_dpp v58, v58, v58 {R8}'); swapred([58],59,'max')
a(f'v_mul_f32 v58, {f2u(-1.4426950408889634)}, v58\ns_mov_b32 s6, 0x3fb8aa3b')
for t in range(4): a(f'v_fma_f32 v{60+t}, v{112+2*t}, s6, v58')
for t in range(4): a(f'v_exp_f32 v{60+t}, v{60+t}')
dup(60,60)
for t in range(4): a(f'v_mov_b32_dpp v{56+t}, v{60+t} quad_perm:[0,0,2,2] row_mask:0xf bank_mask:0xf')
gemv(56,96)
for t in range(4): a(f'v_and_b32 v{60+t}, s48, v{60+t}')
a('v_mul_f32 v57, v60, v113\nv_fmac_f32 v57, v61, v115\nv_fmac_f32 v57, v62, v117\nv_fmac_f32 v57, v63, v119')
dppred([57],[0]); a(f'v_add_f32_dpp v57, v57, v57 {R8}'); swapred([57],59); a('v_rcp_f32 v57, v57')
for i in range(4): a(f'v_mul_f32 v{44+i}, v{44+i}, v57')
a(f's_mov_b64 exec, s[52:53]\nds_write_b128 v8, v[44:47] offset:{RED1-RED0}'); arrive(C_O); spin(C_O,8)
for i,o in enumerate([0,256,2048,2304]): a(f'ds_read_b128 {v(96+4*i,4)}, v166 offset:{o}')
a('''s_waitcnt lgkmcnt(2)
v_pk_add_f32 v[96:97], v[96:97], v[100:101]
v_pk_add_f32 v[98:99], v[98:99], v[102:103]
s_waitcnt lgkmcnt(0)
v_pk_add_f32 v[104:105], v[104:105], v[108:109]
v_pk_add_f32 v[106:107], v[106:107], v[110:111]
v_pk_add_f32 v[96:97], v[96:97], v[104:105]
v_pk_add_f32 v[98:99], v[98:99], v[106:107]''')
dup(56,96); gemv(56,64)
a('s_waitcnt vmcnt(0)'); chk([24],0); a('s_cbranch_vccz GADONE'); poll([GA],0,plain=False); a.label('GADONE')
swapred([24,25,26,27],96); rnd([24,25,26,27],96)
reduce(RED0,C_P4,8,'B','P4DONE')
a('''v_pk_mul_f32 v[44:45], v[44:45], v[24:25]
v_pk_mul_f32 v[46:47], v[46:47], v[26:27]
v_lshrrev_b32 v12, 1, v163
v_cvt_pk_bf16_f32 v44, v44, v45
v_cvt_pk_bf16_f32 v45, v46, v47
v_mov_b32_dpp v46, v44 quad_perm:[1,0,3,2] row_mask:0xf bank_mask:0xf
v_mov_b32_dpp v47, v45 quad_perm:[1,0,3,2] row_mask:0xf bank_mask:0xf''')
pub24(44,'v12','s64','0x5555')
stamp(12)
a.label('P4DONE')
a(f'''s_cmp_ge_u32 s3, 224
s_cbranch_scc1 P5DONE
s_lshl_b32 s62, s58, 9
s_lshl_b32 s6, s4, 6
s_add_u32 s62, s62, s6
s_lshl_b32 s62, s62, 2
s_add_u32 s6, s62, {M2+4096}
v_and_b32 v12, 3, v1
v_lshlrev_b32 v12, 14, v12
v_bfe_u32 v13, v1, 2, 1
v_lshl_add_u32 v12, v13, 12, v12
v_lshl_add_u32 v12, v2, 4, v12''')
poll([ld(28,'v12','s6'),ld(32,'v12','s6',128)],0)
unpk(152,156,2); dppred(list(range(28,36)),[0,1]); rnd(list(range(28,36)),56)
a('v_cmp_eq_u32 vcc, 1, v13')
for i in range(8): a(f'v_mov_b32_dpp v{96+i}, v{28+i} row_half_mirror row_mask:0xf bank_mask:0xf')
for i in range(8): a(f'v_cndmask_b32 v{36+i}, v{28+i}, v{96+i}, vcc\nv_cndmask_b32 v{28+i}, v{96+i}, v{28+i}, vcc')
for i in range(8): a(f'v_add_f32 v{28+i}, 1.0, v{28+i}')
rnd(list(range(28,36)),56)
e5addr()
a(f'''s_mov_b32 s64, s6
s_lshl_b32 s6, s4, 9
s_add_u32 s6, s6, {X2}
v_lshl_add_u32 v166, v163, 1, s6
v_lshl_add_u32 v166, v164, 4, v166
s_add_u32 s6, s62, {X2}
v_lshl_add_u32 v13, v2, 4, s6
v_lshlrev_b32 v12, 4, v1
v_add_u32 v167, {X2}, v12
s_lshl_b32 s51, s4, 1
s_add_u32 s51, s51, 34
s_lshl_b32 s6, s4, 12
v_add_u32 v16, s6, v11
s_add_u32 s6, s6, {E4}
ds_read_b32 v14, v15
s_waitcnt lgkmcnt(0)
v_cmp_gt_i32 vcc, s51, v14
s_mov_b32 s65, 0
s_cbranch_vccnz NOEARLY
s_mov_b32 s65, 1''')
for t in range(8): a(f'ds_read_b128 {v(64+4*t,4)}, v16 offset:{1024*t}')
a.label('NOEARLY')
a('v_lshlrev_b32 v14, 7, v1')
stamp(13); stamp(27,'cnt')
poll([ld(96+4*n,'v12','s6',1024*n) for n in range(4)],0,('LO',sc('v14','s6'),SN))
stamp(14); stamp(28,'cnt')
for n in range(4): a(f'v_mfma_f32_16x16x32_bf16 v[44:47], v[158:161], {v(96+4*n,4)}, {"v[152:155]" if n==0 else "v[44:47]"}')
a('s_mov_b32 exec_hi, 0\nds_write_b128 v166, v[44:47]')
arrive(C_X); spin(C_X,8)
a('ds_read_b32 v60, v15 offset:%d'%(X2-FL))
for i in range(4): a(f'ds_read_b128 {v(96+4*i,4)}, v167 offset:{1024*i}')
a('ds_read_b128 v[112:115], v13\nds_read_b128 v[116:119], v13 offset:128\ns_waitcnt lgkmcnt(5)')
for i in range(0,16,2):
    if i in (4,8,12): a(f's_waitcnt lgkmcnt({5-i//4})')
    a(f'v_pk_add_f32 {v(96+i,2)}, {v(96+i,2)}, v[60:61] op_sel_hi:[1,0] neg_lo:[0,1] neg_hi:[0,1]')
a('v_pk_add_f32 v[56:57], v[96:97], v[98:99]\nv_pk_mul_f32 v[58:59], v[96:97], v[96:97]\nv_pk_fma_f32 v[58:59], v[98:99], v[98:99], v[58:59]')
for i in range(4,16,2): a(f'v_pk_add_f32 v[56:57], v[56:57], {v(96+i,2)}\nv_pk_fma_f32 v[58:59], {v(96+i,2)}, {v(96+i,2)}, v[58:59]')
a('v_add_f32 v56, v56, v57\nv_add_f32 v57, v58, v59')
dppred([56,57],[0,1,2,3]); swapred([56,57],58)
a(f'''v_mul_f32 v56, {f2u(1/1024)}, v56
v_mul_f32 v57, {f2u(1/1024)}, v57
v_fma_f32 v57, -v56, v56, v57
v_add_f32 v60, v60, v56
v_add_f32 v57, {f2u(1e-5)}, v57
v_rsq_f32 v58, v57
s_waitcnt lgkmcnt(0)''')
for i in range(0,8,2): a(f'v_pk_add_f32 {v(112+i,2)}, {v(112+i,2)}, v[60:61] op_sel_hi:[1,0] neg_lo:[0,1] neg_hi:[0,1]')
for i in range(0,8,2): a(f'v_pk_mul_f32 {v(28+i,2)}, {v(28+i,2)}, v[58:59] op_sel_hi:[1,0]')
for i in range(0,8,2): a(f'v_pk_fma_f32 {v(112+i,2)}, {v(112+i,2)}, {v(28+i,2)}, {v(36+i,2)}')
dup(56,112); dup(60,116)
a('s_cmp_eq_u32 s65, 1\ns_cbranch_scc1 EARLY'); landed('s51')
for t in range(8): a(f'ds_read_b128 {v(64+4*t,4)}, v16 offset:{1024*t}')
a('s_waitcnt lgkmcnt(0)')
a.label('EARLY')
stamp(15)
gemv(56,64); gemv(60,80,False)
reduce(RED0,C_P5,8,'B','P5DONE')
pub24(44,'v163','s64','0xffff')
stamp(16)
a.label('P5DONE')
a(f'v_subrev_u32 v8, {RED0-RV}, v8\nv_subrev_u32 v10, {RED0-RV}, v10')
a('v_mov_b32 v44, 0\nv_mov_b32 v45, 0\nv_mov_b32 v46, 0\nv_mov_b32 v47, 0\ns_cmp_eq_u32 s4, 7\ns_cbranch_scc1 P6RED')
landed(48); a(f'v_add_u32 v12, {R2}, v11'); rdw(64,0)
a(f'''s_mul_i32 s6, s57, 896
s_lshl_b32 s7, s4, 7
s_add_u32 s6, s6, s7
s_add_u32 s6, s6, {E5}
v_and_b32 v13, 3, v2
v_mul_u32_u24 v12, 14336, v13
v_add_u32 v12, v12, v9
v_lshlrev_b32 v13, 2, v2
s_mov_b32 exec_hi, 0''')
stamp(17)
poll([ld(96,'v12','s6')],0,plain=False)
a('s_mov_b64 exec, -1')
stamp(18)
for i in range(4): a(f'v_add_f32_dpp v{104+i}, v{96+i}, v{96+i} {R8}')
for i in range(4): a(f'v_mov_b32 v{108+i}, v{104+i}')
for i in range(4): a(f'v_permlane16_swap_b32 v{104+i}, v{108+i}')
c1=2*0.7978845608028654*1.4426950408889634
a(f's_mov_b32 s6, {f2u(-c1*0.044715)}\nv_mov_b32 v100, {f2u(-c1)}')
for i in range(4): a(f'v_mul_f32 v{96+i}, v{104+i}, v{104+i}')
for i in range(4): a(f'v_fma_f32 v{96+i}, v{96+i}, s6, v100')
for i in range(4): a(f'v_mul_f32 v{96+i}, v{96+i}, v{104+i}')
sigm(104,96,4)
for i in range(4): a(f'v_mul_f32 v{104+i}, v{104+i}, v{108+i}')
dup(60,104)
for i in range(4): a(f'ds_bpermute_b32 v{56+i}, v13, v{60+i}')
a('s_waitcnt lgkmcnt(0)'); gemv(56,64)
a.label('P6RED')
reduce(RED0,C_P6,8,'B','P6DONE')
a(f's_lshl_b32 s6, s57, 12\ns_lshl_b32 s7, s56, 8\ns_add_u32 s6, s6, s7\ns_add_u32 s6, s6, {E6}')
pub24(44,'v163','s6','0xffff')
stamp(19)
a.label('P6DONE')
a(f'''s_cmp_lg_u32 s4, 7
s_cbranch_scc1 TIMEOUT
s_cmp_ge_u32 s3, 64
s_cbranch_scc1 TIMEOUT
s_lshl_b32 s62, s3, 6
s_add_u32 s6, s62, {M2+12288}
v_and_b32 v12, 3, v1
v_lshlrev_b32 v12, 14, v12
v_lshl_add_u32 v12, v164, 4, v12
s_add_u32 s7, s62, {X2}
v_lshl_add_u32 v13, v164, 4, s7
ds_read_b128 v[28:31], v13''')
poll([ld(24,'v12','s6')],0)
dppred([24,25,26,27],[0,1]); rnd([24,25,26,27],56)
a(f's_add_u32 s6, s62, {E6}\nv_lshlrev_b32 v12, 8, v163\nv_lshl_add_u32 v12, v164, 4, v12')
srd(40,30,2048)
a('s_waitcnt lgkmcnt(0)'); poll([ld(96,'v12','s6')],0,plain=False)
dppred([96,97,98,99],[0,1,2,3])
for i in range(4): a(f'v_fma_f32 v{96+i}, v{96+i}, v{24+i}, v{28+i}')
a('''v_cvt_pk_bf16_f32 v96, v96, v97
v_cvt_pk_bf16_f32 v97, v98, v99
v_lshlrev_b32 v12, 3, v164
s_lshl_b32 s6, s3, 5
s_mov_b32 exec_lo, 0x10001
s_mov_b32 exec_hi, 0x10001
buffer_store_dwordx2 v[96:97], v12, s[40:43], s6 offen''')
stamp(20); stamp(31,'s_memtime')
a('''s_cmp_lg_u32 s3, 0
s_cbranch_scc1 TIMEOUT
s_mov_b64 exec, 1
v_mov_b32 v12, 0
v_mov_b32 v13, s5
buffer_store_dword v13, v12, s[36:39], 0 offen sc1
TIMEOUT:''')
flush()
a('EXIT:\ns_endpgm')
a.label('CLEAR')
srd(36,34,WSEND)
a('v_and_b32 v163, 15, v1\nv_lshlrev_b32 v163, 4, v163')
a(f'''v_mov_b32 v44, -1
v_mov_b32 v45, -1
v_mov_b32 v46, -1
v_mov_b32 v47, -1
s_cmp_eq_u32 s4, 4
s_cbranch_scc0 CLR5
s_lshl_b32 s6, s55, 17
s_lshl_b32 s7, s54, 7
s_add_u32 s6, s6, s7
s_add_u32 s6, s6, {E3O}
s_add_u32 s7, s6, 65536
v_lshl_add_u32 v12, v2, 13, v9
buffer_store_dwordx4 v[44:47], v12, s[36:39], s6 offen sc1
buffer_store_dwordx4 v[44:47], v12, s[36:39], s7 offen sc1
s_branch CLRD
CLR5:
s_cmp_eq_u32 s4, 5
s_cbranch_scc0 CLR6
s_lshl_b32 s6, s55, 12
s_lshl_b32 s7, s54, 3
s_add_u32 s6, s6, s7
s_add_u32 s6, s6, {E3M}
v_lshlrev_b32 v12, 9, v1''')
pub24(44,'v12','s6','0xff',2)
a(f's_lshl_b32 s6, s55, 14\ns_lshl_b32 s7, s54, 8\ns_add_u32 s6, s6, s7\ns_add_u32 s6, s6, {M2}')
pub24(44,'v163','s6','0xffff')
a('s_branch CLRD\nCLR6:\ns_cmp_eq_u32 s4, 6\ns_cbranch_scc0 CLR7')
e4addr(); pub24(44,'v163','s6','0xff')
a(f's_lshl_b32 s6, s57, 12\ns_lshl_b32 s7, s56, 8\ns_add_u32 s6, s6, s7\ns_add_u32 s6, s6, {E6}')
pub24(44,'v163','s6','0xffff')
a('s_branch CLRD\nCLR7:\ns_cmp_ge_u32 s3, 224\ns_cbranch_scc1 CLRD')
e5addr(); pub24(44,'v163','s6','0xffff')
a('CLRD:\ns_branch NOP1LD\nCLRW:\ns_waitcnt vmcnt(0)\ns_branch P1MID')
a.label('LOADER')
def stream(ptr,nbytes,vo,S,BS,nblk,lds,N,flag=True):
    srd(40,ptr,nbytes)
    a(f's_mov_b32 m0, {lds}\ns_add_u32 s51, s50, {nblk}')
    L=a.newl(); a.label(L)
    for t in range(4):
        a(f'buffer_load_dwordx4 {vo[t]}, s[40:43], s6 offen{P["NT"]} lds\ns_add_u32 m0, m0, 0x400\ns_add_u32 s6, s6, {S if t<3 else BS-3*S}')
    a('s_add_u32 s50, s50, 1')
    if flag: a(f's_sub_u32 s7, s50, {N//4}\nv_mov_b32 v14, s7\ns_waitcnt vmcnt({N})\nds_max_i32 v15, v14')
    a(f's_cmp_lt_u32 s50, s51\ns_cbranch_scc1 {L}')
def drain(N):
    for k in range(N-4,-1,-4): a(f's_sub_u32 s7, s50, {k//4}\nv_mov_b32 v14, s7\ns_waitcnt vmcnt({k})\nds_max_i32 v15, v14')
def waitfree(addr,n,N):
    D=a.newl()
    a(f'ds_read_b32 v14, v15 offset:{addr-FL}\ns_waitcnt lgkmcnt(0)\nv_cmp_gt_i32 vcc, {n}, v14\ns_cbranch_vccz {D}')
    drain(N); spin(addr,n); a.label(D)
a('''v_lshl_add_u32 v3, v2, 15, v9
s_lshl_b32 s6, s55, 21
s_lshl_b32 s7, s54, 7
s_add_u32 s6, s6, s7
s_mov_b32 s50, 0''')
stream(14,8388608,['v3']*4,8192,32*8192,8,R0,32,False)
a('''v_lshrrev_b32 v4, 4, v1
v_and_b32 v5, 15, v1
v_xor_b32 v5, v5, v4
v_lshlrev_b32 v5, 4, v5
v_lshl_add_u32 v4, v4, 8, v5
v_xor_b32 v5, 64, v4
v_xor_b32 v6, 128, v4
v_xor_b32 v7, 192, v4
s_lshl_b32 s61, s55, 24
s_lshl_b32 s7, s54, 14
s_add_u32 s61, s61, s7
s_add_u32 s61, s61, %d
s_mov_b32 s6, s61
s_barrier'''%(61440*256))
if P['DIAG']: srd(36,34,DG+0x100000)
KV=['v4','v5','v6','v7']
stream(10,67108864,KV,1024,4096,4,RK,P['N0']); stamp(0)
a('s_mov_b32 s6, s61'); stream(12,67108864,KV,1024,4096,4,RV,P['N1']); stamp(1)
a('v_mul_u32_u24 v3, 49152, v2\nv_add_u32 v3, v3, v9\ns_mul_i32 s6, s55, 3145728\ns_lshl_b32 s7, s54, 7\ns_add_u32 s6, s6, s7\ns_add_u32 s6, s6, 4096')
stream(28,12582912,['v3']*4,12288,32*12288,8,R2,P['N1']); stamp(2)
a('v_lshl_add_u32 v8, v2, 13, v9\ns_lshl_b32 s6, s57, 19\ns_lshl_b32 s7, s56, 7\ns_add_u32 s6, s6, s7')
stream(16,8388608,['v8']*4,2048,32*2048,8,R3,P['N2']); stamp(3)
a('s_cmp_ge_u32 s3, 224\ns_cbranch_scc1 NOP5')
waitfree(F_FR0,12,P['N2'])
a('''v_mul_u32_u24 v3, 28672, v2
v_add_u32 v3, v3, v9
s_mul_i32 s6, s58, 3670016
s_lshl_b32 s7, s60, 7
s_add_u32 s6, s6, s7
s_cmp_eq_u32 s59, 1
s_cselect_b32 s62, s22, s20
s_cselect_b32 s63, s23, s21''')
stream(62,7340032,['v3']*4,7168,32*7168,16,R0,P['N3']); stamp(4)
a('s_branch YESP5'); a.label('NOP5'); drain(P['N2']); a('s_mov_b32 s50, 48'); a.label('YESP5')
waitfree(F_FR2,8,P['N3'])
a('s_mul_i32 s6, s57, 458752\ns_lshl_b32 s7, s56, 7\ns_add_u32 s6, s6, s7')
stream(24,7340032,['v8']*4,2048,32*2048,7,R2,P['N3'])
drain(P['N3']); stamp(5)
flush()
a('s_waitcnt lgkmcnt(0)\ns_endpgm')
ref=open('cdna_kernels/'+NAME+'.s.ref').read()
head=ref[:ref.index('; Override launch')]
txt=head+('; DIAG\n' if P['DIAG'] else '')+f'''; @launch grid=(256,1,1) block=(576,1,1) lds={LDSZ}
.amdgcn_target "amdgcn-amd-amdhsa--gfx950"
.text
.globl {NAME}_kernel
.p2align 8
.type {NAME}_kernel,@function
{NAME}_kernel:
'''+a.text()+f'''.section .rodata,"a"
.p2align 6
.amdhsa_kernel {NAME}_kernel
  .amdhsa_next_free_vgpr %d
  .amdhsa_next_free_sgpr 96
  .amdhsa_accum_offset %d
  .amdhsa_group_segment_fixed_size 0
  .amdhsa_kernarg_size 112
  .amdhsa_user_sgpr_count 2
  .amdhsa_user_sgpr_kernarg_segment_ptr 1
  .amdhsa_system_sgpr_workgroup_id_x 1
.end_amdhsa_kernel
'''%((168,168))
open(sys.argv[1],'w').write(txt)
```

```python
import sys,struct
from asmlib import Asm
P=dict(DIAG=0,NT=' nt',N0=32,N1=20,N2=20,N3=20,SLEEP=1,PRESPIN=1,WARM=0,PRE3=0,PRE4=0,E3PRE=0,GK=0,GV=0,GM=0,G4=0,G5=0,G6=0,TH=8,N4=12,NV=0,NM=0,ORD=0,SBE=1)
for a in sys.argv[2:]:
    k,v=a.split('='); P[k]=v if k=='NT' else int(v)
if P['NT']=='0': P['NT']=''
NAME='adaLN_cond__sliding_block_cached__geglu_ffn__decode'
def f2u(x): return '0x%08x'%struct.unpack('<I',struct.pack('<f',x))[0]
E1,E2,E3O,E3M,M2,E4,E5,E6,WSEND=0x1000,0x21000,0x41000,0x141000,0x149000,0x159000,0x169000,0x177000,0x187000
DG=0x190000
R0,RK,RV,R2,R3,W=0,32768,65536,81920,114688,147456
FL=W; RED0=W+128; RED1=RED0+4096; QL=RED1+4096; SC=QL+2176; X2=QL; LDSZ=SC+2176
F_LAND,F_FR0,F_FR2,C_P1,C_P2,C_Q,C_S,C_M2,C_P4,C_X,C_P5,C_P6,C_O=[FL+4*i for i in range(13)]
G=[0,FL+52,FL+56,FL+60]
GU={P[k] for k in ('GK','GV','GM','G4','G5','G6')}
P['NV']=P['NV'] or P['N1']; P['NM']=P['NM'] or P['N1']
a=Asm()
T=['s5','s44','s45','s46']
def v(i,n=1): return f'v{i}' if n==1 else f'v[{i}:{i+n-1}]'
def srd(d,p,n): a(f's_mov_b32 s{d}, s{p}\ns_mov_b32 s{d+1}, s{p+1}\ns_mov_b32 s{d+2}, {n}\ns_mov_b32 s{d+3}, 0x20000')
def stamp(i,ins='s_memrealtime'):
    if P['DIAG']:
        if ins=='cnt': a(f'v_writelane_b32 v126, s49, {i}')
        else: a(f'{ins} s[76:77]\ns_waitcnt lgkmcnt(0)\nv_writelane_b32 v126, s76, {i}')
def flush():
    if P['DIAG']==2:
        L=a.newl(); srd(36,32,256)
        a(f's_cmp_lg_u32 s3, 0\ns_cbranch_scc1 {L}\ns_cmp_lg_u32 s4, 7\ns_cbranch_scc1 {L}\nv_readlane_b32 s78, v126, 29\ns_mov_b64 exec, -1\ns_nop 4\nv_subrev_u32 v126, s78, v126\nv_lshlrev_b32 v127, 1, v1\ns_mov_b32 exec_hi, 0\nbuffer_store_short v126, v127, s[36:39], 0 offen'); a.label(L)
    elif P['DIAG']:
        srd(36,34,DG+0x100000)
        a(f's_mul_i32 s78, s3, 2304\ns_lshl_b32 s79, s4, 8\ns_add_u32 s78, s78, s79\ns_add_u32 s78, s78, {DG}\ns_mov_b64 exec, -1\nv_lshlrev_b32 v127, 2, v1\nbuffer_store_dword v126, v127, s[36:39], s78 offen')
def budget(): a('s_sub_u32 s49, s49, 1\ns_cbranch_scc1 TIMEOUT')
def spin(addr,thr):
    L=a.newl(); a.label(L); budget()
    a(f'ds_read_b32 v14, v15 offset:{addr-FL}\ns_waitcnt lgkmcnt(0)\nv_cmp_gt_i32 vcc, {thr}, v14\ns_cbranch_vccnz {L}')
def arrive(addr):
    a(f's_waitcnt lgkmcnt(0)\ns_mov_b64 exec, 1\nds_add_u32 v15, v162 offset:{addr-FL}\ns_mov_b64 exec, -1')
def landed(c):
    if isinstance(c,int): a(f's_add_u32 s50, s4, {c+1}'); c='s50'
    spin(F_LAND,c)
def chk(regs,fmt,acc='v165'):
    if fmt==0:
        R=[g+i for g in regs for i in range(4)]
        a(f'v_max3_u32 {acc}, v{R[0]}, v{R[1]}, v{R[2]}')
        for i in range(3,len(R)-1,2): a(f'v_max3_u32 {acc}, {acc}, v{R[i]}, v{R[i+1]}')
        a(f'v_max_u32 {acc}, {acc}, v{R[-1]}\nv_cmp_eq_u32 vcc, -1, {acc}'); return
    first=True
    for g in regs:
        if fmt==24: lst=[(g+i,T[i]) for i in range(4)]
        else: lst=[(g+1,T[0]),(g+3,T[0])]
        for r,t in lst:
            if first: a(f'v_xor_b32 {acc}, {t}, v{r}'); first=False
            else: a(f'v_bitop3_b32 {acc}, {acc}, v{r}, {t} bitop3:0xf6')
    if fmt==24: a(f'v_and_b32 {acc}, 0xff, {acc}')
    a(f'v_cmp_ne_u32 vcc, 0, {acc}')
def poll(loads,fmt,scout=None,plain=True):
    D=a.newl()
    def body(ls,pl):
        for g,t in ls: a(t.replace(' sc1','') if pl else t)
        a('s_waitcnt vmcnt(0)'); chk([g for g,t in ls],fmt)
    def again(L):
        budget()
        if P['SLEEP']: a(f's_sleep {P["SLEEP"]}')
        a(f's_branch {L}')
    if scout:
        ex,txt,cmp_=scout
        L=a.newl(); E=a.newl(); a('s_mov_b32 exec_hi, 0' if ex=='LO' else f's_mov_b64 exec, {ex}'); a.label(L)
        a(txt+'\ns_waitcnt vmcnt(0)\n'+cmp_+f'\ns_cbranch_vccz {E}'); again(L); a.label(E); a('s_mov_b64 exec, -1')
    if plain: body(loads,True); a(f's_cbranch_vccz {D}')
    L=a.newl(); a.label(L); body(loads,False); a(f's_cbranch_vccz {D}'); again(L); a.label(D)
def sc(va,so): return f'buffer_load_dwordx2 v[124:125], {va}, s[36:39], {so} offen sc1'
TG='v_cmp_ne_u32 vcc, s5, v125'
SN='v_max_u32 v165, v124, v125\nv_cmp_eq_u32 vcc, -1, v165'
def ld(g,va,so,off=0): return (g,f'buffer_load_dwordx4 {v(g,4)}, {va}, s[36:39], {so} offen offset:{off} sc1')
def mask(g,n=4):
    for i in range(n): a(f'v_and_b32 v{g+i}, v7, v{g+i}')
DP=['quad_perm:[1,0,3,2]','quad_perm:[2,3,0,1]','row_half_mirror','row_mirror']
def dppred(regs,steps,op='add'):
    for s_ in steps:
        for r in regs: a(f'v_{op}_f32_dpp v{r}, v{r}, v{r} {DP[s_]} row_mask:0xf bank_mask:0xf')
def swapred(regs,tmp,op='add',which=(16,32)):
    for w_ in which:
        for i,r in enumerate(regs): a(f'v_mov_b32 v{tmp+i}, v{r}')
        for i,r in enumerate(regs): a(f'v_permlane{w_}_swap_b32 v{r}, v{tmp+i}')
        for i,r in enumerate(regs): a(f'v_{op}_f32 v{r}, v{r}, v{tmp+i}')
def rnd(regs,tmp):
    for i in range(0,len(regs),2): a(f'v_cvt_pk_bf16_f32 v{tmp+i//2}, v{regs[i]}, v{regs[i+1]}')
    for i in range(0,len(regs),2): a(f'v_lshlrev_b32 v{regs[i]}, 16, v{tmp+i//2}\nv_and_b32 v{regs[i+1]}, s48, v{tmp+i//2}')
def rnd1(r): a(f'v_cvt_pk_bf16_f32 v{r}, v{r}, v{r}\nv_and_b32 v{r}, s48, v{r}')
def dup(dst,src):
    for i in range(4): a(f'v_cvt_pk_bf16_f32 v{dst+i}, v{src+i}, v{src+i}')
def unpk(dst,src,n):
    for i in reversed(range(n)): a(f'v_and_b32 v{dst+2*i+1}, s48, v{src+i}\nv_lshlrev_b32 v{dst+2*i}, 16, v{src+i}')
def gemv(hh,wt,first=True):
    for t in range(4):
        A=48+4*(t&1)
        for q in range(4): a(f'v_and_b32 v{A+q}, v{hh+t}, v{3+q}')
        a(f'v_mfma_f32_16x16x32_bf16 v[44:47], {v(A,4)}, {v(wt+4*t,4)}, {"0" if first and t==0 else "v[44:47]"}')
def rdw(dst,base):
    for t in range(4): a(f'ds_read_b128 {v(dst+4*t,4)}, v12 offset:{1024*t}')
def reduce(buf,cnt,n,form,skip,mid=None,ns=8):
    a(f's_mov_b64 exec, s[52:53]\nds_write_b128 v8, v[44:47] offset:{buf-RED0}')
    if mid: a.label(mid)
    a(f'''s_waitcnt lgkmcnt(0)
    s_mov_b64 exec, 1
    ds_add_rtn_u32 v14, v15, v162 offset:{cnt-FL}
    s_mov_b64 exec, -1
    s_waitcnt lgkmcnt(0)
    v_readfirstlane_b32 s50, v14
    s_cmp_lg_u32 s50, {n-1}
    s_cbranch_scc1 {skip}''')
    if form=='A':
        a(f'v_lshlrev_b32 v12, 2, v1\nv_add_u32 v12, {buf}, v12')
        for i in range(ns): a(f'ds_read2st64_b32 {v(96+2*i,2)}, v12 offset0:{2*i} offset1:{2*i+1}')
        a('s_waitcnt lgkmcnt(0)')
        m=2*ns
        while m>2:
            m//=2
            for i in range(0,m,2): a(f'v_pk_add_f32 {v(96+i,2)}, {v(96+i,2)}, {v(96+m+i,2)}')
        a('v_add_f32 v44, v96, v97\nv_mov_b32 v45, s5\nv_mov_b32 v47, s5\nv_lshlrev_b32 v12, 3, v1\nv_mov_b32_dpp v46, v44 quad_perm:[1,0,3,2] row_mask:0xf bank_mask:0xf')
    else:
        for k in range(4): a(f'ds_read_b128 {v(96+4*k,4)}, v10 offset:{buf-RED0+256*k}')
        a('s_waitcnt lgkmcnt(0)')
        a('v_pk_add_f32 v[96:97], v[96:97], v[100:101]\nv_pk_add_f32 v[98:99], v[98:99], v[102:103]')
        a('v_pk_add_f32 v[104:105], v[104:105], v[108:109]\nv_pk_add_f32 v[106:107], v[106:107], v[110:111]')
        a('v_pk_add_f32 v[44:45], v[96:97], v[104:105]\nv_pk_add_f32 v[46:47], v[98:99], v[106:107]')
        swapred([44,45,46,47],96)
def pub24(g,va,so,ex,n=4):
    a(f's_mov_b64 exec, {ex}\nbuffer_store_dwordx{n} {v(g,n)}, {va}, s[36:39], {so} offen sc1\ns_mov_b64 exec, -1')
def stats(X):
    a(f'v_pk_add_f32 v[56:57], {v(X,2)}, {v(X+2,2)}\nv_pk_add_f32 v[58:59], {v(X+4,2)}, {v(X+6,2)}')
    a(f'v_pk_add_f32 v[56:57], v[56:57], {v(X+8,2)}\nv_pk_add_f32 v[58:59], v[58:59], {v(X+10,2)}')
    a(f'v_pk_add_f32 v[56:57], v[56:57], {v(X+12,2)}\nv_pk_add_f32 v[58:59], v[58:59], {v(X+14,2)}')
    a('v_pk_add_f32 v[56:57], v[56:57], v[58:59]\nv_add_f32 v60, v56, v57')
    dppred([60],[0,1,2,3]); swapred([60],62)
    a(f'v_mul_f32 v60, {f2u(-1/1024)}, v60')
    for i in range(0,16,2): a(f'v_pk_add_f32 {v(X+i,2)}, {v(X+i,2)}, v[60:61] op_sel_hi:[1,0]')
    a(f'v_pk_mul_f32 v[56:57], {v(X,2)}, {v(X,2)}\nv_pk_mul_f32 v[58:59], {v(X+2,2)}, {v(X+2,2)}')
    for i in range(4,16,2): a(f'v_pk_fma_f32 {v(56+(i&2),2)}, {v(X+i,2)}, {v(X+i,2)}, {v(56+(i&2),2)}')
    a('v_pk_add_f32 v[56:57], v[56:57], v[58:59]\nv_add_f32 v61, v56, v57')
    dppred([61],[0,1,2,3]); swapred([61],62)
    a(f'v_mul_f32 v61, {f2u(1/1024)}, v61\nv_sub_f32 v60, 0, v60')
    rnd([60,61],62); a(f'v_add_f32 v61, {f2u(1e-5)}, v61'); rnd1(61); a('v_sqrt_f32 v61, v61'); rnd1(61); a('v_rcp_f32 v61, v61')
def norm(X,n,tmp):
    R=list(range(X,X+n))
    for r in R: a(f'v_sub_f32 v{r}, v{r}, v60')
    rnd(R,tmp)
    for r in R: a(f'v_mul_f32 v{r}, v{r}, v61')
    rnd(R,tmp)
def sigm(X,Y,n):
    for i in range(n): a(f'v_exp_f32 v{Y+i}, v{Y+i}')
    for i in range(n): a(f'v_add_f32 v{Y+i}, 1.0, v{Y+i}')
    for i in range(n): a(f'v_rcp_f32 v{Y+i}, v{Y+i}')
    for i in range(n): a(f'v_mul_f32 v{X+i}, v{X+i}, v{Y+i}')
def silu(dst,src):
    unpk(56,src,2)
    for i in range(4): a(f'v_mul_f32 v{60+i}, {f2u(-1.4426950408889634)}, v{56+i}')
    sigm(56,60,4); dup(dst,56)

a('''s_cmp_ge_u32 s2, 256
s_cbranch_scc1 EXIT
s_load_dwordx16 s[8:23], s[0:1], 0
s_load_dwordx8 s[24:31], s[0:1], 64
s_load_dwordx4 s[32:35], s[0:1], 96
v_lshrrev_b32 v2, 6, v0
v_and_b32 v1, 63, v0
s_and_b32 s3, s2, 7
s_lshl_b32 s3, s3, 5
s_lshr_b32 s6, s2, 3
s_add_u32 s3, s3, s6
v_readfirstlane_b32 s4, v2
v_lshrrev_b32 v2, 3, v1
v_and_b32 v9, 7, v1
v_lshlrev_b32 v9, 4, v9
s_mov_b32 s49, 0x200000
s_and_b32 s54, s3, 63
s_lshr_b32 s55, s3, 6
s_and_b32 s56, s3, 15
s_lshr_b32 s57, s3, 4
s_cmp_ge_u32 s3, 112
s_cselect_b32 s58, 1, 0
s_mul_i32 s6, s58, 112
s_sub_u32 s60, s3, s6
s_cmp_ge_u32 s60, 56
s_cselect_b32 s59, 1, 0
s_mul_i32 s6, s59, 56
s_sub_u32 s60, s60, s6
v_mov_b32 v15, %d
v_mov_b32 v162, 1
v_mov_b32 v126, 0
v_mov_b32 v14, 0
v_lshl_add_u32 v12, v1, 2, v15
s_mov_b64 exec, 0xffff
ds_write_b32 v12, v14
s_mov_b64 exec, -1
s_waitcnt lgkmcnt(0)
s_cmp_eq_u32 s4, 8
s_cbranch_scc1 LOADER'''%FL)
stamp(29)
a('''s_lshl_b32 s61, s4, 5
s_lshr_b32 s6, s3, 5
s_lshl_b32 s6, s6, 7
s_add_u32 s62, s6, s61
s_lshl_b32 s6, s55, 8
s_add_u32 s63, s6, s61
v_mul_u32_u24 v12, 49152, v2
v_add_u32 v12, v12, v9
s_mul_i32 s64, s62, 12288
s_and_b32 s6, s3, 31
s_lshl_b32 s6, s6, 7
s_add_u32 s64, s64, s6
v_lshlrev_b32 v13, 3, v2
v_lshlrev_b32 v14, 5, v1
s_lshl_b32 s65, s62, 1
s_lshl_b32 s66, s63, 1
s_load_dword s5, s[34:35], 0''')
srd(40,28,12582912)
a('s_cmp_ge_u32 s4, 4\ns_cbranch_scc1 CLEAR')
for t in range(4): a(f'buffer_load_dwordx4 {v(64+4*t,4)}, v12, s[40:43], s64 offen{P["NT"]}\ns_add_u32 s64, s64, 12288')
a.label('NOP1LD')
srd(40,26,2048)
a('buffer_load_dwordx2 v[20:21], v13, s[40:43], s65 offen\nbuffer_load_dwordx2 v[22:23], v13, s[40:43], s66 offen')
srd(40,8,2048)
a('''buffer_load_dwordx2 v[24:25], v13, s[40:43], s66 offen
buffer_load_dwordx4 v[136:139], v14, s[40:43], 0 offen
buffer_load_dwordx4 v[140:143], v14, s[40:43], 0 offen offset:16
v_and_b32 v12, 15, v1
v_lshlrev_b32 v12, 4, v12
v_bfe_u32 v14, v1, 4, 1
v_lshl_add_u32 v12, v14, 3, v12
s_lshl_b32 s6, s4, 8
buffer_load_dwordx2 v[156:157], v12, s[40:43], s6 offen''')
srd(36,34,WSEND if not P['DIAG'] else DG+0x100000)
a(f'''s_barrier
s_mov_b32 s48, 0xffff0000
s_mov_b32 s82, 0x55555555
s_mov_b32 s83, s82
v_and_b32 v12, 1, v1
v_cmp_eq_u32 vcc, 1, v12
v_mov_b32 v13, 0xffff
v_mov_b32 v14, s48
v_cndmask_b32 v13, v13, v14, vcc
v_bfe_u32 v12, v1, 1, 2''')
for q in range(4): a(f'v_cmp_eq_u32 vcc, {q}, v12\nv_cndmask_b32 v{3+q}, 0, v13, vcc')
a(f'''v_lshrrev_b32 v12, 5, v1
v_lshlrev_b32 v8, 8, v12
v_lshl_add_u32 v8, v9, 1, v8
v_and_b32 v12, 16, v1
v_add_u32 v8, v8, v12
s_lshl_b32 s6, s4, 9
s_add_u32 s6, s6, {RED0}
v_add_u32 v8, s6, v8
v_and_b32 v163, 15, v1
v_lshlrev_b32 v163, 4, v163
v_lshrrev_b32 v164, 4, v1
v_lshl_add_u32 v10, v164, 10, v163
v_add_u32 v10, {RED0}, v10
s_lshl_b32 s6, s4, 12
v_lshlrev_b32 v11, 4, v1
v_add_u32 v11, s6, v11
s_mov_b32 s52, 0x00ff00ff
s_mov_b32 s53, 0xff00ff00
s_waitcnt lgkmcnt(0)
s_add_u32 s5, s5, 1
''')
for q in range(4): a(f'v_and_b32 v{156+2+q}, 0x3f803f80, v{3+q}')
stamp(0); stamp(30,'s_memtime')
a('s_cmp_ge_u32 s4, 4\ns_cbranch_scc1 CLRW\ns_waitcnt vmcnt(5)')
silu(16,20)
stamp(1)
gemv(16,64)
reduce(RED0,C_P1,8,'A','P1DONE','P1MID',4)
a(f'''s_and_b32 s6, s3, 31
s_lshl_b32 s6, s6, 12
s_lshr_b32 s7, s3, 5
s_lshl_b32 s7, s7, 9
s_add_u32 s6, s6, s7
s_add_u32 s6, s6, {E1}
s_mov_b64 exec, s[82:83]
buffer_store_dwordx4 v[44:47], v12, s[36:39], s6 offen sc1
s_mov_b64 exec, -1''')
stamp(2)
a.label('P1DONE')
a('s_waitcnt vmcnt(1)')
silu(20,22)
unpk(104,136,8); unpk(16,24,2)
stats(104); norm(16,4,56)
landed(0); a(f'v_add_u32 v12, {R0}, v11'); rdw(64,0); arrive(F_FR0)
a(f'''s_lshr_b32 s6, s63, 6
s_lshl_b32 s6, s6, 12
s_and_b32 s7, s63, 63
s_lshl_b32 s7, s7, 3
s_add_u32 s6, s6, s7
s_add_u32 s6, s6, {E1}
s_add_u32 s7, s6, 65536
v_lshlrev_b32 v12, 5, v9
v_lshl_add_u32 v12, v2, 5, v12''')
stamp(3); stamp(21,'cnt')
a('v_lshlrev_b32 v13, 5, v9\nv_lshl_add_u32 v13, v2, 16, v13')
poll([ld(96,'v12','s6'),ld(100,'v12','s6',16),ld(104,'v12','s7'),ld(108,'v12','s7',16)],8,('0xffff',sc('v13','s6'),TG))
stamp(4); stamp(22,'cnt')
if 1 in GU: arrive(G[1])
sa=[96,98,100,102]; ca=[104,106,108,110]
dppred(sa+ca,[0,1,2]); rnd(sa+ca,56)
for r in ca: a(f'v_add_f32 v{r}, 1.0, v{r}')
rnd(ca,56)
for i in range(4): a(f'v_mul_f32 v{16+i}, v{16+i}, v{ca[i]}')
rnd([16,17,18,19],56)
for i in range(4): a(f'v_add_f32 v{16+i}, v{16+i}, v{sa[i]}')
dup(56,16); gemv(56,64)
reduce(RED1,C_P2,8,'A','P2DONE')
a(f'''s_lshl_b32 s6, s54, 11
s_lshl_b32 s7, s55, 9
s_add_u32 s6, s6, s7
s_add_u32 s6, s6, {E2}
s_mov_b64 exec, s[82:83]
buffer_store_dwordx4 v[44:47], v12, s[36:39], s6 offen sc1
s_mov_b64 exec, -1''')
stamp(5)
a.label('P2DONE')
a('s_cmp_ge_u32 s4, 4\ns_cbranch_scc1 NOK')
landed(16 if P['ORD'] else 8)
a(f'''v_and_b32 v13, 15, v1
v_xor_b32 v12, v164, v13
v_lshlrev_b32 v12, 4, v12
v_lshl_add_u32 v12, v13, 8, v12
s_lshl_b32 s6, s4, 12
s_add_u32 s6, s6, {RK}
v_add_u32 v12, s6, v12''')
for s_ in range(4): a(f'v_xor_b32 v13, {64*s_}, v12\nds_read_b128 {v(136+4*s_,4)}, v13')
arrive(F_FR0)
a.label('NOK')
a(f's_mov_b32 s50, {24 if P["ORD"] else 16}'); landed('s50')
a(f'''v_bfe_u32 v12, v1, 2, 2
v_lshl_add_u32 v13, v164, 3, v12
v_and_b32 v14, 15, v13
v_bfe_u32 v12, v1, 1, 1
s_lshl_b32 s6, s4, 1
v_add_u32 v12, s6, v12
v_xor_b32 v12, v12, v14
v_lshlrev_b32 v12, 4, v12
v_lshl_add_u32 v12, v13, 8, v12
v_and_b32 v13, 1, v1
v_lshl_add_u32 v12, v13, 3, v12
v_add_u32 v12, {RV}, v12
v_xor_b32 v13, 64, v12
ds_read_b64_tr_b16 v[128:129], v12
ds_read_b64_tr_b16 v[130:131], v13 offset:1024
ds_read_b64_tr_b16 v[132:133], v12 offset:8192
ds_read_b64_tr_b16 v[134:135], v13 offset:9216
s_lshl_b32 s6, s55, 15
s_lshl_b32 s7, s4, 12
s_add_u32 s6, s6, s7
s_add_u32 s6, s6, {E2}
v_and_b32 v13, 31, v1
v_lshlrev_b32 v13, 4, v13
v_lshrrev_b32 v12, 5, v1
v_lshl_add_u32 v12, v12, 11, v13''')
stamp(6); stamp(23,'cnt')
a('v_lshlrev_b32 v13, 9, v1')
poll([ld(96+4*k,'v12','s6',512*k) for k in range(4)],8,('0xff',sc('v13','s6'),TG))
stamp(7); stamp(24,'cnt')
if 2 in GU: arrive(G[2])
a(f'''v_add_f32 v96, v96, v100
v_add_f32 v98, v98, v102
v_add_f32 v104, v104, v108
v_add_f32 v106, v106, v110
v_add_f32 v96, v96, v104
v_add_f32 v98, v98, v106
s_mul_i32 s6, s4, 272
s_add_u32 s6, s6, {QL}
v_lshl_add_u32 v12, v1, 2, s6
v_cvt_pk_bf16_f32 v96, v96, v98
ds_write_b32 v12, v96''')
arrive(C_Q)
a(f'''v_and_b32 v13, 7, v1
v_mul_u32_u24 v13, 272, v13
s_cmp_ge_u32 s4, 4
s_cbranch_scc1 NOQK
v_lshl_add_u32 v12, v164, 4, v13
v_add_u32 v12, {QL}, v12''')
spin(C_Q,8)
for s_ in range(4): a(f'ds_read_b128 {v(96+4*s_,4)}, v12 offset:{64*s_}')
for s_ in range(4): a(f's_waitcnt lgkmcnt({3-s_})\nv_mfma_f32_16x16x32_bf16 v[44:47], {v(136+4*s_,4)}, {v(96+4*s_,4)}, {"0" if s_==0 else "v[44:47]"}')
a(f's_lshl_b32 s6, s4, 6\ns_add_u32 s6, s6, {SC-QL}\nv_add_u32 v12, s6, v12')
rnd([44,45,46,47],56)
for i in range(4): a(f'v_mul_f32 v{44+i}, 0x3db504f3, v{44+i}')
rnd([44,45,46,47],56)
a('s_mov_b32 exec_lo, s52\ns_mov_b32 exec_hi, s52\nds_write_b128 v12, v[44:47]\ns_mov_b64 exec, -1')
arrive(C_S)
a.label('NOQK')
a(f'v_lshl_add_u32 v12, v164, 5, v13\nv_add_u32 v12, {SC}, v12')
spin(C_S,4)
for i,o in enumerate([0,16,128,144]): a(f'ds_read_b128 {v(96+4*i,4)}, v12 offset:{o}')
a('s_waitcnt lgkmcnt(0)\nv_max3_f32 v56, v96, v97, v98')
for i in range(99,111,2): a(f'v_max3_f32 v56, v56, v{i}, v{i+1}')
a('v_max_f32 v56, v56, v111'); swapred([56],58,'max')
a(f'v_mul_f32 v57, {f2u(-1.4426950408889634)}, v56\ns_mov_b32 s6, 0x3fb8aa3b')
for i in range(96,112): a(f'v_fma_f32 v{i}, v{i}, s6, v57')
for i in range(96,112): a(f'v_exp_f32 v{i}, v{i}')
for i in range(8): a(f'v_cvt_pk_bf16_f32 v{112+i}, v{96+2*i}, v{97+2*i}')
a('v_mfma_f32_16x16x32_bf16 v[44:47], v[128:131], v[112:115], 0\nv_mfma_f32_16x16x32_bf16 v[44:47], v[132:135], v[116:119], v[44:47]')
a(f'''s_lshl_b32 s6, s55, 17
s_lshl_b32 s7, s54, 7
s_add_u32 s6, s6, s7
s_lshr_b32 s7, s4, 2
s_lshl_b32 s7, s7, 13
s_add_u32 s6, s6, s7
s_and_b32 s7, s4, 3
s_lshl_b32 s7, s7, 5
s_add_u32 s6, s6, s7
s_add_u32 s6, s6, {E3O}
v_lshlrev_b32 v12, 10, v9
v_lshl_add_u32 v12, v164, 3, v12
s_mov_b32 s50, 0xff
s_mov_b32 s51, 0xff
v_cvt_pk_bf16_f32 v44, v44, v45
v_cvt_pk_bf16_f32 v45, v46, v47
v_mov_b32 v46, v44
v_mov_b32 v47, v45
v_permlane16_swap_b32 v44, v46
v_permlane16_swap_b32 v45, v47''')
pub24(44,'v12','s6','s[50:51]')
a('s_cmp_lg_u32 s4, 0\ns_cbranch_scc1 NOML')
for m in (8,4,2):
    for i in range(0,m,2): a(f'v_pk_add_f32 {v(96+i,2)}, {v(96+i,2)}, {v(96+m+i,2)}')
a('v_add_f32 v57, v96, v97'); swapred([57],58)
a(f'''s_lshl_b32 s6, s55, 12
s_lshl_b32 s7, s54, 3
s_add_u32 s6, s6, s7
s_add_u32 s6, s6, {E3M}
v_lshlrev_b32 v12, 9, v1''')
pub24(56,'v12','s6','0xff',2)
a.label('NOML')
stamp(8)
landed(8 if P['ORD'] else 16); a(f'v_add_u32 v12, {R2}, v11'); rdw(64,0); arrive(F_FR2); gemv(20,64)
reduce(RED0,C_M2,8,'B','M2DONE')
a(f's_lshl_b32 s6, s55, 14\ns_lshl_b32 s7, s54, 8\ns_add_u32 s6, s6, s7\ns_add_u32 s6, s6, {M2}')
pub24(44,'v163','s6','0xffff')
a.label('M2DONE')
stamp(9)
def e4addr(): a(f's_lshr_b32 s6, s56, 1\ns_lshl_b32 s6, s6, 12\ns_lshl_b32 s7, s57, 8\ns_add_u32 s6, s6, s7\ns_and_b32 s7, s56, 1\ns_lshl_b32 s7, s7, 7\ns_add_u32 s6, s6, s7\ns_add_u32 s64, s6, {E4}\ns_mov_b32 s6, s64')
def e5addr(): a(f's_lshl_b32 s6, s59, 1\ns_add_u32 s6, s6, s58\ns_mul_i32 s6, s6, 14336\ns_lshl_b32 s7, s60, 8\ns_add_u32 s6, s6, s7\ns_add_u32 s6, s6, {E5}')
R8='row_ror:8 row_mask:0xf bank_mask:0xf'
landed(24); a(f'v_add_u32 v12, {R3}, v11'); rdw(64,0)
e4addr()
a(f'''s_and_b32 s6, s4, 3
s_lshl_b32 s7, s57, 2
s_add_u32 s6, s6, s7
s_lshr_b32 s7, s6, 1
s_lshl_b32 s7, s7, 9
s_add_u32 s72, s7, {E3M}
s_lshr_b32 s7, s4, 2
v_and_b32 v13, 1, v1
v_xor_b32 v13, s7, v13
v_lshlrev_b32 v13, 8, v13
v_lshl_add_u32 v13, v2, 5, v13
s_lshl_b32 s6, s6, 1
s_add_u32 s6, s6, s7
s_lshl_b32 s6, s6, 12
s_add_u32 s65, s6, {E3O}
v_lshl_add_u32 v12, v2, 9, v9
s_lshr_b32 s6, s4, 1
s_lshl_b32 s6, s6, 9
s_and_b32 s7, s4, 1
s_lshl_b32 s7, s7, 7
s_add_u32 s6, s6, s7
s_add_u32 s6, s6, {RED1}
v_lshl_add_u32 v166, v2, 4, s6
s_lshl_b32 s66, s56, 8
s_add_u32 s66, s66, {M2}
v_lshl_add_u32 v167, v164, 14, v163''')
a('v_lshlrev_b32 v14, 3, v1')
stamp(10); stamp(25,'cnt')
poll([ld(96+4*t,'v12','s65',128*t) for t in range(4)]+[ld(112,'v13','s72'),ld(116,'v13','s72',16)],0,('-1',sc('v14','s72'),SN))
stamp(11); stamp(26,'cnt')
if 3 in GU: arrive(G[3])
GA=ld(24,'v167','s66'); a(GA[1].replace(' sc1',''))
a(f'''s_lshl_b32 s62, s58, 9
s_lshl_b32 s6, s4, 6
s_add_u32 s62, s62, s6
s_lshl_b32 s62, s62, 2
s_add_u32 s67, s62, {M2+4096}
v_and_b32 v36, 3, v1
v_lshlrev_b32 v36, 14, v36
v_bfe_u32 v13, v1, 2, 1
v_lshl_add_u32 v36, v13, 12, v36
v_lshl_add_u32 v36, v2, 4, v36''')
SB=[ld(28,'v36','s67'),ld(32,'v36','s67',128)]
if P['SBE']:
    for g,t in SB: a(t.replace(' sc1',''))
a(f'v_max3_f32 v58, v112, v114, v116\nv_max_f32 v58, v58, v118'); dppred([58],[0],'max'); a(f'v_max_f32_dpp v58, v58, v58 {R8}'); swapred([58],59,'max')
a(f'v_mul_f32 v58, {f2u(-1.4426950408889634)}, v58\ns_mov_b32 s6, 0x3fb8aa3b')
for t in range(4): a(f'v_fma_f32 v{60+t}, v{112+2*t}, s6, v58')
for t in range(4): a(f'v_exp_f32 v{60+t}, v{60+t}')
dup(60,60)
for t in range(4): a(f'v_mov_b32_dpp v{56+t}, v{60+t} quad_perm:[0,0,2,2] row_mask:0xf bank_mask:0xf')
gemv(56,96)
for t in range(4): a(f'v_and_b32 v{60+t}, s48, v{60+t}')
a('v_mul_f32 v57, v60, v113\nv_fmac_f32 v57, v61, v115\nv_fmac_f32 v57, v62, v117\nv_fmac_f32 v57, v63, v119')
dppred([57],[0]); a(f'v_add_f32_dpp v57, v57, v57 {R8}'); swapred([57],59); a('v_rcp_f32 v57, v57')
for i in range(4): a(f'v_mul_f32 v{44+i}, v{44+i}, v57')
a(f's_mov_b64 exec, s[52:53]\nds_write_b128 v8, v[44:47] offset:{RED1-RED0}'); arrive(C_O); spin(C_O,8)
for i,o in enumerate([0,256,2048,2304]): a(f'ds_read_b128 {v(96+4*i,4)}, v166 offset:{o}')
a('''s_waitcnt lgkmcnt(2)
v_pk_add_f32 v[96:97], v[96:97], v[100:101]
v_pk_add_f32 v[98:99], v[98:99], v[102:103]
s_waitcnt lgkmcnt(0)
v_pk_add_f32 v[104:105], v[104:105], v[108:109]
v_pk_add_f32 v[106:107], v[106:107], v[110:111]
v_pk_add_f32 v[96:97], v[96:97], v[104:105]
v_pk_add_f32 v[98:99], v[98:99], v[106:107]''')
dup(56,96); gemv(56,64)
a('s_waitcnt vmcnt(%d)'%(2 if P['SBE'] else 0)); chk([24],0); a('s_cbranch_vccz GADONE'); poll([GA],0,plain=False); a.label('GADONE')
swapred([24,25,26,27],96); rnd([24,25,26,27],96)
reduce(RED0,C_P4,8,'B','P4DONE')
a('''v_pk_mul_f32 v[44:45], v[44:45], v[24:25]
v_pk_mul_f32 v[46:47], v[46:47], v[26:27]
v_lshrrev_b32 v12, 1, v163
v_cvt_pk_bf16_f32 v44, v44, v45
v_cvt_pk_bf16_f32 v45, v46, v47
v_mov_b32_dpp v46, v44 quad_perm:[1,0,3,2] row_mask:0xf bank_mask:0xf
v_mov_b32_dpp v47, v45 quad_perm:[1,0,3,2] row_mask:0xf bank_mask:0xf''')
if P['SBE']: a('s_waitcnt vmcnt(0)')
pub24(44,'v12','s64','0x5555')
stamp(12)
if P['SBE']: a('s_branch P4DONE2')
a.label('P4DONE')
if P['SBE']: a('s_waitcnt vmcnt(0)'); a.label('P4DONE2')
a(f'''s_cmp_ge_u32 s3, 224
s_cbranch_scc1 P5DONE
v_bfe_u32 v13, v1, 2, 1''')
if P['SBE']: chk([28,32],0); a('s_cbranch_vccz SBDONE')
poll(SB,0,plain=not P['SBE']); a.label('SBDONE')
unpk(152,156,2); dppred(list(range(28,36)),[0,1]); rnd(list(range(28,36)),56)
a('v_cmp_eq_u32 vcc, 1, v13')
for i in range(8): a(f'v_mov_b32_dpp v{96+i}, v{28+i} row_half_mirror row_mask:0xf bank_mask:0xf')
for i in range(8): a(f'v_cndmask_b32 v{36+i}, v{28+i}, v{96+i}, vcc\nv_cndmask_b32 v{28+i}, v{96+i}, v{28+i}, vcc')
for i in range(8): a(f'v_add_f32 v{28+i}, 1.0, v{28+i}')
rnd(list(range(28,36)),56)
e5addr()
a(f'''s_mov_b32 s64, s6
s_lshl_b32 s6, s4, 9
s_add_u32 s6, s6, {X2}
v_lshl_add_u32 v166, v163, 1, s6
v_lshl_add_u32 v166, v164, 4, v166
s_add_u32 s6, s62, {X2}
v_lshl_add_u32 v13, v2, 4, s6
v_lshlrev_b32 v12, 4, v1
v_add_u32 v167, {X2}, v12
s_lshl_b32 s51, s4, 1
s_add_u32 s51, s51, 34
s_lshl_b32 s6, s4, 12
v_add_u32 v16, s6, v11
s_add_u32 s6, s6, {E4}
ds_read_b32 v14, v15
s_waitcnt lgkmcnt(0)
v_cmp_gt_i32 vcc, s51, v14
s_mov_b32 s65, 0
s_cbranch_vccnz NOEARLY
s_mov_b32 s65, 1''')
for t in range(8): a(f'ds_read_b128 {v(64+4*t,4)}, v16 offset:{1024*t}')
a.label('NOEARLY')
a('v_lshlrev_b32 v14, 7, v1')
stamp(13); stamp(27,'cnt')
poll([ld(96+4*n,'v12','s6',1024*n) for n in range(4)],0,('LO',sc('v14','s6'),SN))
stamp(14); stamp(28,'cnt')
for n in range(4): a(f'v_mfma_f32_16x16x32_bf16 v[44:47], v[158:161], {v(96+4*n,4)}, {"v[152:155]" if n==0 else "v[44:47]"}')
a('s_mov_b32 exec_hi, 0\nds_write_b128 v166, v[44:47]')
arrive(C_X); spin(C_X,8)
a('ds_read_b32 v60, v15 offset:%d'%(X2-FL))
for i in range(4): a(f'ds_read_b128 {v(96+4*i,4)}, v167 offset:{1024*i}')
a('ds_read_b128 v[112:115], v13\nds_read_b128 v[116:119], v13 offset:128\ns_waitcnt lgkmcnt(5)')
for i in range(0,16,2):
    if i in (4,8,12): a(f's_waitcnt lgkmcnt({5-i//4})')
    a(f'v_pk_add_f32 {v(96+i,2)}, {v(96+i,2)}, v[60:61] op_sel_hi:[1,0] neg_lo:[0,1] neg_hi:[0,1]')
a('v_pk_add_f32 v[56:57], v[96:97], v[98:99]\nv_pk_mul_f32 v[58:59], v[96:97], v[96:97]\nv_pk_fma_f32 v[58:59], v[98:99], v[98:99], v[58:59]')
for i in range(4,16,2): a(f'v_pk_add_f32 v[56:57], v[56:57], {v(96+i,2)}\nv_pk_fma_f32 v[58:59], {v(96+i,2)}, {v(96+i,2)}, v[58:59]')
a('v_add_f32 v56, v56, v57\nv_add_f32 v57, v58, v59')
dppred([56,57],[0,1,2,3]); swapred([56,57],58)
a(f'''v_mul_f32 v56, {f2u(1/1024)}, v56
v_mul_f32 v57, {f2u(1/1024)}, v57
v_fma_f32 v57, -v56, v56, v57
v_add_f32 v60, v60, v56
v_add_f32 v57, {f2u(1e-5)}, v57
v_rsq_f32 v58, v57
s_waitcnt lgkmcnt(0)''')
for i in range(0,8,2): a(f'v_pk_add_f32 {v(112+i,2)}, {v(112+i,2)}, v[60:61] op_sel_hi:[1,0] neg_lo:[0,1] neg_hi:[0,1]')
for i in range(0,8,2): a(f'v_pk_mul_f32 {v(28+i,2)}, {v(28+i,2)}, v[58:59] op_sel_hi:[1,0]')
for i in range(0,8,2): a(f'v_pk_fma_f32 {v(112+i,2)}, {v(112+i,2)}, {v(28+i,2)}, {v(36+i,2)}')
dup(56,112); dup(60,116)
a('s_cmp_eq_u32 s65, 1\ns_cbranch_scc1 EARLY'); landed('s51')
for t in range(8): a(f'ds_read_b128 {v(64+4*t,4)}, v16 offset:{1024*t}')
a('s_waitcnt lgkmcnt(0)')
a.label('EARLY')
stamp(15)
gemv(56,64); gemv(60,80,False)
reduce(RED0,C_P5,8,'B','P5DONE')
pub24(44,'v163','s64','0xffff')
stamp(16)
a.label('P5DONE')
a(f'v_subrev_u32 v8, {RED0-RV}, v8\nv_subrev_u32 v10, {RED0-RV}, v10')
a('v_mov_b32 v44, 0\nv_mov_b32 v45, 0\nv_mov_b32 v46, 0\nv_mov_b32 v47, 0\ns_cmp_eq_u32 s4, 7\ns_cbranch_scc1 P6RED')
landed(48); a(f'v_add_u32 v12, {R2}, v11'); rdw(64,0)
a(f'''s_mul_i32 s6, s57, 896
s_lshl_b32 s7, s4, 7
s_add_u32 s6, s6, s7
s_add_u32 s6, s6, {E5}
v_and_b32 v13, 3, v2
v_mul_u32_u24 v12, 14336, v13
v_add_u32 v12, v12, v9
v_lshlrev_b32 v13, 2, v2
s_mov_b32 exec_hi, 0''')
stamp(17)
poll([ld(96,'v12','s6')],0,plain=False)
a('s_mov_b64 exec, -1')
stamp(18)
for i in range(4): a(f'v_add_f32_dpp v{104+i}, v{96+i}, v{96+i} {R8}')
for i in range(4): a(f'v_mov_b32 v{108+i}, v{104+i}')
for i in range(4): a(f'v_permlane16_swap_b32 v{104+i}, v{108+i}')
c1=2*0.7978845608028654*1.4426950408889634
a(f's_mov_b32 s6, {f2u(-c1*0.044715)}\nv_mov_b32 v100, {f2u(-c1)}')
for i in range(4): a(f'v_mul_f32 v{96+i}, v{104+i}, v{104+i}')
for i in range(4): a(f'v_fma_f32 v{96+i}, v{96+i}, s6, v100')
for i in range(4): a(f'v_mul_f32 v{96+i}, v{96+i}, v{104+i}')
sigm(104,96,4)
for i in range(4): a(f'v_mul_f32 v{104+i}, v{104+i}, v{108+i}')
dup(60,104)
for i in range(4): a(f'ds_bpermute_b32 v{56+i}, v13, v{60+i}')
a('s_waitcnt lgkmcnt(0)'); gemv(56,64)
a.label('P6RED')
reduce(RED0,C_P6,8,'B','P6DONE')
a(f's_lshl_b32 s6, s57, 12\ns_lshl_b32 s7, s56, 8\ns_add_u32 s6, s6, s7\ns_add_u32 s6, s6, {E6}')
pub24(44,'v163','s6','0xffff')
stamp(19)
a.label('P6DONE')
a(f'''s_cmp_lg_u32 s4, 7
s_cbranch_scc1 TIMEOUT
s_cmp_ge_u32 s3, 64
s_cbranch_scc1 TIMEOUT
s_lshl_b32 s62, s3, 6
s_add_u32 s6, s62, {M2+12288}
v_and_b32 v12, 3, v1
v_lshlrev_b32 v12, 14, v12
v_lshl_add_u32 v12, v164, 4, v12
s_add_u32 s7, s62, {X2}
v_lshl_add_u32 v13, v164, 4, s7
ds_read_b128 v[28:31], v13''')
poll([ld(24,'v12','s6')],0)
dppred([24,25,26,27],[0,1]); rnd([24,25,26,27],56)
a(f's_add_u32 s6, s62, {E6}\nv_lshlrev_b32 v12, 8, v163\nv_lshl_add_u32 v12, v164, 4, v12')
srd(40,30,2048)
a('s_waitcnt lgkmcnt(0)'); poll([ld(96,'v12','s6')],0,plain=False)
dppred([96,97,98,99],[0,1,2,3])
for i in range(4): a(f'v_fma_f32 v{96+i}, v{96+i}, v{24+i}, v{28+i}')
a('''v_cvt_pk_bf16_f32 v96, v96, v97
v_cvt_pk_bf16_f32 v97, v98, v99
v_lshlrev_b32 v12, 3, v164
s_lshl_b32 s6, s3, 5
s_mov_b32 exec_lo, 0x10001
s_mov_b32 exec_hi, 0x10001
buffer_store_dwordx2 v[96:97], v12, s[40:43], s6 offen''')
stamp(20); stamp(31,'s_memtime')
a('''s_cmp_lg_u32 s3, 0
s_cbranch_scc1 TIMEOUT
s_mov_b64 exec, 1
v_mov_b32 v12, 0
v_mov_b32 v13, s5
buffer_store_dword v13, v12, s[36:39], 0 offen sc1
TIMEOUT:''')
flush()
a('EXIT:\ns_endpgm')
a.label('CLEAR')
srd(36,34,WSEND)
a('v_and_b32 v163, 15, v1\nv_lshlrev_b32 v163, 4, v163')
a(f'''v_mov_b32 v44, -1
v_mov_b32 v45, -1
v_mov_b32 v46, -1
v_mov_b32 v47, -1
s_cmp_eq_u32 s4, 4
s_cbranch_scc0 CLR5
s_lshl_b32 s6, s55, 17
s_lshl_b32 s7, s54, 7
s_add_u32 s6, s6, s7
s_add_u32 s6, s6, {E3O}
s_add_u32 s7, s6, 65536
v_lshl_add_u32 v12, v2, 13, v9
buffer_store_dwordx4 v[44:47], v12, s[36:39], s6 offen sc1
buffer_store_dwordx4 v[44:47], v12, s[36:39], s7 offen sc1
s_branch CLRD
CLR5:
s_cmp_eq_u32 s4, 5
s_cbranch_scc0 CLR6
s_lshl_b32 s6, s55, 12
s_lshl_b32 s7, s54, 3
s_add_u32 s6, s6, s7
s_add_u32 s6, s6, {E3M}
v_lshlrev_b32 v12, 9, v1''')
pub24(44,'v12','s6','0xff',2)
a(f's_lshl_b32 s6, s55, 14\ns_lshl_b32 s7, s54, 8\ns_add_u32 s6, s6, s7\ns_add_u32 s6, s6, {M2}')
pub24(44,'v163','s6','0xffff')
a('s_branch CLRD\nCLR6:\ns_cmp_eq_u32 s4, 6\ns_cbranch_scc0 CLR7')
e4addr(); pub24(44,'v163','s6','0xff')
a(f's_lshl_b32 s6, s57, 12\ns_lshl_b32 s7, s56, 8\ns_add_u32 s6, s6, s7\ns_add_u32 s6, s6, {E6}')
pub24(44,'v163','s6','0xffff')
a('s_branch CLRD\nCLR7:\ns_cmp_ge_u32 s3, 224\ns_cbranch_scc1 CLRD')
e5addr(); pub24(44,'v163','s6','0xffff')
a('CLRD:\ns_branch NOP1LD\nCLRW:\ns_waitcnt vmcnt(0)\ns_branch P1MID')
a.label('LOADER')
def stream(ptr,nbytes,vo,S,BS,nblk,lds,N,flag=True):
    srd(40,ptr,nbytes)
    a(f's_mov_b32 m0, {lds}\ns_add_u32 s51, s50, {nblk}')
    L=a.newl(); a.label(L)
    for t in range(4):
        a(f'buffer_load_dwordx4 {vo[t]}, s[40:43], s6 offen{P["NT"]} lds\ns_add_u32 m0, m0, 0x400\ns_add_u32 s6, s6, {S if t<3 else BS-3*S}')
    a('s_add_u32 s50, s50, 1')
    if flag: a(f's_sub_u32 s7, s50, {N//4}\nv_mov_b32 v14, s7\ns_waitcnt vmcnt({N})\nds_max_i32 v15, v14')
    a(f's_cmp_lt_u32 s50, s51\ns_cbranch_scc1 {L}')
def drain(N):
    for k in range(N-4,-1,-4): a(f's_sub_u32 s7, s50, {k//4}\nv_mov_b32 v14, s7\ns_waitcnt vmcnt({k})\nds_max_i32 v15, v14')
def waitfree(addr,n,N):
    D=a.newl()
    a(f'ds_read_b32 v14, v15 offset:{addr-FL}\ns_waitcnt lgkmcnt(0)\nv_cmp_gt_i32 vcc, {n}, v14\ns_cbranch_vccz {D}')
    drain(N); spin(addr,n); a.label(D)
a('''v_lshl_add_u32 v3, v2, 15, v9
s_lshl_b32 s6, s55, 21
s_lshl_b32 s7, s54, 7
s_add_u32 s6, s6, s7
s_mov_b32 s50, 0''')
stream(14,8388608,['v3']*4,8192,32*8192,8,R0,32,False)
a('''v_lshrrev_b32 v4, 4, v1
v_and_b32 v5, 15, v1
v_xor_b32 v5, v5, v4
v_lshlrev_b32 v5, 4, v5
v_lshl_add_u32 v4, v4, 8, v5
v_xor_b32 v5, 64, v4
v_xor_b32 v6, 128, v4
v_xor_b32 v7, 192, v4
s_lshl_b32 s61, s55, 24
s_lshl_b32 s7, s54, 14
s_add_u32 s61, s61, s7
s_add_u32 s61, s61, %d
s_mov_b32 s6, s61
s_barrier'''%(61440*256))
if P['DIAG']: srd(36,34,DG+0x100000)
KV=['v4','v5','v6','v7']
def gate(k,N):
    if P[k]: waitfree(G[P[k]],P['TH'],N)
def sM(prev):
    a('v_mul_u32_u24 v3, 49152, v2\nv_add_u32 v3, v3, v9\ns_mul_i32 s6, s55, 3145728\ns_lshl_b32 s7, s54, 7\ns_add_u32 s6, s6, s7\ns_add_u32 s6, s6, 4096')
    gate('GM',prev); stream(28,12582912,['v3']*4,12288,32*12288,8,R2,P['NM']); stamp(2)
def sKV(prev):
    gate('GK',prev); a('s_mov_b32 s6, s61')
    stream(10,67108864,KV,1024,4096,4,RK,P['N0']); stamp(0)
    gate('GV',P['N0']); a('s_mov_b32 s6, s61'); stream(12,67108864,KV,1024,4096,4,RV,P['NV']); stamp(1)
if P['ORD']: sM(32); sKV(P['NM']); P['NM']=P['NV']
else: sKV(32); sM(P['NV'])
a('v_lshl_add_u32 v8, v2, 13, v9\ns_lshl_b32 s6, s57, 19\ns_lshl_b32 s7, s56, 7\ns_add_u32 s6, s6, s7')
gate('G4',P['NM']); stream(16,8388608,['v8']*4,2048,32*2048,8,R3,P['N2']); stamp(3)
a('s_cmp_ge_u32 s3, 224\ns_cbranch_scc1 NOP5')
waitfree(F_FR0,12,P['N2']); gate('G5',P['N2'])
a('''v_mul_u32_u24 v3, 28672, v2
v_add_u32 v3, v3, v9
s_mul_i32 s6, s58, 3670016
s_lshl_b32 s7, s60, 7
s_add_u32 s6, s6, s7
s_cmp_eq_u32 s59, 1
s_cselect_b32 s62, s22, s20
s_cselect_b32 s63, s23, s21''')
stream(62,7340032,['v3']*4,7168,32*7168,16,R0,P['N3']); stamp(4)
a('s_branch YESP5'); a.label('NOP5'); drain(P['N2']); a('s_mov_b32 s50, 48'); a.label('YESP5')
waitfree(F_FR2,8,P['N3']); gate('G6',P['N3'])
a('s_mul_i32 s6, s57, 458752\ns_lshl_b32 s7, s56, 7\ns_add_u32 s6, s6, s7')
stream(24,7340032,['v8']*4,2048,32*2048,7,R2,P['N4'])
drain(P['N4']); stamp(5)
flush()
a('s_waitcnt lgkmcnt(0)\ns_endpgm')
ref=open('cdna_kernels/'+NAME+'.s.ref').read()
head=ref[:ref.index('; Override launch')]
txt=head+('; DIAG\n' if P['DIAG'] else '')+f'''; @launch grid=(256,1,1) block=(576,1,1) lds={LDSZ}
.amdgcn_target "amdgcn-amd-amdhsa--gfx950"
.text
.globl {NAME}_kernel
.p2align 8
.type {NAME}_kernel,@function
{NAME}_kernel:
'''+a.text()+f'''.section .rodata,"a"
.p2align 6
.amdhsa_kernel {NAME}_kernel
  .amdhsa_next_free_vgpr %d
  .amdhsa_next_free_sgpr 96
  .amdhsa_accum_offset %d
  .amdhsa_group_segment_fixed_size 0
  .amdhsa_kernarg_size 112
  .amdhsa_user_sgpr_count 2
  .amdhsa_user_sgpr_kernarg_segment_ptr 1
  .amdhsa_system_sgpr_workgroup_id_x 1
.end_amdhsa_kernel
'''%((168,168))
open(sys.argv[1],'w').write(txt)
```

```python
import sys,struct
from asmlib import Asm
P=dict(DIAG=0,NT=' nt',N0=32,N1=20,N2=20,N3=20,SLEEP=1,PRESPIN=1,WARM=0,PRE3=0,PRE4=0,E3PRE=0,GK=0,GV=0,GM=0,G4=0,G5=0,G6=0,TH=8,N4=12,NV=0,NM=0,ORD=0,SBE=1,ME=0)
for a in sys.argv[2:]:
    k,v=a.split('='); P[k]=v if k=='NT' else int(v)
if P['NT']=='0': P['NT']=''
NAME='adaLN_cond__sliding_block_cached__geglu_ffn__decode'
def f2u(x): return '0x%08x'%struct.unpack('<I',struct.pack('<f',x))[0]
E1,E2,E3O,E3M,M2,E4,E5,E6,WSEND=0x1000,0x21000,0x41000,0x141000,0x149000,0x159000,0x169000,0x177000,0x187000
DG=0x190000
R0,RK,RV,R2,R3,W=0,32768,65536,81920,114688,147456
FL=W; RED0=W+128; RED1=RED0+4096; QL=RED1+4096; SC=QL+2176; X2=QL; LDSZ=SC+2176
F_LAND,F_FR0,F_FR2,C_P1,C_P2,C_Q,C_S,C_M2,C_P4,C_X,C_P5,C_P6,C_O=[FL+4*i for i in range(13)]
G=[0,FL+52,FL+56,FL+60]
GU={P[k] for k in ('GK','GV','GM','G4','G5','G6')}
P['NV']=P['NV'] or P['N1']; P['NM']=P['NM'] or P['N1']
a=Asm()
T=['s5','s44','s45','s46']
def v(i,n=1): return f'v{i}' if n==1 else f'v[{i}:{i+n-1}]'
def srd(d,p,n): a(f's_mov_b32 s{d}, s{p}\ns_mov_b32 s{d+1}, s{p+1}\ns_mov_b32 s{d+2}, {n}\ns_mov_b32 s{d+3}, 0x20000')
def stamp(i,ins='s_memrealtime'):
    if P['DIAG']:
        if ins=='cnt': a(f'v_writelane_b32 v126, s49, {i}')
        else: a(f'{ins} s[76:77]\ns_waitcnt lgkmcnt(0)\nv_writelane_b32 v126, s76, {i}')
def flush():
    if P['DIAG']==2:
        L=a.newl(); srd(36,32,256)
        a(f's_cmp_lg_u32 s3, 0\ns_cbranch_scc1 {L}\ns_cmp_lg_u32 s4, 7\ns_cbranch_scc1 {L}\nv_readlane_b32 s78, v126, 29\ns_mov_b64 exec, -1\ns_nop 4\nv_subrev_u32 v126, s78, v126\nv_lshlrev_b32 v127, 1, v1\ns_mov_b32 exec_hi, 0\nbuffer_store_short v126, v127, s[36:39], 0 offen'); a.label(L)
    elif P['DIAG']:
        srd(36,34,DG+0x100000)
        a(f's_mul_i32 s78, s3, 2304\ns_lshl_b32 s79, s4, 8\ns_add_u32 s78, s78, s79\ns_add_u32 s78, s78, {DG}\ns_mov_b64 exec, -1\nv_lshlrev_b32 v127, 2, v1\nbuffer_store_dword v126, v127, s[36:39], s78 offen')
def budget(): a('s_sub_u32 s49, s49, 1\ns_cbranch_scc1 TIMEOUT')
def spin(addr,thr):
    L=a.newl(); a.label(L); budget()
    a(f'ds_read_b32 v14, v15 offset:{addr-FL}\ns_waitcnt lgkmcnt(0)\nv_cmp_gt_i32 vcc, {thr}, v14\ns_cbranch_vccnz {L}')
def arrive(addr):
    a(f's_waitcnt lgkmcnt(0)\ns_mov_b64 exec, 1\nds_add_u32 v15, v162 offset:{addr-FL}\ns_mov_b64 exec, -1')
def landed(c):
    if isinstance(c,int): a(f's_add_u32 s50, s4, {c+1}'); c='s50'
    spin(F_LAND,c)
def chk(regs,fmt,acc='v165'):
    if fmt==0:
        R=[g+i for g in regs for i in range(4)]
        a(f'v_max3_u32 {acc}, v{R[0]}, v{R[1]}, v{R[2]}')
        for i in range(3,len(R)-1,2): a(f'v_max3_u32 {acc}, {acc}, v{R[i]}, v{R[i+1]}')
        a(f'v_max_u32 {acc}, {acc}, v{R[-1]}\nv_cmp_eq_u32 vcc, -1, {acc}'); return
    first=True
    for g in regs:
        if fmt==24: lst=[(g+i,T[i]) for i in range(4)]
        else: lst=[(g+1,T[0]),(g+3,T[0])]
        for r,t in lst:
            if first: a(f'v_xor_b32 {acc}, {t}, v{r}'); first=False
            else: a(f'v_bitop3_b32 {acc}, {acc}, v{r}, {t} bitop3:0xf6')
    if fmt==24: a(f'v_and_b32 {acc}, 0xff, {acc}')
    a(f'v_cmp_ne_u32 vcc, 0, {acc}')
def poll(loads,fmt,scout=None,plain=True):
    D=a.newl()
    def body(ls,pl):
        for g,t in ls: a(t.replace(' sc1','') if pl else t)
        a('s_waitcnt vmcnt(0)'); chk([g for g,t in ls],fmt)
    def again(L):
        budget()
        if P['SLEEP']: a(f's_sleep {P["SLEEP"]}')
        a(f's_branch {L}')
    if scout:
        ex,txt,cmp_=scout
        L=a.newl(); E=a.newl(); a('s_mov_b32 exec_hi, 0' if ex=='LO' else f's_mov_b64 exec, {ex}'); a.label(L)
        a(txt+'\ns_waitcnt vmcnt(0)\n'+cmp_+f'\ns_cbranch_vccz {E}'); again(L); a.label(E); a('s_mov_b64 exec, -1')
    if plain: body(loads,True); a(f's_cbranch_vccz {D}')
    L=a.newl(); a.label(L); body(loads,False); a(f's_cbranch_vccz {D}'); again(L); a.label(D)
def sc(va,so): return f'buffer_load_dwordx2 v[124:125], {va}, s[36:39], {so} offen sc1'
TG='v_cmp_ne_u32 vcc, s5, v125'
SN='v_max_u32 v165, v124, v125\nv_cmp_eq_u32 vcc, -1, v165'
def ld(g,va,so,off=0): return (g,f'buffer_load_dwordx4 {v(g,4)}, {va}, s[36:39], {so} offen offset:{off} sc1')
def mask(g,n=4):
    for i in range(n): a(f'v_and_b32 v{g+i}, v7, v{g+i}')
DP=['quad_perm:[1,0,3,2]','quad_perm:[2,3,0,1]','row_half_mirror','row_mirror']
def dppred(regs,steps,op='add'):
    for s_ in steps:
        for r in regs: a(f'v_{op}_f32_dpp v{r}, v{r}, v{r} {DP[s_]} row_mask:0xf bank_mask:0xf')
def swapred(regs,tmp,op='add',which=(16,32)):
    for w_ in which:
        for i,r in enumerate(regs): a(f'v_mov_b32 v{tmp+i}, v{r}')
        for i,r in enumerate(regs): a(f'v_permlane{w_}_swap_b32 v{r}, v{tmp+i}')
        for i,r in enumerate(regs): a(f'v_{op}_f32 v{r}, v{r}, v{tmp+i}')
def rnd(regs,tmp):
    for i in range(0,len(regs),2): a(f'v_cvt_pk_bf16_f32 v{tmp+i//2}, v{regs[i]}, v{regs[i+1]}')
    for i in range(0,len(regs),2): a(f'v_lshlrev_b32 v{regs[i]}, 16, v{tmp+i//2}\nv_and_b32 v{regs[i+1]}, s48, v{tmp+i//2}')
def rnd1(r): a(f'v_cvt_pk_bf16_f32 v{r}, v{r}, v{r}\nv_and_b32 v{r}, s48, v{r}')
def dup(dst,src):
    for i in range(4): a(f'v_cvt_pk_bf16_f32 v{dst+i}, v{src+i}, v{src+i}')
def unpk(dst,src,n):
    for i in reversed(range(n)): a(f'v_and_b32 v{dst+2*i+1}, s48, v{src+i}\nv_lshlrev_b32 v{dst+2*i}, 16, v{src+i}')
def gemv(hh,wt,first=True):
    for t in range(4):
        A=48+4*(t&1)
        for q in range(4): a(f'v_and_b32 v{A+q}, v{hh+t}, v{3+q}')
        a(f'v_mfma_f32_16x16x32_bf16 v[44:47], {v(A,4)}, {v(wt+4*t,4)}, {"0" if first and t==0 else "v[44:47]"}')
def rdw(dst,base):
    for t in range(4): a(f'ds_read_b128 {v(dst+4*t,4)}, v12 offset:{1024*t}')
def reduce(buf,cnt,n,form,skip,mid=None,ns=8):
    a(f's_mov_b64 exec, s[52:53]\nds_write_b128 v8, v[44:47] offset:{buf-RED0}')
    if mid: a.label(mid)
    a(f'''s_waitcnt lgkmcnt(0)
    s_mov_b64 exec, 1
    ds_add_rtn_u32 v14, v15, v162 offset:{cnt-FL}
    s_mov_b64 exec, -1
    s_waitcnt lgkmcnt(0)
    v_readfirstlane_b32 s50, v14
    s_cmp_lg_u32 s50, {n-1}
    s_cbranch_scc1 {skip}''')
    if form=='A':
        a(f'v_lshlrev_b32 v12, 2, v1\nv_add_u32 v12, {buf}, v12')
        for i in range(ns): a(f'ds_read2st64_b32 {v(96+2*i,2)}, v12 offset0:{2*i} offset1:{2*i+1}')
        a('s_waitcnt lgkmcnt(0)')
        m=2*ns
        while m>2:
            m//=2
            for i in range(0,m,2): a(f'v_pk_add_f32 {v(96+i,2)}, {v(96+i,2)}, {v(96+m+i,2)}')
        a('v_add_f32 v44, v96, v97\nv_mov_b32 v45, s5\nv_mov_b32 v47, s5\nv_lshlrev_b32 v12, 3, v1\nv_mov_b32_dpp v46, v44 quad_perm:[1,0,3,2] row_mask:0xf bank_mask:0xf')
    else:
        for k in range(4): a(f'ds_read_b128 {v(96+4*k,4)}, v10 offset:{buf-RED0+256*k}')
        a('s_waitcnt lgkmcnt(0)')
        a('v_pk_add_f32 v[96:97], v[96:97], v[100:101]\nv_pk_add_f32 v[98:99], v[98:99], v[102:103]')
        a('v_pk_add_f32 v[104:105], v[104:105], v[108:109]\nv_pk_add_f32 v[106:107], v[106:107], v[110:111]')
        a('v_pk_add_f32 v[44:45], v[96:97], v[104:105]\nv_pk_add_f32 v[46:47], v[98:99], v[106:107]')
        swapred([44,45,46,47],96)
def pub24(g,va,so,ex,n=4):
    a(f's_mov_b64 exec, {ex}\nbuffer_store_dwordx{n} {v(g,n)}, {va}, s[36:39], {so} offen sc1\ns_mov_b64 exec, -1')
def stats(X):
    a(f'v_pk_add_f32 v[56:57], {v(X,2)}, {v(X+2,2)}\nv_pk_add_f32 v[58:59], {v(X+4,2)}, {v(X+6,2)}')
    a(f'v_pk_add_f32 v[56:57], v[56:57], {v(X+8,2)}\nv_pk_add_f32 v[58:59], v[58:59], {v(X+10,2)}')
    a(f'v_pk_add_f32 v[56:57], v[56:57], {v(X+12,2)}\nv_pk_add_f32 v[58:59], v[58:59], {v(X+14,2)}')
    a('v_pk_add_f32 v[56:57], v[56:57], v[58:59]\nv_add_f32 v60, v56, v57')
    dppred([60],[0,1,2,3]); swapred([60],62)
    a(f'v_mul_f32 v60, {f2u(-1/1024)}, v60')
    for i in range(0,16,2): a(f'v_pk_add_f32 {v(X+i,2)}, {v(X+i,2)}, v[60:61] op_sel_hi:[1,0]')
    a(f'v_pk_mul_f32 v[56:57], {v(X,2)}, {v(X,2)}\nv_pk_mul_f32 v[58:59], {v(X+2,2)}, {v(X+2,2)}')
    for i in range(4,16,2): a(f'v_pk_fma_f32 {v(56+(i&2),2)}, {v(X+i,2)}, {v(X+i,2)}, {v(56+(i&2),2)}')
    a('v_pk_add_f32 v[56:57], v[56:57], v[58:59]\nv_add_f32 v61, v56, v57')
    dppred([61],[0,1,2,3]); swapred([61],62)
    a(f'v_mul_f32 v61, {f2u(1/1024)}, v61\nv_sub_f32 v60, 0, v60')
    rnd([60,61],62); a(f'v_add_f32 v61, {f2u(1e-5)}, v61'); rnd1(61); a('v_sqrt_f32 v61, v61'); rnd1(61); a('v_rcp_f32 v61, v61')
def norm(X,n,tmp):
    R=list(range(X,X+n))
    for r in R: a(f'v_sub_f32 v{r}, v{r}, v60')
    rnd(R,tmp)
    for r in R: a(f'v_mul_f32 v{r}, v{r}, v61')
    rnd(R,tmp)
def sigm(X,Y,n):
    for i in range(n): a(f'v_exp_f32 v{Y+i}, v{Y+i}')
    for i in range(n): a(f'v_add_f32 v{Y+i}, 1.0, v{Y+i}')
    for i in range(n): a(f'v_rcp_f32 v{Y+i}, v{Y+i}')
    for i in range(n): a(f'v_mul_f32 v{X+i}, v{X+i}, v{Y+i}')
def silu(dst,src):
    unpk(56,src,2)
    for i in range(4): a(f'v_mul_f32 v{60+i}, {f2u(-1.4426950408889634)}, v{56+i}')
    sigm(56,60,4); dup(dst,56)

a('''s_cmp_ge_u32 s2, 256
s_cbranch_scc1 EXIT
s_load_dwordx16 s[8:23], s[0:1], 0
s_load_dwordx8 s[24:31], s[0:1], 64
s_load_dwordx4 s[32:35], s[0:1], 96
v_lshrrev_b32 v2, 6, v0
v_and_b32 v1, 63, v0
s_and_b32 s3, s2, 7
s_lshl_b32 s3, s3, 5
s_lshr_b32 s6, s2, 3
s_add_u32 s3, s3, s6
v_readfirstlane_b32 s4, v2
v_lshrrev_b32 v2, 3, v1
v_and_b32 v9, 7, v1
v_lshlrev_b32 v9, 4, v9
s_mov_b32 s49, 0x200000
s_and_b32 s54, s3, 63
s_lshr_b32 s55, s3, 6
s_and_b32 s56, s3, 15
s_lshr_b32 s57, s3, 4
s_cmp_ge_u32 s3, 112
s_cselect_b32 s58, 1, 0
s_mul_i32 s6, s58, 112
s_sub_u32 s60, s3, s6
s_cmp_ge_u32 s60, 56
s_cselect_b32 s59, 1, 0
s_mul_i32 s6, s59, 56
s_sub_u32 s60, s60, s6
v_mov_b32 v15, %d
v_mov_b32 v162, 1
v_mov_b32 v126, 0
v_mov_b32 v14, 0
v_lshl_add_u32 v12, v1, 2, v15
s_mov_b64 exec, 0xffff
ds_write_b32 v12, v14
s_mov_b64 exec, -1
s_waitcnt lgkmcnt(0)
s_cmp_eq_u32 s4, 8
s_cbranch_scc1 LOADER'''%FL)
stamp(29)
a('''s_lshl_b32 s61, s4, 5
s_lshr_b32 s6, s3, 5
s_lshl_b32 s6, s6, 7
s_add_u32 s62, s6, s61
s_lshl_b32 s6, s55, 8
s_add_u32 s63, s6, s61
v_mul_u32_u24 v12, 49152, v2
v_add_u32 v12, v12, v9
s_mul_i32 s64, s62, 12288
s_and_b32 s6, s3, 31
s_lshl_b32 s6, s6, 7
s_add_u32 s64, s64, s6
v_lshlrev_b32 v13, 3, v2
v_lshlrev_b32 v14, 5, v1
s_lshl_b32 s65, s62, 1
s_lshl_b32 s66, s63, 1
s_load_dword s5, s[34:35], 0''')
srd(40,28,12582912)
a('s_cmp_ge_u32 s4, 4\ns_cbranch_scc1 CLEAR')
for t in range(4): a(f'buffer_load_dwordx4 {v(64+4*t,4)}, v12, s[40:43], s64 offen{P["NT"]}\ns_add_u32 s64, s64, 12288')
a.label('NOP1LD')
srd(40,26,2048)
a('buffer_load_dwordx2 v[20:21], v13, s[40:43], s65 offen\nbuffer_load_dwordx2 v[22:23], v13, s[40:43], s66 offen')
srd(40,8,2048)
a('''buffer_load_dwordx2 v[24:25], v13, s[40:43], s66 offen
buffer_load_dwordx4 v[136:139], v14, s[40:43], 0 offen
buffer_load_dwordx4 v[140:143], v14, s[40:43], 0 offen offset:16
v_and_b32 v12, 15, v1
v_lshlrev_b32 v12, 4, v12
v_bfe_u32 v14, v1, 4, 1
v_lshl_add_u32 v12, v14, 3, v12
s_lshl_b32 s6, s4, 8
buffer_load_dwordx2 v[156:157], v12, s[40:43], s6 offen''')
srd(36,34,WSEND if not P['DIAG'] else DG+0x100000)
a(f'''s_barrier
s_mov_b32 s48, 0xffff0000
s_mov_b32 s82, 0x55555555
s_mov_b32 s83, s82
v_and_b32 v12, 1, v1
v_cmp_eq_u32 vcc, 1, v12
v_mov_b32 v13, 0xffff
v_mov_b32 v14, s48
v_cndmask_b32 v13, v13, v14, vcc
v_bfe_u32 v12, v1, 1, 2''')
for q in range(4): a(f'v_cmp_eq_u32 vcc, {q}, v12\nv_cndmask_b32 v{3+q}, 0, v13, vcc')
a(f'''v_lshrrev_b32 v12, 5, v1
v_lshlrev_b32 v8, 8, v12
v_lshl_add_u32 v8, v9, 1, v8
v_and_b32 v12, 16, v1
v_add_u32 v8, v8, v12
s_lshl_b32 s6, s4, 9
s_add_u32 s6, s6, {RED0}
v_add_u32 v8, s6, v8
v_and_b32 v163, 15, v1
v_lshlrev_b32 v163, 4, v163
v_lshrrev_b32 v164, 4, v1
v_lshl_add_u32 v10, v164, 10, v163
v_add_u32 v10, {RED0}, v10
s_lshl_b32 s6, s4, 12
v_lshlrev_b32 v11, 4, v1
v_add_u32 v11, s6, v11
s_mov_b32 s52, 0x00ff00ff
s_mov_b32 s53, 0xff00ff00
s_waitcnt lgkmcnt(0)
s_add_u32 s5, s5, 1
''')
for q in range(4): a(f'v_and_b32 v{156+2+q}, 0x3f803f80, v{3+q}')
stamp(0); stamp(30,'s_memtime')
a('s_cmp_ge_u32 s4, 4\ns_cbranch_scc1 CLRW\ns_waitcnt vmcnt(5)')
silu(16,20)
stamp(1)
gemv(16,64)
reduce(RED0,C_P1,8,'A','P1DONE','P1MID',4)
a(f'''s_and_b32 s6, s3, 31
s_lshl_b32 s6, s6, 12
s_lshr_b32 s7, s3, 5
s_lshl_b32 s7, s7, 9
s_add_u32 s6, s6, s7
s_add_u32 s6, s6, {E1}
s_mov_b64 exec, s[82:83]
buffer_store_dwordx4 v[44:47], v12, s[36:39], s6 offen sc1
s_mov_b64 exec, -1''')
stamp(2)
a.label('P1DONE')
a('s_waitcnt vmcnt(1)')
silu(20,22)
unpk(104,136,8); unpk(16,24,2)
stats(104); norm(16,4,56)
landed(0); a(f'v_add_u32 v12, {R0}, v11'); rdw(64,0); arrive(F_FR0)
a(f'''s_lshr_b32 s6, s63, 6
s_lshl_b32 s6, s6, 12
s_and_b32 s7, s63, 63
s_lshl_b32 s7, s7, 3
s_add_u32 s6, s6, s7
s_add_u32 s6, s6, {E1}
s_add_u32 s7, s6, 65536
v_lshlrev_b32 v12, 5, v9
v_lshl_add_u32 v12, v2, 5, v12''')
stamp(3); stamp(21,'cnt')
a('v_lshlrev_b32 v13, 5, v9\nv_lshl_add_u32 v13, v2, 16, v13')
poll([ld(96,'v12','s6'),ld(100,'v12','s6',16),ld(104,'v12','s7'),ld(108,'v12','s7',16)],8,('0xffff',sc('v13','s6'),TG))
stamp(4); stamp(22,'cnt')
if 1 in GU: arrive(G[1])
sa=[96,98,100,102]; ca=[104,106,108,110]
dppred(sa+ca,[0,1,2]); rnd(sa+ca,56)
for r in ca: a(f'v_add_f32 v{r}, 1.0, v{r}')
rnd(ca,56)
for i in range(4): a(f'v_mul_f32 v{16+i}, v{16+i}, v{ca[i]}')
rnd([16,17,18,19],56)
for i in range(4): a(f'v_add_f32 v{16+i}, v{16+i}, v{sa[i]}')
dup(56,16); gemv(56,64)
reduce(RED1,C_P2,8,'A','P2DONE')
a(f'''s_lshl_b32 s6, s54, 11
s_lshl_b32 s7, s55, 9
s_add_u32 s6, s6, s7
s_add_u32 s6, s6, {E2}
s_mov_b64 exec, s[82:83]
buffer_store_dwordx4 v[44:47], v12, s[36:39], s6 offen sc1
s_mov_b64 exec, -1''')
stamp(5)
a.label('P2DONE')
def m2blk():
    if P['ME']: spin(F_FR0,8); a(f'v_subrev_u32 v8, {RED0-R0}, v8\nv_subrev_u32 v10, {RED0-R0}, v10')
    landed(8 if P['ORD'] else 16); a(f'v_add_u32 v12, {R2}, v11'); rdw(64,0); arrive(F_FR2); gemv(20,64)
    reduce(RED0,C_M2,8,'B','M2DONE')
    a(f's_lshl_b32 s6, s55, 14\ns_lshl_b32 s7, s54, 8\ns_add_u32 s6, s6, s7\ns_add_u32 s6, s6, {M2}')
    pub24(44,'v163','s6','0xffff')
    a.label('M2DONE')
    if P['ME']: a(f'v_add_u32 v8, {RED0-R0}, v8\nv_add_u32 v10, {RED0-R0}, v10')
if P['ME']:
    assert P['ORD'] and P['G5']==3
    m2blk()
a('s_cmp_ge_u32 s4, 4\ns_cbranch_scc1 NOK')
landed(16 if P['ORD'] else 8)
a(f'''v_and_b32 v13, 15, v1
v_xor_b32 v12, v164, v13
v_lshlrev_b32 v12, 4, v12
v_lshl_add_u32 v12, v13, 8, v12
s_lshl_b32 s6, s4, 12
s_add_u32 s6, s6, {RK}
v_add_u32 v12, s6, v12''')
for s_ in range(4): a(f'v_xor_b32 v13, {64*s_}, v12\nds_read_b128 {v(136+4*s_,4)}, v13')
arrive(F_FR0)
a.label('NOK')
a(f's_mov_b32 s50, {24 if P["ORD"] else 16}'); landed('s50')
a(f'''v_bfe_u32 v12, v1, 2, 2
v_lshl_add_u32 v13, v164, 3, v12
v_and_b32 v14, 15, v13
v_bfe_u32 v12, v1, 1, 1
s_lshl_b32 s6, s4, 1
v_add_u32 v12, s6, v12
v_xor_b32 v12, v12, v14
v_lshlrev_b32 v12, 4, v12
v_lshl_add_u32 v12, v13, 8, v12
v_and_b32 v13, 1, v1
v_lshl_add_u32 v12, v13, 3, v12
v_add_u32 v12, {RV}, v12
v_xor_b32 v13, 64, v12
ds_read_b64_tr_b16 v[128:129], v12
ds_read_b64_tr_b16 v[130:131], v13 offset:1024
ds_read_b64_tr_b16 v[132:133], v12 offset:8192
ds_read_b64_tr_b16 v[134:135], v13 offset:9216
s_lshl_b32 s6, s55, 15
s_lshl_b32 s7, s4, 12
s_add_u32 s6, s6, s7
s_add_u32 s6, s6, {E2}
v_and_b32 v13, 31, v1
v_lshlrev_b32 v13, 4, v13
v_lshrrev_b32 v12, 5, v1
v_lshl_add_u32 v12, v12, 11, v13''')
stamp(6); stamp(23,'cnt')
a('v_lshlrev_b32 v13, 9, v1')
poll([ld(96+4*k,'v12','s6',512*k) for k in range(4)],8,('0xff',sc('v13','s6'),TG))
stamp(7); stamp(24,'cnt')
if 2 in GU: arrive(G[2])
a(f'''v_add_f32 v96, v96, v100
v_add_f32 v98, v98, v102
v_add_f32 v104, v104, v108
v_add_f32 v106, v106, v110
v_add_f32 v96, v96, v104
v_add_f32 v98, v98, v106
s_mul_i32 s6, s4, 272
s_add_u32 s6, s6, {QL}
v_lshl_add_u32 v12, v1, 2, s6
v_cvt_pk_bf16_f32 v96, v96, v98
ds_write_b32 v12, v96''')
arrive(C_Q)
a(f'''v_and_b32 v13, 7, v1
v_mul_u32_u24 v13, 272, v13
s_cmp_ge_u32 s4, 4
s_cbranch_scc1 NOQK
v_lshl_add_u32 v12, v164, 4, v13
v_add_u32 v12, {QL}, v12''')
spin(C_Q,8)
for s_ in range(4): a(f'ds_read_b128 {v(96+4*s_,4)}, v12 offset:{64*s_}')
for s_ in range(4): a(f's_waitcnt lgkmcnt({3-s_})\nv_mfma_f32_16x16x32_bf16 v[44:47], {v(136+4*s_,4)}, {v(96+4*s_,4)}, {"0" if s_==0 else "v[44:47]"}')
a(f's_lshl_b32 s6, s4, 6\ns_add_u32 s6, s6, {SC-QL}\nv_add_u32 v12, s6, v12')
rnd([44,45,46,47],56)
for i in range(4): a(f'v_mul_f32 v{44+i}, 0x3db504f3, v{44+i}')
rnd([44,45,46,47],56)
a('s_mov_b32 exec_lo, s52\ns_mov_b32 exec_hi, s52\nds_write_b128 v12, v[44:47]\ns_mov_b64 exec, -1')
arrive(C_S)
a.label('NOQK')
a(f'v_lshl_add_u32 v12, v164, 5, v13\nv_add_u32 v12, {SC}, v12')
spin(C_S,4)
for i,o in enumerate([0,16,128,144]): a(f'ds_read_b128 {v(96+4*i,4)}, v12 offset:{o}')
a('s_waitcnt lgkmcnt(0)\nv_max3_f32 v56, v96, v97, v98')
for i in range(99,111,2): a(f'v_max3_f32 v56, v56, v{i}, v{i+1}')
a('v_max_f32 v56, v56, v111'); swapred([56],58,'max')
a(f'v_mul_f32 v57, {f2u(-1.4426950408889634)}, v56\ns_mov_b32 s6, 0x3fb8aa3b')
for i in range(96,112): a(f'v_fma_f32 v{i}, v{i}, s6, v57')
for i in range(96,112): a(f'v_exp_f32 v{i}, v{i}')
for i in range(8): a(f'v_cvt_pk_bf16_f32 v{112+i}, v{96+2*i}, v{97+2*i}')
a('v_mfma_f32_16x16x32_bf16 v[44:47], v[128:131], v[112:115], 0\nv_mfma_f32_16x16x32_bf16 v[44:47], v[132:135], v[116:119], v[44:47]')
a(f'''s_lshl_b32 s6, s55, 17
s_lshl_b32 s7, s54, 7
s_add_u32 s6, s6, s7
s_lshr_b32 s7, s4, 2
s_lshl_b32 s7, s7, 13
s_add_u32 s6, s6, s7
s_and_b32 s7, s4, 3
s_lshl_b32 s7, s7, 5
s_add_u32 s6, s6, s7
s_add_u32 s6, s6, {E3O}
v_lshlrev_b32 v12, 10, v9
v_lshl_add_u32 v12, v164, 3, v12
s_mov_b32 s50, 0xff
s_mov_b32 s51, 0xff
v_cvt_pk_bf16_f32 v44, v44, v45
v_cvt_pk_bf16_f32 v45, v46, v47
v_mov_b32 v46, v44
v_mov_b32 v47, v45
v_permlane16_swap_b32 v44, v46
v_permlane16_swap_b32 v45, v47''')
pub24(44,'v12','s6','s[50:51]')
a('s_cmp_lg_u32 s4, 0\ns_cbranch_scc1 NOML')
for m in (8,4,2):
    for i in range(0,m,2): a(f'v_pk_add_f32 {v(96+i,2)}, {v(96+i,2)}, {v(96+m+i,2)}')
a('v_add_f32 v57, v96, v97'); swapred([57],58)
a(f'''s_lshl_b32 s6, s55, 12
s_lshl_b32 s7, s54, 3
s_add_u32 s6, s6, s7
s_add_u32 s6, s6, {E3M}
v_lshlrev_b32 v12, 9, v1''')
pub24(56,'v12','s6','0xff',2)
a.label('NOML')
stamp(8)
if not P['ME']: m2blk()
stamp(9)
def e4addr(): a(f's_lshr_b32 s6, s56, 1\ns_lshl_b32 s6, s6, 12\ns_lshl_b32 s7, s57, 8\ns_add_u32 s6, s6, s7\ns_and_b32 s7, s56, 1\ns_lshl_b32 s7, s7, 7\ns_add_u32 s6, s6, s7\ns_add_u32 s64, s6, {E4}\ns_mov_b32 s6, s64')
def e5addr(): a(f's_lshl_b32 s6, s59, 1\ns_add_u32 s6, s6, s58\ns_mul_i32 s6, s6, 14336\ns_lshl_b32 s7, s60, 8\ns_add_u32 s6, s6, s7\ns_add_u32 s6, s6, {E5}')
R8='row_ror:8 row_mask:0xf bank_mask:0xf'
landed(24); a(f'v_add_u32 v12, {R3}, v11'); rdw(64,0)
e4addr()
a(f'''s_and_b32 s6, s4, 3
s_lshl_b32 s7, s57, 2
s_add_u32 s6, s6, s7
s_lshr_b32 s7, s6, 1
s_lshl_b32 s7, s7, 9
s_add_u32 s72, s7, {E3M}
s_lshr_b32 s7, s4, 2
v_and_b32 v13, 1, v1
v_xor_b32 v13, s7, v13
v_lshlrev_b32 v13, 8, v13
v_lshl_add_u32 v13, v2, 5, v13
s_lshl_b32 s6, s6, 1
s_add_u32 s6, s6, s7
s_lshl_b32 s6, s6, 12
s_add_u32 s65, s6, {E3O}
v_lshl_add_u32 v12, v2, 9, v9
s_lshr_b32 s6, s4, 1
s_lshl_b32 s6, s6, 9
s_and_b32 s7, s4, 1
s_lshl_b32 s7, s7, 7
s_add_u32 s6, s6, s7
s_add_u32 s6, s6, {RED1}
v_lshl_add_u32 v166, v2, 4, s6
s_lshl_b32 s66, s56, 8
s_add_u32 s66, s66, {M2}
v_lshl_add_u32 v167, v164, 14, v163''')
a('v_lshlrev_b32 v14, 3, v1')
stamp(10); stamp(25,'cnt')
poll([ld(96+4*t,'v12','s65',128*t) for t in range(4)]+[ld(112,'v13','s72'),ld(116,'v13','s72',16)],0,('-1',sc('v14','s72'),SN))
stamp(11); stamp(26,'cnt')
if 3 in GU: arrive(G[3])
GA=ld(24,'v167','s66'); a(GA[1].replace(' sc1',''))
a(f'''s_lshl_b32 s62, s58, 9
s_lshl_b32 s6, s4, 6
s_add_u32 s62, s62, s6
s_lshl_b32 s62, s62, 2
s_add_u32 s67, s62, {M2+4096}
v_and_b32 v36, 3, v1
v_lshlrev_b32 v36, 14, v36
v_bfe_u32 v13, v1, 2, 1
v_lshl_add_u32 v36, v13, 12, v36
v_lshl_add_u32 v36, v2, 4, v36''')
SB=[ld(28,'v36','s67'),ld(32,'v36','s67',128)]
if P['SBE']:
    for g,t in SB: a(t.replace(' sc1',''))
a(f'v_max3_f32 v58, v112, v114, v116\nv_max_f32 v58, v58, v118'); dppred([58],[0],'max'); a(f'v_max_f32_dpp v58, v58, v58 {R8}'); swapred([58],59,'max')
a(f'v_mul_f32 v58, {f2u(-1.4426950408889634)}, v58\ns_mov_b32 s6, 0x3fb8aa3b')
for t in range(4): a(f'v_fma_f32 v{60+t}, v{112+2*t}, s6, v58')
for t in range(4): a(f'v_exp_f32 v{60+t}, v{60+t}')
dup(60,60)
for t in range(4): a(f'v_mov_b32_dpp v{56+t}, v{60+t} quad_perm:[0,0,2,2] row_mask:0xf bank_mask:0xf')
gemv(56,96)
for t in range(4): a(f'v_and_b32 v{60+t}, s48, v{60+t}')
a('v_mul_f32 v57, v60, v113\nv_fmac_f32 v57, v61, v115\nv_fmac_f32 v57, v62, v117\nv_fmac_f32 v57, v63, v119')
dppred([57],[0]); a(f'v_add_f32_dpp v57, v57, v57 {R8}'); swapred([57],59); a('v_rcp_f32 v57, v57')
for i in range(4): a(f'v_mul_f32 v{44+i}, v{44+i}, v57')
a(f's_mov_b64 exec, s[52:53]\nds_write_b128 v8, v[44:47] offset:{RED1-RED0}'); arrive(C_O); spin(C_O,8)
for i,o in enumerate([0,256,2048,2304]): a(f'ds_read_b128 {v(96+4*i,4)}, v166 offset:{o}')
a('''s_waitcnt lgkmcnt(2)
v_pk_add_f32 v[96:97], v[96:97], v[100:101]
v_pk_add_f32 v[98:99], v[98:99], v[102:103]
s_waitcnt lgkmcnt(0)
v_pk_add_f32 v[104:105], v[104:105], v[108:109]
v_pk_add_f32 v[106:107], v[106:107], v[110:111]
v_pk_add_f32 v[96:97], v[96:97], v[104:105]
v_pk_add_f32 v[98:99], v[98:99], v[106:107]''')
dup(56,96); gemv(56,64)
a('s_waitcnt vmcnt(%d)'%(2 if P['SBE'] else 0)); chk([24],0); a('s_cbranch_vccz GADONE'); poll([GA],0,plain=False); a.label('GADONE')
swapred([24,25,26,27],96); rnd([24,25,26,27],96)
reduce(RED0,C_P4,8,'B','P4DONE')
a('''v_pk_mul_f32 v[44:45], v[44:45], v[24:25]
v_pk_mul_f32 v[46:47], v[46:47], v[26:27]
v_lshrrev_b32 v12, 1, v163
v_cvt_pk_bf16_f32 v44, v44, v45
v_cvt_pk_bf16_f32 v45, v46, v47
v_mov_b32_dpp v46, v44 quad_perm:[1,0,3,2] row_mask:0xf bank_mask:0xf
v_mov_b32_dpp v47, v45 quad_perm:[1,0,3,2] row_mask:0xf bank_mask:0xf''')
if P['SBE']: a('s_waitcnt vmcnt(0)')
pub24(44,'v12','s64','0x5555')
stamp(12)
if P['SBE']: a('s_branch P4DONE2')
a.label('P4DONE')
if P['SBE']: a('s_waitcnt vmcnt(0)'); a.label('P4DONE2')
a(f'''s_cmp_ge_u32 s3, 224
s_cbranch_scc1 P5DONE
v_bfe_u32 v13, v1, 2, 1''')
if P['SBE']: chk([28,32],0); a('s_cbranch_vccz SBDONE')
poll(SB,0,plain=not P['SBE']); a.label('SBDONE')
unpk(152,156,2); dppred(list(range(28,36)),[0,1]); rnd(list(range(28,36)),56)
a('v_cmp_eq_u32 vcc, 1, v13')
for i in range(8): a(f'v_mov_b32_dpp v{96+i}, v{28+i} row_half_mirror row_mask:0xf bank_mask:0xf')
for i in range(8): a(f'v_cndmask_b32 v{36+i}, v{28+i}, v{96+i}, vcc\nv_cndmask_b32 v{28+i}, v{96+i}, v{28+i}, vcc')
for i in range(8): a(f'v_add_f32 v{28+i}, 1.0, v{28+i}')
rnd(list(range(28,36)),56)
e5addr()
a(f'''s_mov_b32 s64, s6
s_lshl_b32 s6, s4, 9
s_add_u32 s6, s6, {X2}
v_lshl_add_u32 v166, v163, 1, s6
v_lshl_add_u32 v166, v164, 4, v166
s_add_u32 s6, s62, {X2}
v_lshl_add_u32 v13, v2, 4, s6
v_lshlrev_b32 v12, 4, v1
v_add_u32 v167, {X2}, v12
s_lshl_b32 s51, s4, 1
s_add_u32 s51, s51, 34
s_lshl_b32 s6, s4, 12
v_add_u32 v16, s6, v11
s_add_u32 s6, s6, {E4}
ds_read_b32 v14, v15
s_waitcnt lgkmcnt(0)
v_cmp_gt_i32 vcc, s51, v14
s_mov_b32 s65, 0
s_cbranch_vccnz NOEARLY
s_mov_b32 s65, 1''')
for t in range(8): a(f'ds_read_b128 {v(64+4*t,4)}, v16 offset:{1024*t}')
a.label('NOEARLY')
a('v_lshlrev_b32 v14, 7, v1')
stamp(13); stamp(27,'cnt')
poll([ld(96+4*n,'v12','s6',1024*n) for n in range(4)],0,('LO',sc('v14','s6'),SN))
stamp(14); stamp(28,'cnt')
for n in range(4): a(f'v_mfma_f32_16x16x32_bf16 v[44:47], v[158:161], {v(96+4*n,4)}, {"v[152:155]" if n==0 else "v[44:47]"}')
a('s_mov_b32 exec_hi, 0\nds_write_b128 v166, v[44:47]')
arrive(C_X); spin(C_X,8)
a('ds_read_b32 v60, v15 offset:%d'%(X2-FL))
for i in range(4): a(f'ds_read_b128 {v(96+4*i,4)}, v167 offset:{1024*i}')
a('ds_read_b128 v[112:115], v13\nds_read_b128 v[116:119], v13 offset:128\ns_waitcnt lgkmcnt(5)')
for i in range(0,16,2):
    if i in (4,8,12): a(f's_waitcnt lgkmcnt({5-i//4})')
    a(f'v_pk_add_f32 {v(96+i,2)}, {v(96+i,2)}, v[60:61] op_sel_hi:[1,0] neg_lo:[0,1] neg_hi:[0,1]')
a('v_pk_add_f32 v[56:57], v[96:97], v[98:99]\nv_pk_mul_f32 v[58:59], v[96:97], v[96:97]\nv_pk_fma_f32 v[58:59], v[98:99], v[98:99], v[58:59]')
for i in range(4,16,2): a(f'v_pk_add_f32 v[56:57], v[56:57], {v(96+i,2)}\nv_pk_fma_f32 v[58:59], {v(96+i,2)}, {v(96+i,2)}, v[58:59]')
a('v_add_f32 v56, v56, v57\nv_add_f32 v57, v58, v59')
dppred([56,57],[0,1,2,3]); swapred([56,57],58)
a(f'''v_mul_f32 v56, {f2u(1/1024)}, v56
v_mul_f32 v57, {f2u(1/1024)}, v57
v_fma_f32 v57, -v56, v56, v57
v_add_f32 v60, v60, v56
v_add_f32 v57, {f2u(1e-5)}, v57
v_rsq_f32 v58, v57
s_waitcnt lgkmcnt(0)''')
for i in range(0,8,2): a(f'v_pk_add_f32 {v(112+i,2)}, {v(112+i,2)}, v[60:61] op_sel_hi:[1,0] neg_lo:[0,1] neg_hi:[0,1]')
for i in range(0,8,2): a(f'v_pk_mul_f32 {v(28+i,2)}, {v(28+i,2)}, v[58:59] op_sel_hi:[1,0]')
for i in range(0,8,2): a(f'v_pk_fma_f32 {v(112+i,2)}, {v(112+i,2)}, {v(28+i,2)}, {v(36+i,2)}')
dup(56,112); dup(60,116)
a('s_cmp_eq_u32 s65, 1\ns_cbranch_scc1 EARLY'); landed('s51')
for t in range(8): a(f'ds_read_b128 {v(64+4*t,4)}, v16 offset:{1024*t}')
a('s_waitcnt lgkmcnt(0)')
a.label('EARLY')
stamp(15)
gemv(56,64); gemv(60,80,False)
reduce(RED0,C_P5,8,'B','P5DONE')
pub24(44,'v163','s64','0xffff')
stamp(16)
a.label('P5DONE')
a(f'v_subrev_u32 v8, {RED0-RV}, v8\nv_subrev_u32 v10, {RED0-RV}, v10')
a('v_mov_b32 v44, 0\nv_mov_b32 v45, 0\nv_mov_b32 v46, 0\nv_mov_b32 v47, 0\ns_cmp_eq_u32 s4, 7\ns_cbranch_scc1 P6RED')
landed(48); a(f'v_add_u32 v12, {R2}, v11'); rdw(64,0)
a(f'''s_mul_i32 s6, s57, 896
s_lshl_b32 s7, s4, 7
s_add_u32 s6, s6, s7
s_add_u32 s6, s6, {E5}
v_and_b32 v13, 3, v2
v_mul_u32_u24 v12, 14336, v13
v_add_u32 v12, v12, v9
v_lshlrev_b32 v13, 2, v2
s_mov_b32 exec_hi, 0''')
stamp(17)
poll([ld(96,'v12','s6')],0,plain=False)
a('s_mov_b64 exec, -1')
stamp(18)
for i in range(4): a(f'v_add_f32_dpp v{104+i}, v{96+i}, v{96+i} {R8}')
for i in range(4): a(f'v_mov_b32 v{108+i}, v{104+i}')
for i in range(4): a(f'v_permlane16_swap_b32 v{104+i}, v{108+i}')
c1=2*0.7978845608028654*1.4426950408889634
a(f's_mov_b32 s6, {f2u(-c1*0.044715)}\nv_mov_b32 v100, {f2u(-c1)}')
for i in range(4): a(f'v_mul_f32 v{96+i}, v{104+i}, v{104+i}')
for i in range(4): a(f'v_fma_f32 v{96+i}, v{96+i}, s6, v100')
for i in range(4): a(f'v_mul_f32 v{96+i}, v{96+i}, v{104+i}')
sigm(104,96,4)
for i in range(4): a(f'v_mul_f32 v{104+i}, v{104+i}, v{108+i}')
dup(60,104)
for i in range(4): a(f'ds_bpermute_b32 v{56+i}, v13, v{60+i}')
a('s_waitcnt lgkmcnt(0)'); gemv(56,64)
a.label('P6RED')
reduce(RED0,C_P6,8,'B','P6DONE')
a(f's_lshl_b32 s6, s57, 12\ns_lshl_b32 s7, s56, 8\ns_add_u32 s6, s6, s7\ns_add_u32 s6, s6, {E6}')
pub24(44,'v163','s6','0xffff')
stamp(19)
a.label('P6DONE')
a(f'''s_cmp_lg_u32 s4, 7
s_cbranch_scc1 TIMEOUT
s_cmp_ge_u32 s3, 64
s_cbranch_scc1 TIMEOUT
s_lshl_b32 s62, s3, 6
s_add_u32 s6, s62, {M2+12288}
v_and_b32 v12, 3, v1
v_lshlrev_b32 v12, 14, v12
v_lshl_add_u32 v12, v164, 4, v12
s_add_u32 s7, s62, {X2}
v_lshl_add_u32 v13, v164, 4, s7
ds_read_b128 v[28:31], v13''')
poll([ld(24,'v12','s6')],0)
dppred([24,25,26,27],[0,1]); rnd([24,25,26,27],56)
a(f's_add_u32 s6, s62, {E6}\nv_lshlrev_b32 v12, 8, v163\nv_lshl_add_u32 v12, v164, 4, v12')
srd(40,30,2048)
a('s_waitcnt lgkmcnt(0)'); poll([ld(96,'v12','s6')],0,plain=False)
dppred([96,97,98,99],[0,1,2,3])
for i in range(4): a(f'v_fma_f32 v{96+i}, v{96+i}, v{24+i}, v{28+i}')
a('''v_cvt_pk_bf16_f32 v96, v96, v97
v_cvt_pk_bf16_f32 v97, v98, v99
v_lshlrev_b32 v12, 3, v164
s_lshl_b32 s6, s3, 5
s_mov_b32 exec_lo, 0x10001
s_mov_b32 exec_hi, 0x10001
buffer_store_dwordx2 v[96:97], v12, s[40:43], s6 offen''')
stamp(20); stamp(31,'s_memtime')
a('''s_cmp_lg_u32 s3, 0
s_cbranch_scc1 TIMEOUT
s_mov_b64 exec, 1
v_mov_b32 v12, 0
v_mov_b32 v13, s5
buffer_store_dword v13, v12, s[36:39], 0 offen sc1
TIMEOUT:''')
flush()
a('EXIT:\ns_endpgm')
a.label('CLEAR')
srd(36,34,WSEND)
a('v_and_b32 v163, 15, v1\nv_lshlrev_b32 v163, 4, v163')
a(f'''v_mov_b32 v44, -1
v_mov_b32 v45, -1
v_mov_b32 v46, -1
v_mov_b32 v47, -1
s_cmp_eq_u32 s4, 4
s_cbranch_scc0 CLR5
s_lshl_b32 s6, s55, 17
s_lshl_b32 s7, s54, 7
s_add_u32 s6, s6, s7
s_add_u32 s6, s6, {E3O}
s_add_u32 s7, s6, 65536
v_lshl_add_u32 v12, v2, 13, v9
buffer_store_dwordx4 v[44:47], v12, s[36:39], s6 offen sc1
buffer_store_dwordx4 v[44:47], v12, s[36:39], s7 offen sc1
s_branch CLRD
CLR5:
s_cmp_eq_u32 s4, 5
s_cbranch_scc0 CLR6
s_lshl_b32 s6, s55, 12
s_lshl_b32 s7, s54, 3
s_add_u32 s6, s6, s7
s_add_u32 s6, s6, {E3M}
v_lshlrev_b32 v12, 9, v1''')
pub24(44,'v12','s6','0xff',2)
a(f's_lshl_b32 s6, s55, 14\ns_lshl_b32 s7, s54, 8\ns_add_u32 s6, s6, s7\ns_add_u32 s6, s6, {M2}')
pub24(44,'v163','s6','0xffff')
a('s_branch CLRD\nCLR6:\ns_cmp_eq_u32 s4, 6\ns_cbranch_scc0 CLR7')
e4addr(); pub24(44,'v163','s6','0xff')
a(f's_lshl_b32 s6, s57, 12\ns_lshl_b32 s7, s56, 8\ns_add_u32 s6, s6, s7\ns_add_u32 s6, s6, {E6}')
pub24(44,'v163','s6','0xffff')
a('s_branch CLRD\nCLR7:\ns_cmp_ge_u32 s3, 224\ns_cbranch_scc1 CLRD')
e5addr(); pub24(44,'v163','s6','0xffff')
a('CLRD:\ns_branch NOP1LD\nCLRW:\ns_waitcnt vmcnt(0)\ns_branch P1MID')
a.label('LOADER')
def stream(ptr,nbytes,vo,S,BS,nblk,lds,N,flag=True):
    srd(40,ptr,nbytes)
    a(f's_mov_b32 m0, {lds}\ns_add_u32 s51, s50, {nblk}')
    L=a.newl(); a.label(L)
    for t in range(4):
        a(f'buffer_load_dwordx4 {vo[t]}, s[40:43], s6 offen{P["NT"]} lds\ns_add_u32 m0, m0, 0x400\ns_add_u32 s6, s6, {S if t<3 else BS-3*S}')
    a('s_add_u32 s50, s50, 1')
    if flag: a(f's_sub_u32 s7, s50, {N//4}\nv_mov_b32 v14, s7\ns_waitcnt vmcnt({N})\nds_max_i32 v15, v14')
    a(f's_cmp_lt_u32 s50, s51\ns_cbranch_scc1 {L}')
def drain(N):
    for k in range(N-4,-1,-4): a(f's_sub_u32 s7, s50, {k//4}\nv_mov_b32 v14, s7\ns_waitcnt vmcnt({k})\nds_max_i32 v15, v14')
def waitfree(addr,n,N):
    D=a.newl()
    a(f'ds_read_b32 v14, v15 offset:{addr-FL}\ns_waitcnt lgkmcnt(0)\nv_cmp_gt_i32 vcc, {n}, v14\ns_cbranch_vccz {D}')
    drain(N); spin(addr,n); a.label(D)
a('''v_lshl_add_u32 v3, v2, 15, v9
s_lshl_b32 s6, s55, 21
s_lshl_b32 s7, s54, 7
s_add_u32 s6, s6, s7
s_mov_b32 s50, 0''')
stream(14,8388608,['v3']*4,8192,32*8192,8,R0,32,False)
a('''v_lshrrev_b32 v4, 4, v1
v_and_b32 v5, 15, v1
v_xor_b32 v5, v5, v4
v_lshlrev_b32 v5, 4, v5
v_lshl_add_u32 v4, v4, 8, v5
v_xor_b32 v5, 64, v4
v_xor_b32 v6, 128, v4
v_xor_b32 v7, 192, v4
s_lshl_b32 s61, s55, 24
s_lshl_b32 s7, s54, 14
s_add_u32 s61, s61, s7
s_add_u32 s61, s61, %d
s_mov_b32 s6, s61
s_barrier'''%(61440*256))
if P['DIAG']: srd(36,34,DG+0x100000)
KV=['v4','v5','v6','v7']
def gate(k,N):
    if P[k]: waitfree(G[P[k]],P['TH'],N)
def sM(prev):
    a('v_mul_u32_u24 v3, 49152, v2\nv_add_u32 v3, v3, v9\ns_mul_i32 s6, s55, 3145728\ns_lshl_b32 s7, s54, 7\ns_add_u32 s6, s6, s7\ns_add_u32 s6, s6, 4096')
    gate('GM',prev); stream(28,12582912,['v3']*4,12288,32*12288,8,R2,P['NM']); stamp(2)
def sKV(prev):
    gate('GK',prev); a('s_mov_b32 s6, s61')
    stream(10,67108864,KV,1024,4096,4,RK,P['N0']); stamp(0)
    gate('GV',P['N0']); a('s_mov_b32 s6, s61'); stream(12,67108864,KV,1024,4096,4,RV,P['NV']); stamp(1)
if P['ORD']: sM(32); sKV(P['NM']); P['NM']=P['NV']
else: sKV(32); sM(P['NV'])
a('v_lshl_add_u32 v8, v2, 13, v9\ns_lshl_b32 s6, s57, 19\ns_lshl_b32 s7, s56, 7\ns_add_u32 s6, s6, s7')
gate('G4',P['NM']); stream(16,8388608,['v8']*4,2048,32*2048,8,R3,P['N2']); stamp(3)
a('s_cmp_ge_u32 s3, 224\ns_cbranch_scc1 NOP5')
waitfree(F_FR0,12,P['N2']); gate('G5',P['N2'])
a('''v_mul_u32_u24 v3, 28672, v2
v_add_u32 v3, v3, v9
s_mul_i32 s6, s58, 3670016
s_lshl_b32 s7, s60, 7
s_add_u32 s6, s6, s7
s_cmp_eq_u32 s59, 1
s_cselect_b32 s62, s22, s20
s_cselect_b32 s63, s23, s21''')
stream(62,7340032,['v3']*4,7168,32*7168,16,R0,P['N3']); stamp(4)
a('s_branch YESP5'); a.label('NOP5'); drain(P['N2']); a('s_mov_b32 s50, 48'); a.label('YESP5')
waitfree(F_FR2,8,P['N3']); gate('G6',P['N3'])
a('s_mul_i32 s6, s57, 458752\ns_lshl_b32 s7, s56, 7\ns_add_u32 s6, s6, s7')
stream(24,7340032,['v8']*4,2048,32*2048,7,R2,P['N4'])
drain(P['N4']); stamp(5)
flush()
a('s_waitcnt lgkmcnt(0)\ns_endpgm')
ref=open('cdna_kernels/'+NAME+'.s.ref').read()
head=ref[:ref.index('; Override launch')]
txt=head+('; DIAG\n' if P['DIAG'] else '')+f'''; @launch grid=(256,1,1) block=(576,1,1) lds={LDSZ}
.amdgcn_target "amdgcn-amd-amdhsa--gfx950"
.text
.globl {NAME}_kernel
.p2align 8
.type {NAME}_kernel,@function
{NAME}_kernel:
'''+a.text()+f'''.section .rodata,"a"
.p2align 6
.amdhsa_kernel {NAME}_kernel
  .amdhsa_next_free_vgpr %d
  .amdhsa_next_free_sgpr 96
  .amdhsa_accum_offset %d
  .amdhsa_group_segment_fixed_size 0
  .amdhsa_kernarg_size 112
  .amdhsa_user_sgpr_count 2
  .amdhsa_user_sgpr_kernarg_segment_ptr 1
  .amdhsa_system_sgpr_workgroup_id_x 1
.end_amdhsa_kernel
'''%((168,168))
open(sys.argv[1],'w').write(txt)
```

```python
import sys,struct
from asmlib import Asm
P=dict(DIAG=0,NT=' nt',N0=32,N1=20,N2=20,N3=20,SLEEP=1,PRESPIN=1,WARM=0,PRE3=0,PRE4=0,E3PRE=0,GK=0,GV=0,GM=0,G4=0,G5=0,G6=0,TH=8,N4=12,NV=0,NM=0,ORD=0,SBE=1,ME=0,MK=1)
for a in sys.argv[2:]:
    k,v=a.split('='); P[k]=v if k=='NT' else int(v)
if P['NT']=='0': P['NT']=''
NAME='adaLN_cond__sliding_block_cached__geglu_ffn__decode'
def f2u(x): return '0x%08x'%struct.unpack('<I',struct.pack('<f',x))[0]
E1,E2,E3O,E3M,M2,E4,E5,E6,WSEND=0x1000,0x21000,0x41000,0x141000,0x149000,0x159000,0x169000,0x177000,0x187000
DG=0x190000
R0,RK,RV,R2,R3,W=0,32768,65536,81920,114688,147456
FL=W; RED0=W+128; RED1=RED0+4096; QL=RED1+4096; SC=QL+2176; X2=QL; LDSZ=SC+2176
F_LAND,F_FR0,F_FR2,C_P1,C_P2,C_Q,C_S,C_M2,C_P4,C_X,C_P5,C_P6,C_O=[FL+4*i for i in range(13)]
G=[0,FL+52,FL+56,FL+60]
GU={P[k] for k in ('GK','GV','GM','G4','G5','G6')}
P['NV']=P['NV'] or P['N1']; P['NM']=P['NM'] or P['N1']
a=Asm()
T=['s5','s44','s45','s46']
def v(i,n=1): return f'v{i}' if n==1 else f'v[{i}:{i+n-1}]'
def srd(d,p,n): a(f's_mov_b32 s{d}, s{p}\ns_mov_b32 s{d+1}, s{p+1}\ns_mov_b32 s{d+2}, {n}\ns_mov_b32 s{d+3}, 0x20000')
def stamp(i,ins='s_memrealtime'):
    if P['DIAG']:
        if ins=='cnt': a(f'v_writelane_b32 v126, s49, {i}')
        else: a(f'{ins} s[76:77]\ns_waitcnt lgkmcnt(0)\nv_writelane_b32 v126, s76, {i}')
def flush():
    if P['DIAG']==2:
        L=a.newl(); srd(36,32,256)
        a(f's_cmp_lg_u32 s3, 0\ns_cbranch_scc1 {L}\ns_cmp_lg_u32 s4, 7\ns_cbranch_scc1 {L}\nv_readlane_b32 s78, v126, 29\ns_mov_b64 exec, -1\ns_nop 4\nv_subrev_u32 v126, s78, v126\nv_lshlrev_b32 v127, 1, v1\ns_mov_b32 exec_hi, 0\nbuffer_store_short v126, v127, s[36:39], 0 offen'); a.label(L)
    elif P['DIAG']:
        srd(36,34,DG+0x100000)
        a(f's_mul_i32 s78, s3, 2304\ns_lshl_b32 s79, s4, 8\ns_add_u32 s78, s78, s79\ns_add_u32 s78, s78, {DG}\ns_mov_b64 exec, -1\nv_lshlrev_b32 v127, 2, v1\nbuffer_store_dword v126, v127, s[36:39], s78 offen')
def budget(): a('s_sub_u32 s49, s49, 1\ns_cbranch_scc1 TIMEOUT')
def spin(addr,thr):
    L=a.newl(); a.label(L); budget()
    a(f'ds_read_b32 v14, v15 offset:{addr-FL}\ns_waitcnt lgkmcnt(0)\nv_cmp_gt_i32 vcc, {thr}, v14\ns_cbranch_vccnz {L}')
def arrive(addr):
    a(f's_waitcnt lgkmcnt(0)\ns_mov_b64 exec, 1\nds_add_u32 v15, v162 offset:{addr-FL}\ns_mov_b64 exec, -1')
def landed(c):
    if isinstance(c,int): a(f's_add_u32 s50, s4, {c+1}'); c='s50'
    spin(F_LAND,c)
def chk(regs,fmt,acc='v165'):
    if fmt==0:
        R=[g+i for g in regs for i in range(4)]
        a(f'v_max3_u32 {acc}, v{R[0]}, v{R[1]}, v{R[2]}')
        for i in range(3,len(R)-1,2): a(f'v_max3_u32 {acc}, {acc}, v{R[i]}, v{R[i+1]}')
        a(f'v_max_u32 {acc}, {acc}, v{R[-1]}\nv_cmp_eq_u32 vcc, -1, {acc}'); return
    first=True
    for g in regs:
        if fmt==24: lst=[(g+i,T[i]) for i in range(4)]
        else: lst=[(g+1,T[0]),(g+3,T[0])]
        for r,t in lst:
            if first: a(f'v_xor_b32 {acc}, {t}, v{r}'); first=False
            else: a(f'v_bitop3_b32 {acc}, {acc}, v{r}, {t} bitop3:0xf6')
    if fmt==24: a(f'v_and_b32 {acc}, 0xff, {acc}')
    a(f'v_cmp_ne_u32 vcc, 0, {acc}')
MK='\ns_mov_b64 exec, vcc' if P['MK'] else ''
def poll(loads,fmt,scout=None,plain=True):
    D=a.newl()
    def body(ls,pl):
        for g,t in ls: a(t.replace(' sc1','') if pl else t)
        a('s_waitcnt vmcnt(0)'); chk([g for g,t in ls],fmt)
    def again(L):
        budget()
        if P['SLEEP']: a(f's_sleep {P["SLEEP"]}')
        a(f's_branch {L}')
    if scout:
        ex,txt,cmp_=scout
        L=a.newl(); E=a.newl(); a('s_mov_b32 exec_hi, 0' if ex=='LO' else f's_mov_b64 exec, {ex}'); a.label(L)
        a(txt+'\ns_waitcnt vmcnt(0)\n'+cmp_+f'\ns_cbranch_vccz {E}'+MK); again(L); a.label(E); a('s_mov_b64 exec, -1')
    if plain: body(loads,True); a(f's_cbranch_vccz {D}'+MK)
    L=a.newl(); a.label(L); body(loads,False); a(f's_cbranch_vccz {D}'+MK); again(L); a.label(D)
    if P['MK']: a('s_mov_b64 exec, -1')
def sc(va,so): return f'buffer_load_dwordx2 v[124:125], {va}, s[36:39], {so} offen sc1'
TG='v_cmp_ne_u32 vcc, s5, v125'
SN='v_max_u32 v165, v124, v125\nv_cmp_eq_u32 vcc, -1, v165'
def ld(g,va,so,off=0): return (g,f'buffer_load_dwordx4 {v(g,4)}, {va}, s[36:39], {so} offen offset:{off} sc1')
def mask(g,n=4):
    for i in range(n): a(f'v_and_b32 v{g+i}, v7, v{g+i}')
DP=['quad_perm:[1,0,3,2]','quad_perm:[2,3,0,1]','row_half_mirror','row_mirror']
def dppred(regs,steps,op='add'):
    for s_ in steps:
        for r in regs: a(f'v_{op}_f32_dpp v{r}, v{r}, v{r} {DP[s_]} row_mask:0xf bank_mask:0xf')
def swapred(regs,tmp,op='add',which=(16,32)):
    for w_ in which:
        for i,r in enumerate(regs): a(f'v_mov_b32 v{tmp+i}, v{r}')
        for i,r in enumerate(regs): a(f'v_permlane{w_}_swap_b32 v{r}, v{tmp+i}')
        for i,r in enumerate(regs): a(f'v_{op}_f32 v{r}, v{r}, v{tmp+i}')
def rnd(regs,tmp):
    for i in range(0,len(regs),2): a(f'v_cvt_pk_bf16_f32 v{tmp+i//2}, v{regs[i]}, v{regs[i+1]}')
    for i in range(0,len(regs),2): a(f'v_lshlrev_b32 v{regs[i]}, 16, v{tmp+i//2}\nv_and_b32 v{regs[i+1]}, s48, v{tmp+i//2}')
def rnd1(r): a(f'v_cvt_pk_bf16_f32 v{r}, v{r}, v{r}\nv_and_b32 v{r}, s48, v{r}')
def dup(dst,src):
    for i in range(4): a(f'v_cvt_pk_bf16_f32 v{dst+i}, v{src+i}, v{src+i}')
def unpk(dst,src,n):
    for i in reversed(range(n)): a(f'v_and_b32 v{dst+2*i+1}, s48, v{src+i}\nv_lshlrev_b32 v{dst+2*i}, 16, v{src+i}')
def gemv(hh,wt,first=True):
    for t in range(4):
        A=48+4*(t&1)
        for q in range(4): a(f'v_and_b32 v{A+q}, v{hh+t}, v{3+q}')
        a(f'v_mfma_f32_16x16x32_bf16 v[44:47], {v(A,4)}, {v(wt+4*t,4)}, {"0" if first and t==0 else "v[44:47]"}')
def rdw(dst,base):
    for t in range(4): a(f'ds_read_b128 {v(dst+4*t,4)}, v12 offset:{1024*t}')
def reduce(buf,cnt,n,form,skip,mid=None,ns=8):
    a(f's_mov_b64 exec, s[52:53]\nds_write_b128 v8, v[44:47] offset:{buf-RED0}')
    if mid: a.label(mid)
    a(f'''s_waitcnt lgkmcnt(0)
    s_mov_b64 exec, 1
    ds_add_rtn_u32 v14, v15, v162 offset:{cnt-FL}
    s_mov_b64 exec, -1
    s_waitcnt lgkmcnt(0)
    v_readfirstlane_b32 s50, v14
    s_cmp_lg_u32 s50, {n-1}
    s_cbranch_scc1 {skip}''')
    if form=='A':
        a(f'v_lshlrev_b32 v12, 2, v1\nv_add_u32 v12, {buf}, v12')
        for i in range(ns): a(f'ds_read2st64_b32 {v(96+2*i,2)}, v12 offset0:{2*i} offset1:{2*i+1}')
        a('s_waitcnt lgkmcnt(0)')
        m=2*ns
        while m>2:
            m//=2
            for i in range(0,m,2): a(f'v_pk_add_f32 {v(96+i,2)}, {v(96+i,2)}, {v(96+m+i,2)}')
        a('v_add_f32 v44, v96, v97\nv_mov_b32 v45, s5\nv_mov_b32 v47, s5\nv_lshlrev_b32 v12, 3, v1\nv_mov_b32_dpp v46, v44 quad_perm:[1,0,3,2] row_mask:0xf bank_mask:0xf')
    else:
        for k in range(4): a(f'ds_read_b128 {v(96+4*k,4)}, v10 offset:{buf-RED0+256*k}')
        a('s_waitcnt lgkmcnt(0)')
        a('v_pk_add_f32 v[96:97], v[96:97], v[100:101]\nv_pk_add_f32 v[98:99], v[98:99], v[102:103]')
        a('v_pk_add_f32 v[104:105], v[104:105], v[108:109]\nv_pk_add_f32 v[106:107], v[106:107], v[110:111]')
        a('v_pk_add_f32 v[44:45], v[96:97], v[104:105]\nv_pk_add_f32 v[46:47], v[98:99], v[106:107]')
        swapred([44,45,46,47],96)
def pub24(g,va,so,ex,n=4):
    a(f's_mov_b64 exec, {ex}\nbuffer_store_dwordx{n} {v(g,n)}, {va}, s[36:39], {so} offen sc1\ns_mov_b64 exec, -1')
def stats(X):
    a(f'v_pk_add_f32 v[56:57], {v(X,2)}, {v(X+2,2)}\nv_pk_add_f32 v[58:59], {v(X+4,2)}, {v(X+6,2)}')
    a(f'v_pk_add_f32 v[56:57], v[56:57], {v(X+8,2)}\nv_pk_add_f32 v[58:59], v[58:59], {v(X+10,2)}')
    a(f'v_pk_add_f32 v[56:57], v[56:57], {v(X+12,2)}\nv_pk_add_f32 v[58:59], v[58:59], {v(X+14,2)}')
    a('v_pk_add_f32 v[56:57], v[56:57], v[58:59]\nv_add_f32 v60, v56, v57')
    dppred([60],[0,1,2,3]); swapred([60],62)
    a(f'v_mul_f32 v60, {f2u(-1/1024)}, v60')
    for i in range(0,16,2): a(f'v_pk_add_f32 {v(X+i,2)}, {v(X+i,2)}, v[60:61] op_sel_hi:[1,0]')
    a(f'v_pk_mul_f32 v[56:57], {v(X,2)}, {v(X,2)}\nv_pk_mul_f32 v[58:59], {v(X+2,2)}, {v(X+2,2)}')
    for i in range(4,16,2): a(f'v_pk_fma_f32 {v(56+(i&2),2)}, {v(X+i,2)}, {v(X+i,2)}, {v(56+(i&2),2)}')
    a('v_pk_add_f32 v[56:57], v[56:57], v[58:59]\nv_add_f32 v61, v56, v57')
    dppred([61],[0,1,2,3]); swapred([61],62)
    a(f'v_mul_f32 v61, {f2u(1/1024)}, v61\nv_sub_f32 v60, 0, v60')
    rnd([60,61],62); a(f'v_add_f32 v61, {f2u(1e-5)}, v61'); rnd1(61); a('v_sqrt_f32 v61, v61'); rnd1(61); a('v_rcp_f32 v61, v61')
def norm(X,n,tmp):
    R=list(range(X,X+n))
    for r in R: a(f'v_sub_f32 v{r}, v{r}, v60')
    rnd(R,tmp)
    for r in R: a(f'v_mul_f32 v{r}, v{r}, v61')
    rnd(R,tmp)
def sigm(X,Y,n):
    for i in range(n): a(f'v_exp_f32 v{Y+i}, v{Y+i}')
    for i in range(n): a(f'v_add_f32 v{Y+i}, 1.0, v{Y+i}')
    for i in range(n): a(f'v_rcp_f32 v{Y+i}, v{Y+i}')
    for i in range(n): a(f'v_mul_f32 v{X+i}, v{X+i}, v{Y+i}')
def silu(dst,src):
    unpk(56,src,2)
    for i in range(4): a(f'v_mul_f32 v{60+i}, {f2u(-1.4426950408889634)}, v{56+i}')
    sigm(56,60,4); dup(dst,56)

a('''s_cmp_ge_u32 s2, 256
s_cbranch_scc1 EXIT
s_load_dwordx16 s[8:23], s[0:1], 0
s_load_dwordx8 s[24:31], s[0:1], 64
s_load_dwordx4 s[32:35], s[0:1], 96
v_lshrrev_b32 v2, 6, v0
v_and_b32 v1, 63, v0
s_and_b32 s3, s2, 7
s_lshl_b32 s3, s3, 5
s_lshr_b32 s6, s2, 3
s_add_u32 s3, s3, s6
v_readfirstlane_b32 s4, v2
v_lshrrev_b32 v2, 3, v1
v_and_b32 v9, 7, v1
v_lshlrev_b32 v9, 4, v9
s_mov_b32 s49, 0x200000
s_and_b32 s54, s3, 63
s_lshr_b32 s55, s3, 6
s_and_b32 s56, s3, 15
s_lshr_b32 s57, s3, 4
s_cmp_ge_u32 s3, 112
s_cselect_b32 s58, 1, 0
s_mul_i32 s6, s58, 112
s_sub_u32 s60, s3, s6
s_cmp_ge_u32 s60, 56
s_cselect_b32 s59, 1, 0
s_mul_i32 s6, s59, 56
s_sub_u32 s60, s60, s6
v_mov_b32 v15, %d
v_mov_b32 v162, 1
v_mov_b32 v126, 0
v_mov_b32 v14, 0
v_lshl_add_u32 v12, v1, 2, v15
s_mov_b64 exec, 0xffff
ds_write_b32 v12, v14
s_mov_b64 exec, -1
s_waitcnt lgkmcnt(0)
s_cmp_eq_u32 s4, 8
s_cbranch_scc1 LOADER'''%FL)
stamp(29)
a('''s_lshl_b32 s61, s4, 5
s_lshr_b32 s6, s3, 5
s_lshl_b32 s6, s6, 7
s_add_u32 s62, s6, s61
s_lshl_b32 s6, s55, 8
s_add_u32 s63, s6, s61
v_mul_u32_u24 v12, 49152, v2
v_add_u32 v12, v12, v9
s_mul_i32 s64, s62, 12288
s_and_b32 s6, s3, 31
s_lshl_b32 s6, s6, 7
s_add_u32 s64, s64, s6
v_lshlrev_b32 v13, 3, v2
v_lshlrev_b32 v14, 5, v1
s_lshl_b32 s65, s62, 1
s_lshl_b32 s66, s63, 1
s_load_dword s5, s[34:35], 0''')
srd(40,28,12582912)
a('s_cmp_ge_u32 s4, 4\ns_cbranch_scc1 CLEAR')
for t in range(4): a(f'buffer_load_dwordx4 {v(64+4*t,4)}, v12, s[40:43], s64 offen{P["NT"]}\ns_add_u32 s64, s64, 12288')
a.label('NOP1LD')
srd(40,26,2048)
a('buffer_load_dwordx2 v[20:21], v13, s[40:43], s65 offen\nbuffer_load_dwordx2 v[22:23], v13, s[40:43], s66 offen')
srd(40,8,2048)
a('''buffer_load_dwordx2 v[24:25], v13, s[40:43], s66 offen
buffer_load_dwordx4 v[136:139], v14, s[40:43], 0 offen
buffer_load_dwordx4 v[140:143], v14, s[40:43], 0 offen offset:16
v_and_b32 v12, 15, v1
v_lshlrev_b32 v12, 4, v12
v_bfe_u32 v14, v1, 4, 1
v_lshl_add_u32 v12, v14, 3, v12
s_lshl_b32 s6, s4, 8
buffer_load_dwordx2 v[156:157], v12, s[40:43], s6 offen''')
srd(36,34,WSEND if not P['DIAG'] else DG+0x100000)
a(f'''s_barrier
s_mov_b32 s48, 0xffff0000
s_mov_b32 s82, 0x55555555
s_mov_b32 s83, s82
v_and_b32 v12, 1, v1
v_cmp_eq_u32 vcc, 1, v12
v_mov_b32 v13, 0xffff
v_mov_b32 v14, s48
v_cndmask_b32 v13, v13, v14, vcc
v_bfe_u32 v12, v1, 1, 2''')
for q in range(4): a(f'v_cmp_eq_u32 vcc, {q}, v12\nv_cndmask_b32 v{3+q}, 0, v13, vcc')
a(f'''v_lshrrev_b32 v12, 5, v1
v_lshlrev_b32 v8, 8, v12
v_lshl_add_u32 v8, v9, 1, v8
v_and_b32 v12, 16, v1
v_add_u32 v8, v8, v12
s_lshl_b32 s6, s4, 9
s_add_u32 s6, s6, {RED0}
v_add_u32 v8, s6, v8
v_and_b32 v163, 15, v1
v_lshlrev_b32 v163, 4, v163
v_lshrrev_b32 v164, 4, v1
v_lshl_add_u32 v10, v164, 10, v163
v_add_u32 v10, {RED0}, v10
s_lshl_b32 s6, s4, 12
v_lshlrev_b32 v11, 4, v1
v_add_u32 v11, s6, v11
s_mov_b32 s52, 0x00ff00ff
s_mov_b32 s53, 0xff00ff00
s_waitcnt lgkmcnt(0)
s_add_u32 s5, s5, 1
''')
for q in range(4): a(f'v_and_b32 v{156+2+q}, 0x3f803f80, v{3+q}')
stamp(0); stamp(30,'s_memtime')
a('s_cmp_ge_u32 s4, 4\ns_cbranch_scc1 CLRW\ns_waitcnt vmcnt(5)')
silu(16,20)
stamp(1)
gemv(16,64)
reduce(RED0,C_P1,8,'A','P1DONE','P1MID',4)
a(f'''s_and_b32 s6, s3, 31
s_lshl_b32 s6, s6, 12
s_lshr_b32 s7, s3, 5
s_lshl_b32 s7, s7, 9
s_add_u32 s6, s6, s7
s_add_u32 s6, s6, {E1}
s_mov_b64 exec, s[82:83]
buffer_store_dwordx4 v[44:47], v12, s[36:39], s6 offen sc1
s_mov_b64 exec, -1''')
stamp(2)
a.label('P1DONE')
a('s_waitcnt vmcnt(1)')
silu(20,22)
unpk(104,136,8); unpk(16,24,2)
stats(104); norm(16,4,56)
landed(0); a(f'v_add_u32 v12, {R0}, v11'); rdw(64,0); arrive(F_FR0)
a(f'''s_lshr_b32 s6, s63, 6
s_lshl_b32 s6, s6, 12
s_and_b32 s7, s63, 63
s_lshl_b32 s7, s7, 3
s_add_u32 s6, s6, s7
s_add_u32 s6, s6, {E1}
s_add_u32 s7, s6, 65536
v_lshlrev_b32 v12, 5, v9
v_lshl_add_u32 v12, v2, 5, v12''')
stamp(3); stamp(21,'cnt')
a('v_lshlrev_b32 v13, 5, v9\nv_lshl_add_u32 v13, v2, 16, v13')
poll([ld(96,'v12','s6'),ld(100,'v12','s6',16),ld(104,'v12','s7'),ld(108,'v12','s7',16)],8,('0xffff',sc('v13','s6'),TG))
stamp(4); stamp(22,'cnt')
if 1 in GU: arrive(G[1])
sa=[96,98,100,102]; ca=[104,106,108,110]
dppred(sa+ca,[0,1,2]); rnd(sa+ca,56)
for r in ca: a(f'v_add_f32 v{r}, 1.0, v{r}')
rnd(ca,56)
for i in range(4): a(f'v_mul_f32 v{16+i}, v{16+i}, v{ca[i]}')
rnd([16,17,18,19],56)
for i in range(4): a(f'v_add_f32 v{16+i}, v{16+i}, v{sa[i]}')
dup(56,16); gemv(56,64)
reduce(RED1,C_P2,8,'A','P2DONE')
a(f'''s_lshl_b32 s6, s54, 11
s_lshl_b32 s7, s55, 9
s_add_u32 s6, s6, s7
s_add_u32 s6, s6, {E2}
s_mov_b64 exec, s[82:83]
buffer_store_dwordx4 v[44:47], v12, s[36:39], s6 offen sc1
s_mov_b64 exec, -1''')
stamp(5)
a.label('P2DONE')
def m2blk():
    if P['ME']: spin(F_FR0,8); a(f'v_subrev_u32 v8, {RED0-R0}, v8\nv_subrev_u32 v10, {RED0-R0}, v10')
    landed(8 if P['ORD'] else 16); a(f'v_add_u32 v12, {R2}, v11'); rdw(64,0); arrive(F_FR2); gemv(20,64)
    reduce(RED0,C_M2,8,'B','M2DONE')
    a(f's_lshl_b32 s6, s55, 14\ns_lshl_b32 s7, s54, 8\ns_add_u32 s6, s6, s7\ns_add_u32 s6, s6, {M2}')
    pub24(44,'v163','s6','0xffff')
    a.label('M2DONE')
    if P['ME']: a(f'v_add_u32 v8, {RED0-R0}, v8\nv_add_u32 v10, {RED0-R0}, v10')
if P['ME']:
    assert P['ORD'] and P['G5']==3
    m2blk()
a('s_cmp_ge_u32 s4, 4\ns_cbranch_scc1 NOK')
landed(16 if P['ORD'] else 8)
a(f'''v_and_b32 v13, 15, v1
v_xor_b32 v12, v164, v13
v_lshlrev_b32 v12, 4, v12
v_lshl_add_u32 v12, v13, 8, v12
s_lshl_b32 s6, s4, 12
s_add_u32 s6, s6, {RK}
v_add_u32 v12, s6, v12''')
for s_ in range(4): a(f'v_xor_b32 v13, {64*s_}, v12\nds_read_b128 {v(136+4*s_,4)}, v13')
arrive(F_FR0)
a.label('NOK')
a(f's_mov_b32 s50, {24 if P["ORD"] else 16}'); landed('s50')
a(f'''v_bfe_u32 v12, v1, 2, 2
v_lshl_add_u32 v13, v164, 3, v12
v_and_b32 v14, 15, v13
v_bfe_u32 v12, v1, 1, 1
s_lshl_b32 s6, s4, 1
v_add_u32 v12, s6, v12
v_xor_b32 v12, v12, v14
v_lshlrev_b32 v12, 4, v12
v_lshl_add_u32 v12, v13, 8, v12
v_and_b32 v13, 1, v1
v_lshl_add_u32 v12, v13, 3, v12
v_add_u32 v12, {RV}, v12
v_xor_b32 v13, 64, v12
ds_read_b64_tr_b16 v[128:129], v12
ds_read_b64_tr_b16 v[130:131], v13 offset:1024
ds_read_b64_tr_b16 v[132:133], v12 offset:8192
ds_read_b64_tr_b16 v[134:135], v13 offset:9216
s_lshl_b32 s6, s55, 15
s_lshl_b32 s7, s4, 12
s_add_u32 s6, s6, s7
s_add_u32 s6, s6, {E2}
v_and_b32 v13, 31, v1
v_lshlrev_b32 v13, 4, v13
v_lshrrev_b32 v12, 5, v1
v_lshl_add_u32 v12, v12, 11, v13''')
stamp(6); stamp(23,'cnt')
a('v_lshlrev_b32 v13, 9, v1')
poll([ld(96+4*k,'v12','s6',512*k) for k in range(4)],8,('0xff',sc('v13','s6'),TG))
stamp(7); stamp(24,'cnt')
if 2 in GU: arrive(G[2])
a(f'''v_add_f32 v96, v96, v100
v_add_f32 v98, v98, v102
v_add_f32 v104, v104, v108
v_add_f32 v106, v106, v110
v_add_f32 v96, v96, v104
v_add_f32 v98, v98, v106
s_mul_i32 s6, s4, 272
s_add_u32 s6, s6, {QL}
v_lshl_add_u32 v12, v1, 2, s6
v_cvt_pk_bf16_f32 v96, v96, v98
ds_write_b32 v12, v96''')
arrive(C_Q)
a(f'''v_and_b32 v13, 7, v1
v_mul_u32_u24 v13, 272, v13
s_cmp_ge_u32 s4, 4
s_cbranch_scc1 NOQK
v_lshl_add_u32 v12, v164, 4, v13
v_add_u32 v12, {QL}, v12''')
spin(C_Q,8)
for s_ in range(4): a(f'ds_read_b128 {v(96+4*s_,4)}, v12 offset:{64*s_}')
for s_ in range(4): a(f's_waitcnt lgkmcnt({3-s_})\nv_mfma_f32_16x16x32_bf16 v[44:47], {v(136+4*s_,4)}, {v(96+4*s_,4)}, {"0" if s_==0 else "v[44:47]"}')
a(f's_lshl_b32 s6, s4, 6\ns_add_u32 s6, s6, {SC-QL}\nv_add_u32 v12, s6, v12')
rnd([44,45,46,47],56)
for i in range(4): a(f'v_mul_f32 v{44+i}, 0x3db504f3, v{44+i}')
rnd([44,45,46,47],56)
a('s_mov_b32 exec_lo, s52\ns_mov_b32 exec_hi, s52\nds_write_b128 v12, v[44:47]\ns_mov_b64 exec, -1')
arrive(C_S)
a.label('NOQK')
a(f'v_lshl_add_u32 v12, v164, 5, v13\nv_add_u32 v12, {SC}, v12')
spin(C_S,4)
for i,o in enumerate([0,16,128,144]): a(f'ds_read_b128 {v(96+4*i,4)}, v12 offset:{o}')
a('s_waitcnt lgkmcnt(0)\nv_max3_f32 v56, v96, v97, v98')
for i in range(99,111,2): a(f'v_max3_f32 v56, v56, v{i}, v{i+1}')
a('v_max_f32 v56, v56, v111'); swapred([56],58,'max')
a(f'v_mul_f32 v57, {f2u(-1.4426950408889634)}, v56\ns_mov_b32 s6, 0x3fb8aa3b')
for i in range(96,112): a(f'v_fma_f32 v{i}, v{i}, s6, v57')
for i in range(96,112): a(f'v_exp_f32 v{i}, v{i}')
for i in range(8): a(f'v_cvt_pk_bf16_f32 v{112+i}, v{96+2*i}, v{97+2*i}')
a('v_mfma_f32_16x16x32_bf16 v[44:47], v[128:131], v[112:115], 0\nv_mfma_f32_16x16x32_bf16 v[44:47], v[132:135], v[116:119], v[44:47]')
a(f'''s_lshl_b32 s6, s55, 17
s_lshl_b32 s7, s54, 7
s_add_u32 s6, s6, s7
s_lshr_b32 s7, s4, 2
s_lshl_b32 s7, s7, 13
s_add_u32 s6, s6, s7
s_and_b32 s7, s4, 3
s_lshl_b32 s7, s7, 5
s_add_u32 s6, s6, s7
s_add_u32 s6, s6, {E3O}
v_lshlrev_b32 v12, 10, v9
v_lshl_add_u32 v12, v164, 3, v12
s_mov_b32 s50, 0xff
s_mov_b32 s51, 0xff
v_cvt_pk_bf16_f32 v44, v44, v45
v_cvt_pk_bf16_f32 v45, v46, v47
v_mov_b32 v46, v44
v_mov_b32 v47, v45
v_permlane16_swap_b32 v44, v46
v_permlane16_swap_b32 v45, v47''')
pub24(44,'v12','s6','s[50:51]')
a('s_cmp_lg_u32 s4, 0\ns_cbranch_scc1 NOML')
for m in (8,4,2):
    for i in range(0,m,2): a(f'v_pk_add_f32 {v(96+i,2)}, {v(96+i,2)}, {v(96+m+i,2)}')
a('v_add_f32 v57, v96, v97'); swapred([57],58)
a(f'''s_lshl_b32 s6, s55, 12
s_lshl_b32 s7, s54, 3
s_add_u32 s6, s6, s7
s_add_u32 s6, s6, {E3M}
v_lshlrev_b32 v12, 9, v1''')
pub24(56,'v12','s6','0xff',2)
a.label('NOML')
stamp(8)
if not P['ME']: m2blk()
stamp(9)
def e4addr(): a(f's_lshr_b32 s6, s56, 1\ns_lshl_b32 s6, s6, 12\ns_lshl_b32 s7, s57, 8\ns_add_u32 s6, s6, s7\ns_and_b32 s7, s56, 1\ns_lshl_b32 s7, s7, 7\ns_add_u32 s6, s6, s7\ns_add_u32 s64, s6, {E4}\ns_mov_b32 s6, s64')
def e5addr(): a(f's_lshl_b32 s6, s59, 1\ns_add_u32 s6, s6, s58\ns_mul_i32 s6, s6, 14336\ns_lshl_b32 s7, s60, 8\ns_add_u32 s6, s6, s7\ns_add_u32 s6, s6, {E5}')
R8='row_ror:8 row_mask:0xf bank_mask:0xf'
landed(24); a(f'v_add_u32 v12, {R3}, v11'); rdw(64,0)
e4addr()
a(f'''s_and_b32 s6, s4, 3
s_lshl_b32 s7, s57, 2
s_add_u32 s6, s6, s7
s_lshr_b32 s7, s6, 1
s_lshl_b32 s7, s7, 9
s_add_u32 s72, s7, {E3M}
s_lshr_b32 s7, s4, 2
v_and_b32 v13, 1, v1
v_xor_b32 v13, s7, v13
v_lshlrev_b32 v13, 8, v13
v_lshl_add_u32 v13, v2, 5, v13
s_lshl_b32 s6, s6, 1
s_add_u32 s6, s6, s7
s_lshl_b32 s6, s6, 12
s_add_u32 s65, s6, {E3O}
v_lshl_add_u32 v12, v2, 9, v9
s_lshr_b32 s6, s4, 1
s_lshl_b32 s6, s6, 9
s_and_b32 s7, s4, 1
s_lshl_b32 s7, s7, 7
s_add_u32 s6, s6, s7
s_add_u32 s6, s6, {RED1}
v_lshl_add_u32 v166, v2, 4, s6
s_lshl_b32 s66, s56, 8
s_add_u32 s66, s66, {M2}
v_lshl_add_u32 v167, v164, 14, v163''')
a('v_lshlrev_b32 v14, 3, v1')
stamp(10); stamp(25,'cnt')
poll([ld(96+4*t,'v12','s65',128*t) for t in range(4)]+[ld(112,'v13','s72'),ld(116,'v13','s72',16)],0,('-1',sc('v14','s72'),SN))
stamp(11); stamp(26,'cnt')
if 3 in GU: arrive(G[3])
GA=ld(24,'v167','s66'); a(GA[1].replace(' sc1',''))
a(f'''s_lshl_b32 s62, s58, 9
s_lshl_b32 s6, s4, 6
s_add_u32 s62, s62, s6
s_lshl_b32 s62, s62, 2
s_add_u32 s67, s62, {M2+4096}
v_and_b32 v36, 3, v1
v_lshlrev_b32 v36, 14, v36
v_bfe_u32 v13, v1, 2, 1
v_lshl_add_u32 v36, v13, 12, v36
v_lshl_add_u32 v36, v2, 4, v36''')
SB=[ld(28,'v36','s67'),ld(32,'v36','s67',128)]
if P['SBE']:
    for g,t in SB: a(t.replace(' sc1',''))
a(f'v_max3_f32 v58, v112, v114, v116\nv_max_f32 v58, v58, v118'); dppred([58],[0],'max'); a(f'v_max_f32_dpp v58, v58, v58 {R8}'); swapred([58],59,'max')
a(f'v_mul_f32 v58, {f2u(-1.4426950408889634)}, v58\ns_mov_b32 s6, 0x3fb8aa3b')
for t in range(4): a(f'v_fma_f32 v{60+t}, v{112+2*t}, s6, v58')
for t in range(4): a(f'v_exp_f32 v{60+t}, v{60+t}')
dup(60,60)
for t in range(4): a(f'v_mov_b32_dpp v{56+t}, v{60+t} quad_perm:[0,0,2,2] row_mask:0xf bank_mask:0xf')
gemv(56,96)
for t in range(4): a(f'v_and_b32 v{60+t}, s48, v{60+t}')
a('v_mul_f32 v57, v60, v113\nv_fmac_f32 v57, v61, v115\nv_fmac_f32 v57, v62, v117\nv_fmac_f32 v57, v63, v119')
dppred([57],[0]); a(f'v_add_f32_dpp v57, v57, v57 {R8}'); swapred([57],59); a('v_rcp_f32 v57, v57')
for i in range(4): a(f'v_mul_f32 v{44+i}, v{44+i}, v57')
a(f's_mov_b64 exec, s[52:53]\nds_write_b128 v8, v[44:47] offset:{RED1-RED0}'); arrive(C_O); spin(C_O,8)
for i,o in enumerate([0,256,2048,2304]): a(f'ds_read_b128 {v(96+4*i,4)}, v166 offset:{o}')
a('''s_waitcnt lgkmcnt(2)
v_pk_add_f32 v[96:97], v[96:97], v[100:101]
v_pk_add_f32 v[98:99], v[98:99], v[102:103]
s_waitcnt lgkmcnt(0)
v_pk_add_f32 v[104:105], v[104:105], v[108:109]
v_pk_add_f32 v[106:107], v[106:107], v[110:111]
v_pk_add_f32 v[96:97], v[96:97], v[104:105]
v_pk_add_f32 v[98:99], v[98:99], v[106:107]''')
dup(56,96); gemv(56,64)
a('s_waitcnt vmcnt(%d)'%(2 if P['SBE'] else 0)); chk([24],0); a('s_cbranch_vccz GADONE'); poll([GA],0,plain=False); a.label('GADONE')
swapred([24,25,26,27],96); rnd([24,25,26,27],96)
reduce(RED0,C_P4,8,'B','P4DONE')
a('''v_pk_mul_f32 v[44:45], v[44:45], v[24:25]
v_pk_mul_f32 v[46:47], v[46:47], v[26:27]
v_lshrrev_b32 v12, 1, v163
v_cvt_pk_bf16_f32 v44, v44, v45
v_cvt_pk_bf16_f32 v45, v46, v47
v_mov_b32_dpp v46, v44 quad_perm:[1,0,3,2] row_mask:0xf bank_mask:0xf
v_mov_b32_dpp v47, v45 quad_perm:[1,0,3,2] row_mask:0xf bank_mask:0xf''')
if P['SBE']: a('s_waitcnt vmcnt(0)')
pub24(44,'v12','s64','0x5555')
stamp(12)
if P['SBE']: a('s_branch P4DONE2')
a.label('P4DONE')
if P['SBE']: a('s_waitcnt vmcnt(0)'); a.label('P4DONE2')
a(f'''s_cmp_ge_u32 s3, 224
s_cbranch_scc1 P5DONE
v_bfe_u32 v13, v1, 2, 1''')
if P['SBE']: chk([28,32],0); a('s_cbranch_vccz SBDONE')
poll(SB,0,plain=not P['SBE']); a.label('SBDONE')
unpk(152,156,2); dppred(list(range(28,36)),[0,1]); rnd(list(range(28,36)),56)
a('v_cmp_eq_u32 vcc, 1, v13')
for i in range(8): a(f'v_mov_b32_dpp v{96+i}, v{28+i} row_half_mirror row_mask:0xf bank_mask:0xf')
for i in range(8): a(f'v_cndmask_b32 v{36+i}, v{28+i}, v{96+i}, vcc\nv_cndmask_b32 v{28+i}, v{96+i}, v{28+i}, vcc')
for i in range(8): a(f'v_add_f32 v{28+i}, 1.0, v{28+i}')
rnd(list(range(28,36)),56)
e5addr()
a(f'''s_mov_b32 s64, s6
s_lshl_b32 s6, s4, 9
s_add_u32 s6, s6, {X2}
v_lshl_add_u32 v166, v163, 1, s6
v_lshl_add_u32 v166, v164, 4, v166
s_add_u32 s6, s62, {X2}
v_lshl_add_u32 v13, v2, 4, s6
v_lshlrev_b32 v12, 4, v1
v_add_u32 v167, {X2}, v12
s_lshl_b32 s51, s4, 1
s_add_u32 s51, s51, 34
s_lshl_b32 s6, s4, 12
v_add_u32 v16, s6, v11
s_add_u32 s6, s6, {E4}
ds_read_b32 v14, v15
s_waitcnt lgkmcnt(0)
v_cmp_gt_i32 vcc, s51, v14
s_mov_b32 s65, 0
s_cbranch_vccnz NOEARLY
s_mov_b32 s65, 1''')
for t in range(8): a(f'ds_read_b128 {v(64+4*t,4)}, v16 offset:{1024*t}')
a.label('NOEARLY')
a('v_lshlrev_b32 v14, 7, v1')
stamp(13); stamp(27,'cnt')
poll([ld(96+4*n,'v12','s6',1024*n) for n in range(4)],0,('LO',sc('v14','s6'),SN))
stamp(14); stamp(28,'cnt')
for n in range(4): a(f'v_mfma_f32_16x16x32_bf16 v[44:47], v[158:161], {v(96+4*n,4)}, {"v[152:155]" if n==0 else "v[44:47]"}')
a('s_mov_b32 exec_hi, 0\nds_write_b128 v166, v[44:47]')
arrive(C_X); spin(C_X,8)
a('ds_read_b32 v60, v15 offset:%d'%(X2-FL))
for i in range(4): a(f'ds_read_b128 {v(96+4*i,4)}, v167 offset:{1024*i}')
a('ds_read_b128 v[112:115], v13\nds_read_b128 v[116:119], v13 offset:128\ns_waitcnt lgkmcnt(5)')
for i in range(0,16,2):
    if i in (4,8,12): a(f's_waitcnt lgkmcnt({5-i//4})')
    a(f'v_pk_add_f32 {v(96+i,2)}, {v(96+i,2)}, v[60:61] op_sel_hi:[1,0] neg_lo:[0,1] neg_hi:[0,1]')
a('v_pk_add_f32 v[56:57], v[96:97], v[98:99]\nv_pk_mul_f32 v[58:59], v[96:97], v[96:97]\nv_pk_fma_f32 v[58:59], v[98:99], v[98:99], v[58:59]')
for i in range(4,16,2): a(f'v_pk_add_f32 v[56:57], v[56:57], {v(96+i,2)}\nv_pk_fma_f32 v[58:59], {v(96+i,2)}, {v(96+i,2)}, v[58:59]')
a('v_add_f32 v56, v56, v57\nv_add_f32 v57, v58, v59')
dppred([56,57],[0,1,2,3]); swapred([56,57],58)
a(f'''v_mul_f32 v56, {f2u(1/1024)}, v56
v_mul_f32 v57, {f2u(1/1024)}, v57
v_fma_f32 v57, -v56, v56, v57
v_add_f32 v60, v60, v56
v_add_f32 v57, {f2u(1e-5)}, v57
v_rsq_f32 v58, v57
s_waitcnt lgkmcnt(0)''')
for i in range(0,8,2): a(f'v_pk_add_f32 {v(112+i,2)}, {v(112+i,2)}, v[60:61] op_sel_hi:[1,0] neg_lo:[0,1] neg_hi:[0,1]')
for i in range(0,8,2): a(f'v_pk_mul_f32 {v(28+i,2)}, {v(28+i,2)}, v[58:59] op_sel_hi:[1,0]')
for i in range(0,8,2): a(f'v_pk_fma_f32 {v(112+i,2)}, {v(112+i,2)}, {v(28+i,2)}, {v(36+i,2)}')
dup(56,112); dup(60,116)
a('s_cmp_eq_u32 s65, 1\ns_cbranch_scc1 EARLY'); landed('s51')
for t in range(8): a(f'ds_read_b128 {v(64+4*t,4)}, v16 offset:{1024*t}')
a('s_waitcnt lgkmcnt(0)')
a.label('EARLY')
stamp(15)
gemv(56,64); gemv(60,80,False)
reduce(RED0,C_P5,8,'B','P5DONE')
pub24(44,'v163','s64','0xffff')
stamp(16)
a.label('P5DONE')
a(f'v_subrev_u32 v8, {RED0-RV}, v8\nv_subrev_u32 v10, {RED0-RV}, v10')
a('v_mov_b32 v44, 0\nv_mov_b32 v45, 0\nv_mov_b32 v46, 0\nv_mov_b32 v47, 0\ns_cmp_eq_u32 s4, 7\ns_cbranch_scc1 P6RED')
landed(48); a(f'v_add_u32 v12, {R2}, v11'); rdw(64,0)
a(f'''s_mul_i32 s6, s57, 896
s_lshl_b32 s7, s4, 7
s_add_u32 s6, s6, s7
s_add_u32 s6, s6, {E5}
v_and_b32 v13, 3, v2
v_mul_u32_u24 v12, 14336, v13
v_add_u32 v12, v12, v9
v_lshlrev_b32 v13, 2, v2
s_mov_b32 exec_hi, 0''')
stamp(17)
poll([ld(96,'v12','s6')],0,plain=False)
a('s_mov_b64 exec, -1')
stamp(18)
for i in range(4): a(f'v_add_f32_dpp v{104+i}, v{96+i}, v{96+i} {R8}')
for i in range(4): a(f'v_mov_b32 v{108+i}, v{104+i}')
for i in range(4): a(f'v_permlane16_swap_b32 v{104+i}, v{108+i}')
c1=2*0.7978845608028654*1.4426950408889634
a(f's_mov_b32 s6, {f2u(-c1*0.044715)}\nv_mov_b32 v100, {f2u(-c1)}')
for i in range(4): a(f'v_mul_f32 v{96+i}, v{104+i}, v{104+i}')
for i in range(4): a(f'v_fma_f32 v{96+i}, v{96+i}, s6, v100')
for i in range(4): a(f'v_mul_f32 v{96+i}, v{96+i}, v{104+i}')
sigm(104,96,4)
for i in range(4): a(f'v_mul_f32 v{104+i}, v{104+i}, v{108+i}')
dup(60,104)
for i in range(4): a(f'ds_bpermute_b32 v{56+i}, v13, v{60+i}')
a('s_waitcnt lgkmcnt(0)'); gemv(56,64)
a.label('P6RED')
reduce(RED0,C_P6,8,'B','P6DONE')
a(f's_lshl_b32 s6, s57, 12\ns_lshl_b32 s7, s56, 8\ns_add_u32 s6, s6, s7\ns_add_u32 s6, s6, {E6}')
pub24(44,'v163','s6','0xffff')
stamp(19)
a.label('P6DONE')
a(f'''s_cmp_lg_u32 s4, 7
s_cbranch_scc1 TIMEOUT
s_cmp_ge_u32 s3, 64
s_cbranch_scc1 TIMEOUT
s_lshl_b32 s62, s3, 6
s_add_u32 s6, s62, {M2+12288}
v_and_b32 v12, 3, v1
v_lshlrev_b32 v12, 14, v12
v_lshl_add_u32 v12, v164, 4, v12
s_add_u32 s7, s62, {X2}
v_lshl_add_u32 v13, v164, 4, s7
ds_read_b128 v[28:31], v13''')
poll([ld(24,'v12','s6')],0)
dppred([24,25,26,27],[0,1]); rnd([24,25,26,27],56)
a(f's_add_u32 s6, s62, {E6}\nv_lshlrev_b32 v12, 8, v163\nv_lshl_add_u32 v12, v164, 4, v12')
srd(40,30,2048)
a('s_waitcnt lgkmcnt(0)'); poll([ld(96,'v12','s6')],0,plain=False)
dppred([96,97,98,99],[0,1,2,3])
for i in range(4): a(f'v_fma_f32 v{96+i}, v{96+i}, v{24+i}, v{28+i}')
a('''v_cvt_pk_bf16_f32 v96, v96, v97
v_cvt_pk_bf16_f32 v97, v98, v99
v_lshlrev_b32 v12, 3, v164
s_lshl_b32 s6, s3, 5
s_mov_b32 exec_lo, 0x10001
s_mov_b32 exec_hi, 0x10001
buffer_store_dwordx2 v[96:97], v12, s[40:43], s6 offen''')
stamp(20); stamp(31,'s_memtime')
a('''s_cmp_lg_u32 s3, 0
s_cbranch_scc1 TIMEOUT
s_mov_b64 exec, 1
v_mov_b32 v12, 0
v_mov_b32 v13, s5
buffer_store_dword v13, v12, s[36:39], 0 offen sc1
TIMEOUT:''')
flush()
a('EXIT:\ns_endpgm')
a.label('CLEAR')
srd(36,34,WSEND)
a('v_and_b32 v163, 15, v1\nv_lshlrev_b32 v163, 4, v163')
a(f'''v_mov_b32 v44, -1
v_mov_b32 v45, -1
v_mov_b32 v46, -1
v_mov_b32 v47, -1
s_cmp_eq_u32 s4, 4
s_cbranch_scc0 CLR5
s_lshl_b32 s6, s55, 17
s_lshl_b32 s7, s54, 7
s_add_u32 s6, s6, s7
s_add_u32 s6, s6, {E3O}
s_add_u32 s7, s6, 65536
v_lshl_add_u32 v12, v2, 13, v9
buffer_store_dwordx4 v[44:47], v12, s[36:39], s6 offen sc1
buffer_store_dwordx4 v[44:47], v12, s[36:39], s7 offen sc1
s_branch CLRD
CLR5:
s_cmp_eq_u32 s4, 5
s_cbranch_scc0 CLR6
s_lshl_b32 s6, s55, 12
s_lshl_b32 s7, s54, 3
s_add_u32 s6, s6, s7
s_add_u32 s6, s6, {E3M}
v_lshlrev_b32 v12, 9, v1''')
pub24(44,'v12','s6','0xff',2)
a(f's_lshl_b32 s6, s55, 14\ns_lshl_b32 s7, s54, 8\ns_add_u32 s6, s6, s7\ns_add_u32 s6, s6, {M2}')
pub24(44,'v163','s6','0xffff')
a('s_branch CLRD\nCLR6:\ns_cmp_eq_u32 s4, 6\ns_cbranch_scc0 CLR7')
e4addr(); pub24(44,'v163','s6','0xff')
a(f's_lshl_b32 s6, s57, 12\ns_lshl_b32 s7, s56, 8\ns_add_u32 s6, s6, s7\ns_add_u32 s6, s6, {E6}')
pub24(44,'v163','s6','0xffff')
a('s_branch CLRD\nCLR7:\ns_cmp_ge_u32 s3, 224\ns_cbranch_scc1 CLRD')
e5addr(); pub24(44,'v163','s6','0xffff')
a('CLRD:\ns_branch NOP1LD\nCLRW:\ns_waitcnt vmcnt(0)\ns_branch P1MID')
a.label('LOADER')
def stream(ptr,nbytes,vo,S,BS,nblk,lds,N,flag=True):
    srd(40,ptr,nbytes)
    a(f's_mov_b32 m0, {lds}\ns_add_u32 s51, s50, {nblk}')
    L=a.newl(); a.label(L)
    for t in range(4):
        a(f'buffer_load_dwordx4 {vo[t]}, s[40:43], s6 offen{P["NT"]} lds\ns_add_u32 m0, m0, 0x400\ns_add_u32 s6, s6, {S if t<3 else BS-3*S}')
    a('s_add_u32 s50, s50, 1')
    if flag: a(f's_sub_u32 s7, s50, {N//4}\nv_mov_b32 v14, s7\ns_waitcnt vmcnt({N})\nds_max_i32 v15, v14')
    a(f's_cmp_lt_u32 s50, s51\ns_cbranch_scc1 {L}')
def drain(N):
    for k in range(N-4,-1,-4): a(f's_sub_u32 s7, s50, {k//4}\nv_mov_b32 v14, s7\ns_waitcnt vmcnt({k})\nds_max_i32 v15, v14')
def waitfree(addr,n,N):
    D=a.newl()
    a(f'ds_read_b32 v14, v15 offset:{addr-FL}\ns_waitcnt lgkmcnt(0)\nv_cmp_gt_i32 vcc, {n}, v14\ns_cbranch_vccz {D}')
    drain(N); spin(addr,n); a.label(D)
a('''v_lshl_add_u32 v3, v2, 15, v9
s_lshl_b32 s6, s55, 21
s_lshl_b32 s7, s54, 7
s_add_u32 s6, s6, s7
s_mov_b32 s50, 0''')
stream(14,8388608,['v3']*4,8192,32*8192,8,R0,32,False)
a('''v_lshrrev_b32 v4, 4, v1
v_and_b32 v5, 15, v1
v_xor_b32 v5, v5, v4
v_lshlrev_b32 v5, 4, v5
v_lshl_add_u32 v4, v4, 8, v5
v_xor_b32 v5, 64, v4
v_xor_b32 v6, 128, v4
v_xor_b32 v7, 192, v4
s_lshl_b32 s61, s55, 24
s_lshl_b32 s7, s54, 14
s_add_u32 s61, s61, s7
s_add_u32 s61, s61, %d
s_mov_b32 s6, s61
s_barrier'''%(61440*256))
if P['DIAG']: srd(36,34,DG+0x100000)
KV=['v4','v5','v6','v7']
def gate(k,N):
    if P[k]: waitfree(G[P[k]],P['TH'],N)
def sM(prev):
    a('v_mul_u32_u24 v3, 49152, v2\nv_add_u32 v3, v3, v9\ns_mul_i32 s6, s55, 3145728\ns_lshl_b32 s7, s54, 7\ns_add_u32 s6, s6, s7\ns_add_u32 s6, s6, 4096')
    gate('GM',prev); stream(28,12582912,['v3']*4,12288,32*12288,8,R2,P['NM']); stamp(2)
def sKV(prev):
    gate('GK',prev); a('s_mov_b32 s6, s61')
    stream(10,67108864,KV,1024,4096,4,RK,P['N0']); stamp(0)
    gate('GV',P['N0']); a('s_mov_b32 s6, s61'); stream(12,67108864,KV,1024,4096,4,RV,P['NV']); stamp(1)
if P['ORD']: sM(32); sKV(P['NM']); P['NM']=P['NV']
else: sKV(32); sM(P['NV'])
a('v_lshl_add_u32 v8, v2, 13, v9\ns_lshl_b32 s6, s57, 19\ns_lshl_b32 s7, s56, 7\ns_add_u32 s6, s6, s7')
gate('G4',P['NM']); stream(16,8388608,['v8']*4,2048,32*2048,8,R3,P['N2']); stamp(3)
a('s_cmp_ge_u32 s3, 224\ns_cbranch_scc1 NOP5')
waitfree(F_FR0,12,P['N2']); gate('G5',P['N2'])
a('''v_mul_u32_u24 v3, 28672, v2
v_add_u32 v3, v3, v9
s_mul_i32 s6, s58, 3670016
s_lshl_b32 s7, s60, 7
s_add_u32 s6, s6, s7
s_cmp_eq_u32 s59, 1
s_cselect_b32 s62, s22, s20
s_cselect_b32 s63, s23, s21''')
stream(62,7340032,['v3']*4,7168,32*7168,16,R0,P['N3']); stamp(4)
a('s_branch YESP5'); a.label('NOP5'); drain(P['N2']); a('s_mov_b32 s50, 48'); a.label('YESP5')
waitfree(F_FR2,8,P['N3']); gate('G6',P['N3'])
a('s_mul_i32 s6, s57, 458752\ns_lshl_b32 s7, s56, 7\ns_add_u32 s6, s6, s7')
stream(24,7340032,['v8']*4,2048,32*2048,7,R2,P['N4'])
drain(P['N4']); stamp(5)
flush()
a('s_waitcnt lgkmcnt(0)\ns_endpgm')
ref=open('cdna_kernels/'+NAME+'.s.ref').read()
head=ref[:ref.index('; Override launch')]
txt=head+('; DIAG\n' if P['DIAG'] else '')+f'''; @launch grid=(256,1,1) block=(576,1,1) lds={LDSZ}
.amdgcn_target "amdgcn-amd-amdhsa--gfx950"
.text
.globl {NAME}_kernel
.p2align 8
.type {NAME}_kernel,@function
{NAME}_kernel:
'''+a.text()+f'''.section .rodata,"a"
.p2align 6
.amdhsa_kernel {NAME}_kernel
  .amdhsa_next_free_vgpr %d
  .amdhsa_next_free_sgpr 96
  .amdhsa_accum_offset %d
  .amdhsa_group_segment_fixed_size 0
  .amdhsa_kernarg_size 112
  .amdhsa_user_sgpr_count 2
  .amdhsa_user_sgpr_kernarg_segment_ptr 1
  .amdhsa_system_sgpr_workgroup_id_x 1
.end_amdhsa_kernel
'''%((168,168))
open(sys.argv[1],'w').write(txt)
```

```python
import sys,struct
from asmlib import Asm
P=dict(DIAG=0,NT=' nt',N0=32,N1=20,N2=20,N3=20,SLEEP=1,PRESPIN=1,WARM=0,PRE3=0,PRE4=0,E3PRE=0,GK=0,GV=0,GM=0,G4=0,G5=0,G6=0,TH=8,N4=12,NV=0,NM=0,ORD=0,SBE=1,ME=0,MK=1,PS=0,PL=0)
for a in sys.argv[2:]:
    k,v=a.split('='); P[k]=v if k=='NT' else int(v)
if P['NT']=='0': P['NT']=''
NAME='adaLN_cond__sliding_block_cached__geglu_ffn__decode'
def f2u(x): return '0x%08x'%struct.unpack('<I',struct.pack('<f',x))[0]
E1,E2,E3O,E3M,M2,E4,E5,E6,WSEND=0x1000,0x21000,0x41000,0x141000,0x149000,0x159000,0x169000,0x177000,0x187000
DG=0x190000
R0,RK,RV,R2,R3,W=0,32768,65536,81920,114688,147456
FL=W; RED0=W+128; RED1=RED0+4096; QL=RED1+4096; SC=QL+2176; X2=QL; LDSZ=SC+2176
F_LAND,F_FR0,F_FR2,C_P1,C_P2,C_Q,C_S,C_M2,C_P4,C_X,C_P5,C_P6,C_O=[FL+4*i for i in range(13)]
G=[0,FL+52,FL+56,FL+60]
GU={P[k] for k in ('GK','GV','GM','G4','G5','G6')}
P['NV']=P['NV'] or P['N1']; P['NM']=P['NM'] or P['N1']
a=Asm()
T=['s5','s44','s45','s46']
def v(i,n=1): return f'v{i}' if n==1 else f'v[{i}:{i+n-1}]'
def srd(d,p,n): a(f's_mov_b32 s{d}, s{p}\ns_mov_b32 s{d+1}, s{p+1}\ns_mov_b32 s{d+2}, {n}\ns_mov_b32 s{d+3}, 0x20000')
def stamp(i,ins='s_memrealtime'):
    if P['DIAG']:
        if ins=='cnt': a(f'v_writelane_b32 v126, s49, {i}')
        else: a(f'{ins} s[76:77]\ns_waitcnt lgkmcnt(0)\nv_writelane_b32 v126, s76, {i}')
def flush():
    if P['DIAG']==2:
        L=a.newl(); srd(36,32,256)
        a(f's_cmp_lg_u32 s3, 0\ns_cbranch_scc1 {L}\ns_cmp_lg_u32 s4, 7\ns_cbranch_scc1 {L}\nv_readlane_b32 s78, v126, 29\ns_mov_b64 exec, -1\ns_nop 4\nv_subrev_u32 v126, s78, v126\nv_lshlrev_b32 v127, 1, v1\ns_mov_b32 exec_hi, 0\nbuffer_store_short v126, v127, s[36:39], 0 offen'); a.label(L)
    elif P['DIAG']:
        srd(36,34,DG+0x100000)
        a(f's_mul_i32 s78, s3, 2304\ns_lshl_b32 s79, s4, 8\ns_add_u32 s78, s78, s79\ns_add_u32 s78, s78, {DG}\ns_mov_b64 exec, -1\nv_lshlrev_b32 v127, 2, v1\nbuffer_store_dword v126, v127, s[36:39], s78 offen')
def budget(): a('s_sub_u32 s49, s49, 1\ns_cbranch_scc1 TIMEOUT')
def spin(addr,thr):
    L=a.newl(); a.label(L); budget()
    a(f'ds_read_b32 v14, v15 offset:{addr-FL}\ns_waitcnt lgkmcnt(0)\nv_cmp_gt_i32 vcc, {thr}, v14\ns_cbranch_vccnz {L}')
def arrive(addr):
    a(f's_waitcnt lgkmcnt(0)\ns_mov_b64 exec, 1\nds_add_u32 v15, v162 offset:{addr-FL}\ns_mov_b64 exec, -1')
def landed(c):
    if isinstance(c,int): a(f's_add_u32 s50, s4, {c+1}'); c='s50'
    spin(F_LAND,c)
def chk(regs,fmt,acc='v165'):
    if fmt==0:
        R=[g+i for g in regs for i in range(4)]
        a(f'v_max3_u32 {acc}, v{R[0]}, v{R[1]}, v{R[2]}')
        for i in range(3,len(R)-1,2): a(f'v_max3_u32 {acc}, {acc}, v{R[i]}, v{R[i+1]}')
        a(f'v_max_u32 {acc}, {acc}, v{R[-1]}\nv_cmp_eq_u32 vcc, -1, {acc}'); return
    first=True
    for g in regs:
        if fmt==24: lst=[(g+i,T[i]) for i in range(4)]
        else: lst=[(g+1,T[0]),(g+3,T[0])]
        for r,t in lst:
            if first: a(f'v_xor_b32 {acc}, {t}, v{r}'); first=False
            else: a(f'v_bitop3_b32 {acc}, {acc}, v{r}, {t} bitop3:0xf6')
    if fmt==24: a(f'v_and_b32 {acc}, 0xff, {acc}')
    a(f'v_cmp_ne_u32 vcc, 0, {acc}')
MK='\ns_mov_b64 exec, vcc' if P['MK'] else ''
def poll(loads,fmt,scout=None,plain=True,pre=None):
    D=a.newl()
    def body(ls,pl):
        for g,t in ls: a(t.replace(' sc1','') if pl else t)
        a('s_waitcnt vmcnt(0)'); chk([g for g,t in ls],fmt)
    def again(L):
        budget()
        if P['SLEEP']: a(f's_sleep {P["SLEEP"]}')
        a(f's_branch {L}')
    if pre and P['PS']&pre[0]:
        L=a.newl(); E=a.newl(); a(f's_mov_b64 exec, {hex(1<<(pre[3] if P["PL"] else 0))}'); a.label(L)
        a(pre[1]+'\ns_waitcnt vmcnt(0)\n'+pre[2]+f'\ns_cbranch_vccz {E}'); again(L); a.label(E); a(pre[4] if len(pre)>4 else 's_mov_b64 exec, -1')
    if scout:
        ex,txt,cmp_=scout
        L=a.newl(); E=a.newl(); a('s_mov_b32 exec_hi, 0' if ex=='LO' else f's_mov_b64 exec, {ex}'); a.label(L)
        a(txt+'\ns_waitcnt vmcnt(0)\n'+cmp_+f'\ns_cbranch_vccz {E}'+MK); again(L); a.label(E); a('s_mov_b64 exec, -1')
    if plain: body(loads,True); a(f's_cbranch_vccz {D}'+MK)
    L=a.newl(); a.label(L); body(loads,False); a(f's_cbranch_vccz {D}'+MK); again(L); a.label(D)
    if P['MK']: a('s_mov_b64 exec, -1')
def sc(va,so): return f'buffer_load_dwordx2 v[124:125], {va}, s[36:39], {so} offen sc1'
TG='v_cmp_ne_u32 vcc, s5, v125'
SN='v_max_u32 v165, v124, v125\nv_cmp_eq_u32 vcc, -1, v165'
def ld(g,va,so,off=0): return (g,f'buffer_load_dwordx4 {v(g,4)}, {va}, s[36:39], {so} offen offset:{off} sc1')
def mask(g,n=4):
    for i in range(n): a(f'v_and_b32 v{g+i}, v7, v{g+i}')
DP=['quad_perm:[1,0,3,2]','quad_perm:[2,3,0,1]','row_half_mirror','row_mirror']
def dppred(regs,steps,op='add'):
    for s_ in steps:
        for r in regs: a(f'v_{op}_f32_dpp v{r}, v{r}, v{r} {DP[s_]} row_mask:0xf bank_mask:0xf')
def swapred(regs,tmp,op='add',which=(16,32)):
    for w_ in which:
        for i,r in enumerate(regs): a(f'v_mov_b32 v{tmp+i}, v{r}')
        for i,r in enumerate(regs): a(f'v_permlane{w_}_swap_b32 v{r}, v{tmp+i}')
        for i,r in enumerate(regs): a(f'v_{op}_f32 v{r}, v{r}, v{tmp+i}')
def rnd(regs,tmp):
    for i in range(0,len(regs),2): a(f'v_cvt_pk_bf16_f32 v{tmp+i//2}, v{regs[i]}, v{regs[i+1]}')
    for i in range(0,len(regs),2): a(f'v_lshlrev_b32 v{regs[i]}, 16, v{tmp+i//2}\nv_and_b32 v{regs[i+1]}, s48, v{tmp+i//2}')
def rnd1(r): a(f'v_cvt_pk_bf16_f32 v{r}, v{r}, v{r}\nv_and_b32 v{r}, s48, v{r}')
def dup(dst,src):
    for i in range(4): a(f'v_cvt_pk_bf16_f32 v{dst+i}, v{src+i}, v{src+i}')
def unpk(dst,src,n):
    for i in reversed(range(n)): a(f'v_and_b32 v{dst+2*i+1}, s48, v{src+i}\nv_lshlrev_b32 v{dst+2*i}, 16, v{src+i}')
def gemv(hh,wt,first=True):
    for t in range(4):
        A=48+4*(t&1)
        for q in range(4): a(f'v_and_b32 v{A+q}, v{hh+t}, v{3+q}')
        a(f'v_mfma_f32_16x16x32_bf16 v[44:47], {v(A,4)}, {v(wt+4*t,4)}, {"0" if first and t==0 else "v[44:47]"}')
def rdw(dst,base):
    for t in range(4): a(f'ds_read_b128 {v(dst+4*t,4)}, v12 offset:{1024*t}')
def reduce(buf,cnt,n,form,skip,mid=None,ns=8):
    a(f's_mov_b64 exec, s[52:53]\nds_write_b128 v8, v[44:47] offset:{buf-RED0}')
    if mid: a.label(mid)
    a(f'''s_waitcnt lgkmcnt(0)
    s_mov_b64 exec, 1
    ds_add_rtn_u32 v14, v15, v162 offset:{cnt-FL}
    s_mov_b64 exec, -1
    s_waitcnt lgkmcnt(0)
    v_readfirstlane_b32 s50, v14
    s_cmp_lg_u32 s50, {n-1}
    s_cbranch_scc1 {skip}''')
    if form=='A':
        a(f'v_lshlrev_b32 v12, 2, v1\nv_add_u32 v12, {buf}, v12')
        for i in range(ns): a(f'ds_read2st64_b32 {v(96+2*i,2)}, v12 offset0:{2*i} offset1:{2*i+1}')
        a('s_waitcnt lgkmcnt(0)')
        m=2*ns
        while m>2:
            m//=2
            for i in range(0,m,2): a(f'v_pk_add_f32 {v(96+i,2)}, {v(96+i,2)}, {v(96+m+i,2)}')
        a('v_add_f32 v44, v96, v97\nv_mov_b32 v45, s5\nv_mov_b32 v47, s5\nv_lshlrev_b32 v12, 3, v1\nv_mov_b32_dpp v46, v44 quad_perm:[1,0,3,2] row_mask:0xf bank_mask:0xf')
    else:
        for k in range(4): a(f'ds_read_b128 {v(96+4*k,4)}, v10 offset:{buf-RED0+256*k}')
        a('s_waitcnt lgkmcnt(0)')
        a('v_pk_add_f32 v[96:97], v[96:97], v[100:101]\nv_pk_add_f32 v[98:99], v[98:99], v[102:103]')
        a('v_pk_add_f32 v[104:105], v[104:105], v[108:109]\nv_pk_add_f32 v[106:107], v[106:107], v[110:111]')
        a('v_pk_add_f32 v[44:45], v[96:97], v[104:105]\nv_pk_add_f32 v[46:47], v[98:99], v[106:107]')
        swapred([44,45,46,47],96)
def pub24(g,va,so,ex,n=4):
    a(f's_mov_b64 exec, {ex}\nbuffer_store_dwordx{n} {v(g,n)}, {va}, s[36:39], {so} offen sc1\ns_mov_b64 exec, -1')
def stats(X):
    a(f'v_pk_add_f32 v[56:57], {v(X,2)}, {v(X+2,2)}\nv_pk_add_f32 v[58:59], {v(X+4,2)}, {v(X+6,2)}')
    a(f'v_pk_add_f32 v[56:57], v[56:57], {v(X+8,2)}\nv_pk_add_f32 v[58:59], v[58:59], {v(X+10,2)}')
    a(f'v_pk_add_f32 v[56:57], v[56:57], {v(X+12,2)}\nv_pk_add_f32 v[58:59], v[58:59], {v(X+14,2)}')
    a('v_pk_add_f32 v[56:57], v[56:57], v[58:59]\nv_add_f32 v60, v56, v57')
    dppred([60],[0,1,2,3]); swapred([60],62)
    a(f'v_mul_f32 v60, {f2u(-1/1024)}, v60')
    for i in range(0,16,2): a(f'v_pk_add_f32 {v(X+i,2)}, {v(X+i,2)}, v[60:61] op_sel_hi:[1,0]')
    a(f'v_pk_mul_f32 v[56:57], {v(X,2)}, {v(X,2)}\nv_pk_mul_f32 v[58:59], {v(X+2,2)}, {v(X+2,2)}')
    for i in range(4,16,2): a(f'v_pk_fma_f32 {v(56+(i&2),2)}, {v(X+i,2)}, {v(X+i,2)}, {v(56+(i&2),2)}')
    a('v_pk_add_f32 v[56:57], v[56:57], v[58:59]\nv_add_f32 v61, v56, v57')
    dppred([61],[0,1,2,3]); swapred([61],62)
    a(f'v_mul_f32 v61, {f2u(1/1024)}, v61\nv_sub_f32 v60, 0, v60')
    rnd([60,61],62); a(f'v_add_f32 v61, {f2u(1e-5)}, v61'); rnd1(61); a('v_sqrt_f32 v61, v61'); rnd1(61); a('v_rcp_f32 v61, v61')
def norm(X,n,tmp):
    R=list(range(X,X+n))
    for r in R: a(f'v_sub_f32 v{r}, v{r}, v60')
    rnd(R,tmp)
    for r in R: a(f'v_mul_f32 v{r}, v{r}, v61')
    rnd(R,tmp)
def sigm(X,Y,n):
    for i in range(n): a(f'v_exp_f32 v{Y+i}, v{Y+i}')
    for i in range(n): a(f'v_add_f32 v{Y+i}, 1.0, v{Y+i}')
    for i in range(n): a(f'v_rcp_f32 v{Y+i}, v{Y+i}')
    for i in range(n): a(f'v_mul_f32 v{X+i}, v{X+i}, v{Y+i}')
def silu(dst,src):
    unpk(56,src,2)
    for i in range(4): a(f'v_mul_f32 v{60+i}, {f2u(-1.4426950408889634)}, v{56+i}')
    sigm(56,60,4); dup(dst,56)

a('''s_cmp_ge_u32 s2, 256
s_cbranch_scc1 EXIT
s_load_dwordx16 s[8:23], s[0:1], 0
s_load_dwordx8 s[24:31], s[0:1], 64
s_load_dwordx4 s[32:35], s[0:1], 96
v_lshrrev_b32 v2, 6, v0
v_and_b32 v1, 63, v0
s_and_b32 s3, s2, 7
s_lshl_b32 s3, s3, 5
s_lshr_b32 s6, s2, 3
s_add_u32 s3, s3, s6
v_readfirstlane_b32 s4, v2
v_lshrrev_b32 v2, 3, v1
v_and_b32 v9, 7, v1
v_lshlrev_b32 v9, 4, v9
s_mov_b32 s49, 0x200000
s_and_b32 s54, s3, 63
s_lshr_b32 s55, s3, 6
s_and_b32 s56, s3, 15
s_lshr_b32 s57, s3, 4
s_cmp_ge_u32 s3, 112
s_cselect_b32 s58, 1, 0
s_mul_i32 s6, s58, 112
s_sub_u32 s60, s3, s6
s_cmp_ge_u32 s60, 56
s_cselect_b32 s59, 1, 0
s_mul_i32 s6, s59, 56
s_sub_u32 s60, s60, s6
v_mov_b32 v15, %d
v_mov_b32 v162, 1
v_mov_b32 v126, 0
v_mov_b32 v14, 0
v_lshl_add_u32 v12, v1, 2, v15
s_mov_b64 exec, 0xffff
ds_write_b32 v12, v14
s_mov_b64 exec, -1
s_waitcnt lgkmcnt(0)
s_cmp_eq_u32 s4, 8
s_cbranch_scc1 LOADER'''%FL)
stamp(29)
a('''s_lshl_b32 s61, s4, 5
s_lshr_b32 s6, s3, 5
s_lshl_b32 s6, s6, 7
s_add_u32 s62, s6, s61
s_lshl_b32 s6, s55, 8
s_add_u32 s63, s6, s61
v_mul_u32_u24 v12, 49152, v2
v_add_u32 v12, v12, v9
s_mul_i32 s64, s62, 12288
s_and_b32 s6, s3, 31
s_lshl_b32 s6, s6, 7
s_add_u32 s64, s64, s6
v_lshlrev_b32 v13, 3, v2
v_lshlrev_b32 v14, 5, v1
s_lshl_b32 s65, s62, 1
s_lshl_b32 s66, s63, 1
s_load_dword s5, s[34:35], 0''')
srd(40,28,12582912)
a('s_cmp_ge_u32 s4, 4\ns_cbranch_scc1 CLEAR')
for t in range(4): a(f'buffer_load_dwordx4 {v(64+4*t,4)}, v12, s[40:43], s64 offen{P["NT"]}\ns_add_u32 s64, s64, 12288')
a.label('NOP1LD')
srd(40,26,2048)
a('buffer_load_dwordx2 v[20:21], v13, s[40:43], s65 offen\nbuffer_load_dwordx2 v[22:23], v13, s[40:43], s66 offen')
srd(40,8,2048)
a('''buffer_load_dwordx2 v[24:25], v13, s[40:43], s66 offen
buffer_load_dwordx4 v[136:139], v14, s[40:43], 0 offen
buffer_load_dwordx4 v[140:143], v14, s[40:43], 0 offen offset:16
v_and_b32 v12, 15, v1
v_lshlrev_b32 v12, 4, v12
v_bfe_u32 v14, v1, 4, 1
v_lshl_add_u32 v12, v14, 3, v12
s_lshl_b32 s6, s4, 8
buffer_load_dwordx2 v[156:157], v12, s[40:43], s6 offen''')
srd(36,34,WSEND if not P['DIAG'] else DG+0x100000)
a(f'''s_barrier
s_mov_b32 s48, 0xffff0000
s_mov_b32 s82, 0x55555555
s_mov_b32 s83, s82
v_and_b32 v12, 1, v1
v_cmp_eq_u32 vcc, 1, v12
v_mov_b32 v13, 0xffff
v_mov_b32 v14, s48
v_cndmask_b32 v13, v13, v14, vcc
v_bfe_u32 v12, v1, 1, 2''')
for q in range(4): a(f'v_cmp_eq_u32 vcc, {q}, v12\nv_cndmask_b32 v{3+q}, 0, v13, vcc')
a(f'''v_lshrrev_b32 v12, 5, v1
v_lshlrev_b32 v8, 8, v12
v_lshl_add_u32 v8, v9, 1, v8
v_and_b32 v12, 16, v1
v_add_u32 v8, v8, v12
s_lshl_b32 s6, s4, 9
s_add_u32 s6, s6, {RED0}
v_add_u32 v8, s6, v8
v_and_b32 v163, 15, v1
v_lshlrev_b32 v163, 4, v163
v_lshrrev_b32 v164, 4, v1
v_lshl_add_u32 v10, v164, 10, v163
v_add_u32 v10, {RED0}, v10
s_lshl_b32 s6, s4, 12
v_lshlrev_b32 v11, 4, v1
v_add_u32 v11, s6, v11
s_mov_b32 s52, 0x00ff00ff
s_mov_b32 s53, 0xff00ff00
s_waitcnt lgkmcnt(0)
s_add_u32 s5, s5, 1
''')
for q in range(4): a(f'v_and_b32 v{156+2+q}, 0x3f803f80, v{3+q}')
stamp(0); stamp(30,'s_memtime')
a('s_cmp_ge_u32 s4, 4\ns_cbranch_scc1 CLRW\ns_waitcnt vmcnt(5)')
silu(16,20)
stamp(1)
gemv(16,64)
reduce(RED0,C_P1,8,'A','P1DONE','P1MID',4)
a(f'''s_and_b32 s6, s3, 31
s_lshl_b32 s6, s6, 12
s_lshr_b32 s7, s3, 5
s_lshl_b32 s7, s7, 9
s_add_u32 s6, s6, s7
s_add_u32 s6, s6, {E1}
s_mov_b64 exec, s[82:83]
buffer_store_dwordx4 v[44:47], v12, s[36:39], s6 offen sc1
s_mov_b64 exec, -1''')
stamp(2)
a.label('P1DONE')
a('s_waitcnt vmcnt(1)')
silu(20,22)
unpk(104,136,8); unpk(16,24,2)
stats(104); norm(16,4,56)
landed(0); a(f'v_add_u32 v12, {R0}, v11'); rdw(64,0); arrive(F_FR0)
a(f'''s_lshr_b32 s6, s63, 6
s_lshl_b32 s6, s6, 12
s_and_b32 s7, s63, 63
s_lshl_b32 s7, s7, 3
s_add_u32 s6, s6, s7
s_add_u32 s6, s6, {E1}
s_add_u32 s7, s6, 65536
v_lshlrev_b32 v12, 5, v9
v_lshl_add_u32 v12, v2, 5, v12''')
stamp(3); stamp(21,'cnt')
a('v_lshlrev_b32 v13, 5, v9\nv_lshl_add_u32 v13, v2, 16, v13')
poll([ld(96,'v12','s6'),ld(100,'v12','s6',16),ld(104,'v12','s7'),ld(108,'v12','s7',16)],8,('0xffff',sc('v13','s6'),TG),pre=(1,sc('v13','s6'),TG,15))
stamp(4); stamp(22,'cnt')
if 1 in GU: arrive(G[1])
sa=[96,98,100,102]; ca=[104,106,108,110]
dppred(sa+ca,[0,1,2]); rnd(sa+ca,56)
for r in ca: a(f'v_add_f32 v{r}, 1.0, v{r}')
rnd(ca,56)
for i in range(4): a(f'v_mul_f32 v{16+i}, v{16+i}, v{ca[i]}')
rnd([16,17,18,19],56)
for i in range(4): a(f'v_add_f32 v{16+i}, v{16+i}, v{sa[i]}')
dup(56,16); gemv(56,64)
reduce(RED1,C_P2,8,'A','P2DONE')
a(f'''s_lshl_b32 s6, s54, 11
s_lshl_b32 s7, s55, 9
s_add_u32 s6, s6, s7
s_add_u32 s6, s6, {E2}
s_mov_b64 exec, s[82:83]
buffer_store_dwordx4 v[44:47], v12, s[36:39], s6 offen sc1
s_mov_b64 exec, -1''')
stamp(5)
a.label('P2DONE')
def m2blk():
    if P['ME']: spin(F_FR0,8); a(f'v_subrev_u32 v8, {RED0-R0}, v8\nv_subrev_u32 v10, {RED0-R0}, v10')
    landed(8 if P['ORD'] else 16); a(f'v_add_u32 v12, {R2}, v11'); rdw(64,0); arrive(F_FR2); gemv(20,64)
    reduce(RED0,C_M2,8,'B','M2DONE')
    a(f's_lshl_b32 s6, s55, 14\ns_lshl_b32 s7, s54, 8\ns_add_u32 s6, s6, s7\ns_add_u32 s6, s6, {M2}')
    pub24(44,'v163','s6','0xffff')
    a.label('M2DONE')
    if P['ME']: a(f'v_add_u32 v8, {RED0-R0}, v8\nv_add_u32 v10, {RED0-R0}, v10')
if P['ME']:
    assert P['ORD'] and P['G5']==3
    m2blk()
a('s_cmp_ge_u32 s4, 4\ns_cbranch_scc1 NOK')
landed(16 if P['ORD'] else 8)
a(f'''v_and_b32 v13, 15, v1
v_xor_b32 v12, v164, v13
v_lshlrev_b32 v12, 4, v12
v_lshl_add_u32 v12, v13, 8, v12
s_lshl_b32 s6, s4, 12
s_add_u32 s6, s6, {RK}
v_add_u32 v12, s6, v12''')
for s_ in range(4): a(f'v_xor_b32 v13, {64*s_}, v12\nds_read_b128 {v(136+4*s_,4)}, v13')
arrive(F_FR0)
a.label('NOK')
a(f's_mov_b32 s50, {24 if P["ORD"] else 16}'); landed('s50')
a(f'''v_bfe_u32 v12, v1, 2, 2
v_lshl_add_u32 v13, v164, 3, v12
v_and_b32 v14, 15, v13
v_bfe_u32 v12, v1, 1, 1
s_lshl_b32 s6, s4, 1
v_add_u32 v12, s6, v12
v_xor_b32 v12, v12, v14
v_lshlrev_b32 v12, 4, v12
v_lshl_add_u32 v12, v13, 8, v12
v_and_b32 v13, 1, v1
v_lshl_add_u32 v12, v13, 3, v12
v_add_u32 v12, {RV}, v12
v_xor_b32 v13, 64, v12
ds_read_b64_tr_b16 v[128:129], v12
ds_read_b64_tr_b16 v[130:131], v13 offset:1024
ds_read_b64_tr_b16 v[132:133], v12 offset:8192
ds_read_b64_tr_b16 v[134:135], v13 offset:9216
s_lshl_b32 s6, s55, 15
s_lshl_b32 s7, s4, 12
s_add_u32 s6, s6, s7
s_add_u32 s6, s6, {E2}
v_and_b32 v13, 31, v1
v_lshlrev_b32 v13, 4, v13
v_lshrrev_b32 v12, 5, v1
v_lshl_add_u32 v12, v12, 11, v13''')
stamp(6); stamp(23,'cnt')
a('v_lshlrev_b32 v13, 9, v1')
poll([ld(96+4*k,'v12','s6',512*k) for k in range(4)],8,('0xff',sc('v13','s6'),TG),pre=(2,sc('v13','s6'),TG,7))
stamp(7); stamp(24,'cnt')
if 2 in GU: arrive(G[2])
a(f'''v_add_f32 v96, v96, v100
v_add_f32 v98, v98, v102
v_add_f32 v104, v104, v108
v_add_f32 v106, v106, v110
v_add_f32 v96, v96, v104
v_add_f32 v98, v98, v106
s_mul_i32 s6, s4, 272
s_add_u32 s6, s6, {QL}
v_lshl_add_u32 v12, v1, 2, s6
v_cvt_pk_bf16_f32 v96, v96, v98
ds_write_b32 v12, v96''')
arrive(C_Q)
a(f'''v_and_b32 v13, 7, v1
v_mul_u32_u24 v13, 272, v13
s_cmp_ge_u32 s4, 4
s_cbranch_scc1 NOQK
v_lshl_add_u32 v12, v164, 4, v13
v_add_u32 v12, {QL}, v12''')
spin(C_Q,8)
for s_ in range(4): a(f'ds_read_b128 {v(96+4*s_,4)}, v12 offset:{64*s_}')
for s_ in range(4): a(f's_waitcnt lgkmcnt({3-s_})\nv_mfma_f32_16x16x32_bf16 v[44:47], {v(136+4*s_,4)}, {v(96+4*s_,4)}, {"0" if s_==0 else "v[44:47]"}')
a(f's_lshl_b32 s6, s4, 6\ns_add_u32 s6, s6, {SC-QL}\nv_add_u32 v12, s6, v12')
rnd([44,45,46,47],56)
for i in range(4): a(f'v_mul_f32 v{44+i}, 0x3db504f3, v{44+i}')
rnd([44,45,46,47],56)
a('s_mov_b32 exec_lo, s52\ns_mov_b32 exec_hi, s52\nds_write_b128 v12, v[44:47]\ns_mov_b64 exec, -1')
arrive(C_S)
a.label('NOQK')
a(f'v_lshl_add_u32 v12, v164, 5, v13\nv_add_u32 v12, {SC}, v12')
spin(C_S,4)
for i,o in enumerate([0,16,128,144]): a(f'ds_read_b128 {v(96+4*i,4)}, v12 offset:{o}')
a('s_waitcnt lgkmcnt(0)\nv_max3_f32 v56, v96, v97, v98')
for i in range(99,111,2): a(f'v_max3_f32 v56, v56, v{i}, v{i+1}')
a('v_max_f32 v56, v56, v111'); swapred([56],58,'max')
a(f'v_mul_f32 v57, {f2u(-1.4426950408889634)}, v56\ns_mov_b32 s6, 0x3fb8aa3b')
for i in range(96,112): a(f'v_fma_f32 v{i}, v{i}, s6, v57')
for i in range(96,112): a(f'v_exp_f32 v{i}, v{i}')
for i in range(8): a(f'v_cvt_pk_bf16_f32 v{112+i}, v{96+2*i}, v{97+2*i}')
a('v_mfma_f32_16x16x32_bf16 v[44:47], v[128:131], v[112:115], 0\nv_mfma_f32_16x16x32_bf16 v[44:47], v[132:135], v[116:119], v[44:47]')
a(f'''s_lshl_b32 s6, s55, 17
s_lshl_b32 s7, s54, 7
s_add_u32 s6, s6, s7
s_lshr_b32 s7, s4, 2
s_lshl_b32 s7, s7, 13
s_add_u32 s6, s6, s7
s_and_b32 s7, s4, 3
s_lshl_b32 s7, s7, 5
s_add_u32 s6, s6, s7
s_add_u32 s6, s6, {E3O}
v_lshlrev_b32 v12, 10, v9
v_lshl_add_u32 v12, v164, 3, v12
s_mov_b32 s50, 0xff
s_mov_b32 s51, 0xff
v_cvt_pk_bf16_f32 v44, v44, v45
v_cvt_pk_bf16_f32 v45, v46, v47
v_mov_b32 v46, v44
v_mov_b32 v47, v45
v_permlane16_swap_b32 v44, v46
v_permlane16_swap_b32 v45, v47''')
pub24(44,'v12','s6','s[50:51]')
a('s_cmp_lg_u32 s4, 0\ns_cbranch_scc1 NOML')
for m in (8,4,2):
    for i in range(0,m,2): a(f'v_pk_add_f32 {v(96+i,2)}, {v(96+i,2)}, {v(96+m+i,2)}')
a('v_add_f32 v57, v96, v97'); swapred([57],58)
a(f'''s_lshl_b32 s6, s55, 12
s_lshl_b32 s7, s54, 3
s_add_u32 s6, s6, s7
s_add_u32 s6, s6, {E3M}
v_lshlrev_b32 v12, 9, v1''')
pub24(56,'v12','s6','0xff',2)
a.label('NOML')
stamp(8)
if not P['ME']: m2blk()
stamp(9)
def e4addr(): a(f's_lshr_b32 s6, s56, 1\ns_lshl_b32 s6, s6, 12\ns_lshl_b32 s7, s57, 8\ns_add_u32 s6, s6, s7\ns_and_b32 s7, s56, 1\ns_lshl_b32 s7, s7, 7\ns_add_u32 s6, s6, s7\ns_add_u32 s64, s6, {E4}\ns_mov_b32 s6, s64')
def e5addr(): a(f's_lshl_b32 s6, s59, 1\ns_add_u32 s6, s6, s58\ns_mul_i32 s6, s6, 14336\ns_lshl_b32 s7, s60, 8\ns_add_u32 s6, s6, s7\ns_add_u32 s6, s6, {E5}')
R8='row_ror:8 row_mask:0xf bank_mask:0xf'
landed(24); a(f'v_add_u32 v12, {R3}, v11'); rdw(64,0)
e4addr()
a(f'''s_and_b32 s6, s4, 3
s_lshl_b32 s7, s57, 2
s_add_u32 s6, s6, s7
s_lshr_b32 s7, s6, 1
s_lshl_b32 s7, s7, 9
s_add_u32 s72, s7, {E3M}
s_lshr_b32 s7, s4, 2
v_and_b32 v13, 1, v1
v_xor_b32 v13, s7, v13
v_lshlrev_b32 v13, 8, v13
v_lshl_add_u32 v13, v2, 5, v13
s_lshl_b32 s6, s6, 1
s_add_u32 s6, s6, s7
s_lshl_b32 s6, s6, 12
s_add_u32 s65, s6, {E3O}
v_lshl_add_u32 v12, v2, 9, v9
s_lshr_b32 s6, s4, 1
s_lshl_b32 s6, s6, 9
s_and_b32 s7, s4, 1
s_lshl_b32 s7, s7, 7
s_add_u32 s6, s6, s7
s_add_u32 s6, s6, {RED1}
v_lshl_add_u32 v166, v2, 4, s6
s_lshl_b32 s66, s56, 8
s_add_u32 s66, s66, {M2}
v_lshl_add_u32 v167, v164, 14, v163''')
a('v_lshlrev_b32 v14, 3, v1')
stamp(10); stamp(25,'cnt')
poll([ld(96+4*t,'v12','s65',128*t) for t in range(4)]+[ld(112,'v13','s72'),ld(116,'v13','s72',16)],0,('-1',sc('v14','s72'),SN),pre=(4,sc('v12','s65'),SN,30))
stamp(11); stamp(26,'cnt')
if 3 in GU: arrive(G[3])
GA=ld(24,'v167','s66'); a(GA[1].replace(' sc1',''))
a(f'''s_lshl_b32 s62, s58, 9
s_lshl_b32 s6, s4, 6
s_add_u32 s62, s62, s6
s_lshl_b32 s62, s62, 2
s_add_u32 s67, s62, {M2+4096}
v_and_b32 v36, 3, v1
v_lshlrev_b32 v36, 14, v36
v_bfe_u32 v13, v1, 2, 1
v_lshl_add_u32 v36, v13, 12, v36
v_lshl_add_u32 v36, v2, 4, v36''')
SB=[ld(28,'v36','s67'),ld(32,'v36','s67',128)]
if P['SBE']:
    for g,t in SB: a(t.replace(' sc1',''))
a(f'v_max3_f32 v58, v112, v114, v116\nv_max_f32 v58, v58, v118'); dppred([58],[0],'max'); a(f'v_max_f32_dpp v58, v58, v58 {R8}'); swapred([58],59,'max')
a(f'v_mul_f32 v58, {f2u(-1.4426950408889634)}, v58\ns_mov_b32 s6, 0x3fb8aa3b')
for t in range(4): a(f'v_fma_f32 v{60+t}, v{112+2*t}, s6, v58')
for t in range(4): a(f'v_exp_f32 v{60+t}, v{60+t}')
dup(60,60)
for t in range(4): a(f'v_mov_b32_dpp v{56+t}, v{60+t} quad_perm:[0,0,2,2] row_mask:0xf bank_mask:0xf')
gemv(56,96)
for t in range(4): a(f'v_and_b32 v{60+t}, s48, v{60+t}')
a('v_mul_f32 v57, v60, v113\nv_fmac_f32 v57, v61, v115\nv_fmac_f32 v57, v62, v117\nv_fmac_f32 v57, v63, v119')
dppred([57],[0]); a(f'v_add_f32_dpp v57, v57, v57 {R8}'); swapred([57],59); a('v_rcp_f32 v57, v57')
for i in range(4): a(f'v_mul_f32 v{44+i}, v{44+i}, v57')
a(f's_mov_b64 exec, s[52:53]\nds_write_b128 v8, v[44:47] offset:{RED1-RED0}'); arrive(C_O); spin(C_O,8)
for i,o in enumerate([0,256,2048,2304]): a(f'ds_read_b128 {v(96+4*i,4)}, v166 offset:{o}')
a('''s_waitcnt lgkmcnt(2)
v_pk_add_f32 v[96:97], v[96:97], v[100:101]
v_pk_add_f32 v[98:99], v[98:99], v[102:103]
s_waitcnt lgkmcnt(0)
v_pk_add_f32 v[104:105], v[104:105], v[108:109]
v_pk_add_f32 v[106:107], v[106:107], v[110:111]
v_pk_add_f32 v[96:97], v[96:97], v[104:105]
v_pk_add_f32 v[98:99], v[98:99], v[106:107]''')
dup(56,96); gemv(56,64)
a('s_waitcnt vmcnt(%d)'%(2 if P['SBE'] else 0)); chk([24],0); a('s_cbranch_vccz GADONE'); poll([GA],0,plain=False); a.label('GADONE')
swapred([24,25,26,27],96); rnd([24,25,26,27],96)
reduce(RED0,C_P4,8,'B','P4DONE')
a('''v_pk_mul_f32 v[44:45], v[44:45], v[24:25]
v_pk_mul_f32 v[46:47], v[46:47], v[26:27]
v_lshrrev_b32 v12, 1, v163
v_cvt_pk_bf16_f32 v44, v44, v45
v_cvt_pk_bf16_f32 v45, v46, v47
v_mov_b32_dpp v46, v44 quad_perm:[1,0,3,2] row_mask:0xf bank_mask:0xf
v_mov_b32_dpp v47, v45 quad_perm:[1,0,3,2] row_mask:0xf bank_mask:0xf''')
if P['SBE']: a('s_waitcnt vmcnt(0)')
pub24(44,'v12','s64','0x5555')
stamp(12)
if P['SBE']: a('s_branch P4DONE2')
a.label('P4DONE')
if P['SBE']: a('s_waitcnt vmcnt(0)'); a.label('P4DONE2')
a(f'''s_cmp_ge_u32 s3, 224
s_cbranch_scc1 P5DONE
v_bfe_u32 v13, v1, 2, 1''')
if P['SBE']: chk([28,32],0); a('s_cbranch_vccz SBDONE')
poll(SB,0,plain=not P['SBE']); a.label('SBDONE')
unpk(152,156,2); dppred(list(range(28,36)),[0,1]); rnd(list(range(28,36)),56)
a('v_cmp_eq_u32 vcc, 1, v13')
for i in range(8): a(f'v_mov_b32_dpp v{96+i}, v{28+i} row_half_mirror row_mask:0xf bank_mask:0xf')
for i in range(8): a(f'v_cndmask_b32 v{36+i}, v{28+i}, v{96+i}, vcc\nv_cndmask_b32 v{28+i}, v{96+i}, v{28+i}, vcc')
for i in range(8): a(f'v_add_f32 v{28+i}, 1.0, v{28+i}')
rnd(list(range(28,36)),56)
e5addr()
a(f'''s_mov_b32 s64, s6
s_lshl_b32 s6, s4, 9
s_add_u32 s6, s6, {X2}
v_lshl_add_u32 v166, v163, 1, s6
v_lshl_add_u32 v166, v164, 4, v166
s_add_u32 s6, s62, {X2}
v_lshl_add_u32 v13, v2, 4, s6
v_lshlrev_b32 v12, 4, v1
v_add_u32 v167, {X2}, v12
s_lshl_b32 s51, s4, 1
s_add_u32 s51, s51, 34
s_lshl_b32 s6, s4, 12
v_add_u32 v16, s6, v11
s_add_u32 s6, s6, {E4}
ds_read_b32 v14, v15
s_waitcnt lgkmcnt(0)
v_cmp_gt_i32 vcc, s51, v14
s_mov_b32 s65, 0
s_cbranch_vccnz NOEARLY
s_mov_b32 s65, 1''')
for t in range(8): a(f'ds_read_b128 {v(64+4*t,4)}, v16 offset:{1024*t}')
a.label('NOEARLY')
a('v_lshlrev_b32 v14, 7, v1')
stamp(13); stamp(27,'cnt')
poll([ld(96+4*n,'v12','s6',1024*n) for n in range(4)],0,('LO',sc('v14','s6'),SN),pre=(8,sc('v14','s6'),SN,30))
stamp(14); stamp(28,'cnt')
for n in range(4): a(f'v_mfma_f32_16x16x32_bf16 v[44:47], v[158:161], {v(96+4*n,4)}, {"v[152:155]" if n==0 else "v[44:47]"}')
a('s_mov_b32 exec_hi, 0\nds_write_b128 v166, v[44:47]')
arrive(C_X); spin(C_X,8)
a('ds_read_b32 v60, v15 offset:%d'%(X2-FL))
for i in range(4): a(f'ds_read_b128 {v(96+4*i,4)}, v167 offset:{1024*i}')
a('ds_read_b128 v[112:115], v13\nds_read_b128 v[116:119], v13 offset:128\ns_waitcnt lgkmcnt(5)')
for i in range(0,16,2):
    if i in (4,8,12): a(f's_waitcnt lgkmcnt({5-i//4})')
    a(f'v_pk_add_f32 {v(96+i,2)}, {v(96+i,2)}, v[60:61] op_sel_hi:[1,0] neg_lo:[0,1] neg_hi:[0,1]')
a('v_pk_add_f32 v[56:57], v[96:97], v[98:99]\nv_pk_mul_f32 v[58:59], v[96:97], v[96:97]\nv_pk_fma_f32 v[58:59], v[98:99], v[98:99], v[58:59]')
for i in range(4,16,2): a(f'v_pk_add_f32 v[56:57], v[56:57], {v(96+i,2)}\nv_pk_fma_f32 v[58:59], {v(96+i,2)}, {v(96+i,2)}, v[58:59]')
a('v_add_f32 v56, v56, v57\nv_add_f32 v57, v58, v59')
dppred([56,57],[0,1,2,3]); swapred([56,57],58)
a(f'''v_mul_f32 v56, {f2u(1/1024)}, v56
v_mul_f32 v57, {f2u(1/1024)}, v57
v_fma_f32 v57, -v56, v56, v57
v_add_f32 v60, v60, v56
v_add_f32 v57, {f2u(1e-5)}, v57
v_rsq_f32 v58, v57
s_waitcnt lgkmcnt(0)''')
for i in range(0,8,2): a(f'v_pk_add_f32 {v(112+i,2)}, {v(112+i,2)}, v[60:61] op_sel_hi:[1,0] neg_lo:[0,1] neg_hi:[0,1]')
for i in range(0,8,2): a(f'v_pk_mul_f32 {v(28+i,2)}, {v(28+i,2)}, v[58:59] op_sel_hi:[1,0]')
for i in range(0,8,2): a(f'v_pk_fma_f32 {v(112+i,2)}, {v(112+i,2)}, {v(28+i,2)}, {v(36+i,2)}')
dup(56,112); dup(60,116)
a('s_cmp_eq_u32 s65, 1\ns_cbranch_scc1 EARLY'); landed('s51')
for t in range(8): a(f'ds_read_b128 {v(64+4*t,4)}, v16 offset:{1024*t}')
a('s_waitcnt lgkmcnt(0)')
a.label('EARLY')
stamp(15)
gemv(56,64); gemv(60,80,False)
reduce(RED0,C_P5,8,'B','P5DONE')
pub24(44,'v163','s64','0xffff')
stamp(16)
a.label('P5DONE')
a(f'v_subrev_u32 v8, {RED0-RV}, v8\nv_subrev_u32 v10, {RED0-RV}, v10')
a('v_mov_b32 v44, 0\nv_mov_b32 v45, 0\nv_mov_b32 v46, 0\nv_mov_b32 v47, 0\ns_cmp_eq_u32 s4, 7\ns_cbranch_scc1 P6RED')
landed(48); a(f'v_add_u32 v12, {R2}, v11'); rdw(64,0)
a(f'''s_mul_i32 s6, s57, 896
s_lshl_b32 s7, s4, 7
s_add_u32 s6, s6, s7
s_add_u32 s6, s6, {E5}
v_and_b32 v13, 3, v2
v_mul_u32_u24 v12, 14336, v13
v_add_u32 v12, v12, v9
v_lshlrev_b32 v13, 2, v2
s_mov_b32 exec_hi, 0''')
stamp(17)
poll([ld(96,'v12','s6')],0,plain=False,pre=(16,sc('v12','s6'),SN,30,'s_mov_b32 exec_lo, -1'))
a('s_mov_b64 exec, -1')
stamp(18)
for i in range(4): a(f'v_add_f32_dpp v{104+i}, v{96+i}, v{96+i} {R8}')
for i in range(4): a(f'v_mov_b32 v{108+i}, v{104+i}')
for i in range(4): a(f'v_permlane16_swap_b32 v{104+i}, v{108+i}')
c1=2*0.7978845608028654*1.4426950408889634
a(f's_mov_b32 s6, {f2u(-c1*0.044715)}\nv_mov_b32 v100, {f2u(-c1)}')
for i in range(4): a(f'v_mul_f32 v{96+i}, v{104+i}, v{104+i}')
for i in range(4): a(f'v_fma_f32 v{96+i}, v{96+i}, s6, v100')
for i in range(4): a(f'v_mul_f32 v{96+i}, v{96+i}, v{104+i}')
sigm(104,96,4)
for i in range(4): a(f'v_mul_f32 v{104+i}, v{104+i}, v{108+i}')
dup(60,104)
for i in range(4): a(f'ds_bpermute_b32 v{56+i}, v13, v{60+i}')
a('s_waitcnt lgkmcnt(0)'); gemv(56,64)
a.label('P6RED')
reduce(RED0,C_P6,8,'B','P6DONE')
a(f's_lshl_b32 s6, s57, 12\ns_lshl_b32 s7, s56, 8\ns_add_u32 s6, s6, s7\ns_add_u32 s6, s6, {E6}')
pub24(44,'v163','s6','0xffff')
stamp(19)
a.label('P6DONE')
a(f'''s_cmp_lg_u32 s4, 7
s_cbranch_scc1 TIMEOUT
s_cmp_ge_u32 s3, 64
s_cbranch_scc1 TIMEOUT
s_lshl_b32 s62, s3, 6
s_add_u32 s6, s62, {M2+12288}
v_and_b32 v12, 3, v1
v_lshlrev_b32 v12, 14, v12
v_lshl_add_u32 v12, v164, 4, v12
s_add_u32 s7, s62, {X2}
v_lshl_add_u32 v13, v164, 4, s7
ds_read_b128 v[28:31], v13''')
poll([ld(24,'v12','s6')],0)
dppred([24,25,26,27],[0,1]); rnd([24,25,26,27],56)
a(f's_add_u32 s6, s62, {E6}\nv_lshlrev_b32 v12, 8, v163\nv_lshl_add_u32 v12, v164, 4, v12')
srd(40,30,2048)
a('s_waitcnt lgkmcnt(0)'); poll([ld(96,'v12','s6')],0,plain=False,pre=(32,sc('v12','s6'),SN,30))
dppred([96,97,98,99],[0,1,2,3])
for i in range(4): a(f'v_fma_f32 v{96+i}, v{96+i}, v{24+i}, v{28+i}')
a('''v_cvt_pk_bf16_f32 v96, v96, v97
v_cvt_pk_bf16_f32 v97, v98, v99
v_lshlrev_b32 v12, 3, v164
s_lshl_b32 s6, s3, 5
s_mov_b32 exec_lo, 0x10001
s_mov_b32 exec_hi, 0x10001
buffer_store_dwordx2 v[96:97], v12, s[40:43], s6 offen''')
stamp(20); stamp(31,'s_memtime')
a('''s_cmp_lg_u32 s3, 0
s_cbranch_scc1 TIMEOUT
s_mov_b64 exec, 1
v_mov_b32 v12, 0
v_mov_b32 v13, s5
buffer_store_dword v13, v12, s[36:39], 0 offen sc1
TIMEOUT:''')
flush()
a('EXIT:\ns_endpgm')
a.label('CLEAR')
srd(36,34,WSEND)
a('v_and_b32 v163, 15, v1\nv_lshlrev_b32 v163, 4, v163')
a(f'''v_mov_b32 v44, -1
v_mov_b32 v45, -1
v_mov_b32 v46, -1
v_mov_b32 v47, -1
s_cmp_eq_u32 s4, 4
s_cbranch_scc0 CLR5
s_lshl_b32 s6, s55, 17
s_lshl_b32 s7, s54, 7
s_add_u32 s6, s6, s7
s_add_u32 s6, s6, {E3O}
s_add_u32 s7, s6, 65536
v_lshl_add_u32 v12, v2, 13, v9
buffer_store_dwordx4 v[44:47], v12, s[36:39], s6 offen sc1
buffer_store_dwordx4 v[44:47], v12, s[36:39], s7 offen sc1
s_branch CLRD
CLR5:
s_cmp_eq_u32 s4, 5
s_cbranch_scc0 CLR6
s_lshl_b32 s6, s55, 12
s_lshl_b32 s7, s54, 3
s_add_u32 s6, s6, s7
s_add_u32 s6, s6, {E3M}
v_lshlrev_b32 v12, 9, v1''')
pub24(44,'v12','s6','0xff',2)
a(f's_lshl_b32 s6, s55, 14\ns_lshl_b32 s7, s54, 8\ns_add_u32 s6, s6, s7\ns_add_u32 s6, s6, {M2}')
pub24(44,'v163','s6','0xffff')
a('s_branch CLRD\nCLR6:\ns_cmp_eq_u32 s4, 6\ns_cbranch_scc0 CLR7')
e4addr(); pub24(44,'v163','s6','0xff')
a(f's_lshl_b32 s6, s57, 12\ns_lshl_b32 s7, s56, 8\ns_add_u32 s6, s6, s7\ns_add_u32 s6, s6, {E6}')
pub24(44,'v163','s6','0xffff')
a('s_branch CLRD\nCLR7:\ns_cmp_ge_u32 s3, 224\ns_cbranch_scc1 CLRD')
e5addr(); pub24(44,'v163','s6','0xffff')
a('CLRD:\ns_branch NOP1LD\nCLRW:\ns_waitcnt vmcnt(0)\ns_branch P1MID')
a.label('LOADER')
def stream(ptr,nbytes,vo,S,BS,nblk,lds,N,flag=True):
    srd(40,ptr,nbytes)
    a(f's_mov_b32 m0, {lds}\ns_add_u32 s51, s50, {nblk}')
    L=a.newl(); a.label(L)
    for t in range(4):
        a(f'buffer_load_dwordx4 {vo[t]}, s[40:43], s6 offen{P["NT"]} lds\ns_add_u32 m0, m0, 0x400\ns_add_u32 s6, s6, {S if t<3 else BS-3*S}')
    a('s_add_u32 s50, s50, 1')
    if flag: a(f's_sub_u32 s7, s50, {N//4}\nv_mov_b32 v14, s7\ns_waitcnt vmcnt({N})\nds_max_i32 v15, v14')
    a(f's_cmp_lt_u32 s50, s51\ns_cbranch_scc1 {L}')
def drain(N):
    for k in range(N-4,-1,-4): a(f's_sub_u32 s7, s50, {k//4}\nv_mov_b32 v14, s7\ns_waitcnt vmcnt({k})\nds_max_i32 v15, v14')
def waitfree(addr,n,N):
    D=a.newl()
    a(f'ds_read_b32 v14, v15 offset:{addr-FL}\ns_waitcnt lgkmcnt(0)\nv_cmp_gt_i32 vcc, {n}, v14\ns_cbranch_vccz {D}')
    drain(N); spin(addr,n); a.label(D)
a('''v_lshl_add_u32 v3, v2, 15, v9
s_lshl_b32 s6, s55, 21
s_lshl_b32 s7, s54, 7
s_add_u32 s6, s6, s7
s_mov_b32 s50, 0''')
stream(14,8388608,['v3']*4,8192,32*8192,8,R0,32,False)
a('''v_lshrrev_b32 v4, 4, v1
v_and_b32 v5, 15, v1
v_xor_b32 v5, v5, v4
v_lshlrev_b32 v5, 4, v5
v_lshl_add_u32 v4, v4, 8, v5
v_xor_b32 v5, 64, v4
v_xor_b32 v6, 128, v4
v_xor_b32 v7, 192, v4
s_lshl_b32 s61, s55, 24
s_lshl_b32 s7, s54, 14
s_add_u32 s61, s61, s7
s_add_u32 s61, s61, %d
s_mov_b32 s6, s61
s_barrier'''%(61440*256))
if P['DIAG']: srd(36,34,DG+0x100000)
KV=['v4','v5','v6','v7']
def gate(k,N):
    if P[k]: waitfree(G[P[k]],P['TH'],N)
def sM(prev):
    a('v_mul_u32_u24 v3, 49152, v2\nv_add_u32 v3, v3, v9\ns_mul_i32 s6, s55, 3145728\ns_lshl_b32 s7, s54, 7\ns_add_u32 s6, s6, s7\ns_add_u32 s6, s6, 4096')
    gate('GM',prev); stream(28,12582912,['v3']*4,12288,32*12288,8,R2,P['NM']); stamp(2)
def sKV(prev):
    gate('GK',prev); a('s_mov_b32 s6, s61')
    stream(10,67108864,KV,1024,4096,4,RK,P['N0']); stamp(0)
    gate('GV',P['N0']); a('s_mov_b32 s6, s61'); stream(12,67108864,KV,1024,4096,4,RV,P['NV']); stamp(1)
if P['ORD']: sM(32); sKV(P['NM']); P['NM']=P['NV']
else: sKV(32); sM(P['NV'])
a('v_lshl_add_u32 v8, v2, 13, v9\ns_lshl_b32 s6, s57, 19\ns_lshl_b32 s7, s56, 7\ns_add_u32 s6, s6, s7')
gate('G4',P['NM']); stream(16,8388608,['v8']*4,2048,32*2048,8,R3,P['N2']); stamp(3)
a('s_cmp_ge_u32 s3, 224\ns_cbranch_scc1 NOP5')
waitfree(F_FR0,12,P['N2']); gate('G5',P['N2'])
a('''v_mul_u32_u24 v3, 28672, v2
v_add_u32 v3, v3, v9
s_mul_i32 s6, s58, 3670016
s_lshl_b32 s7, s60, 7
s_add_u32 s6, s6, s7
s_cmp_eq_u32 s59, 1
s_cselect_b32 s62, s22, s20
s_cselect_b32 s63, s23, s21''')
stream(62,7340032,['v3']*4,7168,32*7168,16,R0,P['N3']); stamp(4)
a('s_branch YESP5'); a.label('NOP5'); drain(P['N2']); a('s_mov_b32 s50, 48'); a.label('YESP5')
waitfree(F_FR2,8,P['N3']); gate('G6',P['N3'])
a('s_mul_i32 s6, s57, 458752\ns_lshl_b32 s7, s56, 7\ns_add_u32 s6, s6, s7')
stream(24,7340032,['v8']*4,2048,32*2048,7,R2,P['N4'])
drain(P['N4']); stamp(5)
flush()
a('s_waitcnt lgkmcnt(0)\ns_endpgm')
ref=open('cdna_kernels/'+NAME+'.s.ref').read()
head=ref[:ref.index('; Override launch')]
txt=head+('; DIAG\n' if P['DIAG'] else '')+f'''; @launch grid=(256,1,1) block=(576,1,1) lds={LDSZ}
.amdgcn_target "amdgcn-amd-amdhsa--gfx950"
.text
.globl {NAME}_kernel
.p2align 8
.type {NAME}_kernel,@function
{NAME}_kernel:
'''+a.text()+f'''.section .rodata,"a"
.p2align 6
.amdhsa_kernel {NAME}_kernel
  .amdhsa_next_free_vgpr %d
  .amdhsa_next_free_sgpr 96
  .amdhsa_accum_offset %d
  .amdhsa_group_segment_fixed_size 0
  .amdhsa_kernarg_size 112
  .amdhsa_user_sgpr_count 2
  .amdhsa_user_sgpr_kernarg_segment_ptr 1
  .amdhsa_system_sgpr_workgroup_id_x 1
.end_amdhsa_kernel
'''%((168,168))
open(sys.argv[1],'w').write(txt)
```

```python
import sys,struct
from asmlib import Asm
P=dict(DIAG=0,NT=' nt',N0=32,N1=20,N2=20,N3=20,SLEEP=1,PRESPIN=1,WARM=0,PRE3=0,PRE4=0,E3PRE=0,GK=0,GV=0,GM=0,G4=0,G5=0,G6=0,TH=8,N4=12,NV=0,NM=0,ORD=0,SBE=1,ME=0,MK=1,PS=0,PL=0,PW=0,NS=0,NP=0)
for a in sys.argv[2:]:
    k,v=a.split('='); P[k]=v if k=='NT' else int(v)
if P['NT']=='0': P['NT']=''
NAME='adaLN_cond__sliding_block_cached__geglu_ffn__decode'
def f2u(x): return '0x%08x'%struct.unpack('<I',struct.pack('<f',x))[0]
E1,E2,E3O,E3M,M2,E4,E5,E6,WSEND=0x1000,0x21000,0x41000,0x141000,0x149000,0x159000,0x169000,0x177000,0x187000
DG=0x190000
R0,RK,RV,R2,R3,W=0,32768,65536,81920,114688,147456
FL=W; RED0=W+128; RED1=RED0+4096; QL=RED1+4096; SC=QL+2176; X2=QL; LDSZ=SC+2176
F_LAND,F_FR0,F_FR2,C_P1,C_P2,C_Q,C_S,C_M2,C_P4,C_X,C_P5,C_P6,C_O=[FL+4*i for i in range(13)]
G=[0,FL+52,FL+56,FL+60]
GU={P[k] for k in ('GK','GV','GM','G4','G5','G6')}
P['NV']=P['NV'] or P['N1']; P['NM']=P['NM'] or P['N1']
a=Asm()
T=['s5','s44','s45','s46']
def v(i,n=1): return f'v{i}' if n==1 else f'v[{i}:{i+n-1}]'
def srd(d,p,n): a(f's_mov_b32 s{d}, s{p}\ns_mov_b32 s{d+1}, s{p+1}\ns_mov_b32 s{d+2}, {n}\ns_mov_b32 s{d+3}, 0x20000')
def stamp(i,ins='s_memrealtime'):
    if P['DIAG']:
        if ins=='cnt': a(f'v_writelane_b32 v126, s49, {i}')
        else: a(f'{ins} s[76:77]\ns_waitcnt lgkmcnt(0)\nv_writelane_b32 v126, s76, {i}')
def flush():
    if P['DIAG']==2:
        L=a.newl(); srd(36,32,256)
        a(f's_cmp_lg_u32 s3, 0\ns_cbranch_scc1 {L}\ns_cmp_lg_u32 s4, 7\ns_cbranch_scc1 {L}\nv_readlane_b32 s78, v126, 29\ns_mov_b64 exec, -1\ns_nop 4\nv_subrev_u32 v126, s78, v126\nv_lshlrev_b32 v127, 1, v1\ns_mov_b32 exec_hi, 0\nbuffer_store_short v126, v127, s[36:39], 0 offen'); a.label(L)
    elif P['DIAG']:
        srd(36,34,DG+0x100000)
        a(f's_mul_i32 s78, s3, 2304\ns_lshl_b32 s79, s4, 8\ns_add_u32 s78, s78, s79\ns_add_u32 s78, s78, {DG}\ns_mov_b64 exec, -1\nv_lshlrev_b32 v127, 2, v1\nbuffer_store_dword v126, v127, s[36:39], s78 offen')
def budget(): a('s_sub_u32 s49, s49, 1\ns_cbranch_scc1 TIMEOUT')
def spin(addr,thr):
    L=a.newl(); a.label(L); budget()
    a(f'ds_read_b32 v14, v15 offset:{addr-FL}\ns_waitcnt lgkmcnt(0)\nv_cmp_gt_i32 vcc, {thr}, v14\ns_cbranch_vccnz {L}')
def arrive(addr):
    a(f's_waitcnt lgkmcnt(0)\ns_mov_b64 exec, 1\nds_add_u32 v15, v162 offset:{addr-FL}\ns_mov_b64 exec, -1')
def landed(c):
    if isinstance(c,int): a(f's_add_u32 s50, s4, {c+1}'); c='s50'
    spin(F_LAND,c)
def chk(regs,fmt,acc='v165'):
    if fmt==0:
        R=[g+i for g in regs for i in range(4)]
        a(f'v_max3_u32 {acc}, v{R[0]}, v{R[1]}, v{R[2]}')
        for i in range(3,len(R)-1,2): a(f'v_max3_u32 {acc}, {acc}, v{R[i]}, v{R[i+1]}')
        a(f'v_max_u32 {acc}, {acc}, v{R[-1]}\nv_cmp_eq_u32 vcc, -1, {acc}'); return
    first=True
    for g in regs:
        if fmt==24: lst=[(g+i,T[i]) for i in range(4)]
        else: lst=[(g+1,T[0]),(g+3,T[0])]
        for r,t in lst:
            if first: a(f'v_xor_b32 {acc}, {t}, v{r}'); first=False
            else: a(f'v_bitop3_b32 {acc}, {acc}, v{r}, {t} bitop3:0xf6')
    if fmt==24: a(f'v_and_b32 {acc}, 0xff, {acc}')
    a(f'v_cmp_ne_u32 vcc, 0, {acc}')
MK='\ns_mov_b64 exec, vcc' if P['MK'] else ''
def poll(loads,fmt,scout=None,plain=True,pre=None):
    D=a.newl()
    def body(ls,pl):
        for g,t in ls: a(t.replace(' sc1','') if pl else t)
        a('s_waitcnt vmcnt(0)'); chk([g for g,t in ls],fmt)
    def again(L):
        budget()
        if P['SLEEP']: a(f's_sleep {P["SLEEP"]}')
        a(f's_branch {L}')
    if pre and P['PS']&pre[0]:
        L=a.newl(); E=a.newl(); Wt=a.newl(); CW=FL+64+4*(pre[0].bit_length()-1); pw=P['PW']&pre[0]
        if pw: a(f's_cmp_lg_u32 s4, 0\ns_cbranch_scc1 {Wt}')
        if P['PL']==2: a(f's_and_b32 s50, s3, {pre[3]|1}\ns_lshl_b64 exec, 1, s50')
        else: a(f's_mov_b64 exec, {hex(1<<(pre[3] if P["PL"] else 0))}')
        a.label(L)
        a(pre[1]+'\ns_waitcnt vmcnt(0)\n'+pre[2]+f'\ns_cbranch_vccz {E}'); again(L); a.label(E)
        if pw: arrive(CW); a.label(Wt); spin(CW,1)
        a(pre[4] if len(pre)>4 else 's_mov_b64 exec, -1')
    if pre and P['NP']&pre[0]: plain=False
    if scout and not P['NS']&pre[0]:
        ex,txt,cmp_=scout
        L=a.newl(); E=a.newl(); a('s_mov_b32 exec_hi, 0' if ex=='LO' else f's_mov_b64 exec, {ex}'); a.label(L)
        a(txt+'\ns_waitcnt vmcnt(0)\n'+cmp_+f'\ns_cbranch_vccz {E}'+MK); again(L); a.label(E); a('s_mov_b64 exec, -1')
    if plain: body(loads,True); a(f's_cbranch_vccz {D}'+MK)
    L=a.newl(); a.label(L); body(loads,False); a(f's_cbranch_vccz {D}'+MK); again(L); a.label(D)
    if P['MK']: a('s_mov_b64 exec, -1')
def sc(va,so): return f'buffer_load_dwordx2 v[124:125], {va}, s[36:39], {so} offen sc1'
TG='v_cmp_ne_u32 vcc, s5, v125'
SN='v_max_u32 v165, v124, v125\nv_cmp_eq_u32 vcc, -1, v165'
def ld(g,va,so,off=0): return (g,f'buffer_load_dwordx4 {v(g,4)}, {va}, s[36:39], {so} offen offset:{off} sc1')
def mask(g,n=4):
    for i in range(n): a(f'v_and_b32 v{g+i}, v7, v{g+i}')
DP=['quad_perm:[1,0,3,2]','quad_perm:[2,3,0,1]','row_half_mirror','row_mirror']
def dppred(regs,steps,op='add'):
    for s_ in steps:
        for r in regs: a(f'v_{op}_f32_dpp v{r}, v{r}, v{r} {DP[s_]} row_mask:0xf bank_mask:0xf')
def swapred(regs,tmp,op='add',which=(16,32)):
    for w_ in which:
        for i,r in enumerate(regs): a(f'v_mov_b32 v{tmp+i}, v{r}')
        for i,r in enumerate(regs): a(f'v_permlane{w_}_swap_b32 v{r}, v{tmp+i}')
        for i,r in enumerate(regs): a(f'v_{op}_f32 v{r}, v{r}, v{tmp+i}')
def rnd(regs,tmp):
    for i in range(0,len(regs),2): a(f'v_cvt_pk_bf16_f32 v{tmp+i//2}, v{regs[i]}, v{regs[i+1]}')
    for i in range(0,len(regs),2): a(f'v_lshlrev_b32 v{regs[i]}, 16, v{tmp+i//2}\nv_and_b32 v{regs[i+1]}, s48, v{tmp+i//2}')
def rnd1(r): a(f'v_cvt_pk_bf16_f32 v{r}, v{r}, v{r}\nv_and_b32 v{r}, s48, v{r}')
def dup(dst,src):
    for i in range(4): a(f'v_cvt_pk_bf16_f32 v{dst+i}, v{src+i}, v{src+i}')
def unpk(dst,src,n):
    for i in reversed(range(n)): a(f'v_and_b32 v{dst+2*i+1}, s48, v{src+i}\nv_lshlrev_b32 v{dst+2*i}, 16, v{src+i}')
def gemv(hh,wt,first=True):
    for t in range(4):
        A=48+4*(t&1)
        for q in range(4): a(f'v_and_b32 v{A+q}, v{hh+t}, v{3+q}')
        a(f'v_mfma_f32_16x16x32_bf16 v[44:47], {v(A,4)}, {v(wt+4*t,4)}, {"0" if first and t==0 else "v[44:47]"}')
def rdw(dst,base):
    for t in range(4): a(f'ds_read_b128 {v(dst+4*t,4)}, v12 offset:{1024*t}')
def reduce(buf,cnt,n,form,skip,mid=None,ns=8):
    a(f's_mov_b64 exec, s[52:53]\nds_write_b128 v8, v[44:47] offset:{buf-RED0}')
    if mid: a.label(mid)
    a(f'''s_waitcnt lgkmcnt(0)
    s_mov_b64 exec, 1
    ds_add_rtn_u32 v14, v15, v162 offset:{cnt-FL}
    s_mov_b64 exec, -1
    s_waitcnt lgkmcnt(0)
    v_readfirstlane_b32 s50, v14
    s_cmp_lg_u32 s50, {n-1}
    s_cbranch_scc1 {skip}''')
    if form=='A':
        a(f'v_lshlrev_b32 v12, 2, v1\nv_add_u32 v12, {buf}, v12')
        for i in range(ns): a(f'ds_read2st64_b32 {v(96+2*i,2)}, v12 offset0:{2*i} offset1:{2*i+1}')
        a('s_waitcnt lgkmcnt(0)')
        m=2*ns
        while m>2:
            m//=2
            for i in range(0,m,2): a(f'v_pk_add_f32 {v(96+i,2)}, {v(96+i,2)}, {v(96+m+i,2)}')
        a('v_add_f32 v44, v96, v97\nv_mov_b32 v45, s5\nv_mov_b32 v47, s5\nv_lshlrev_b32 v12, 3, v1\nv_mov_b32_dpp v46, v44 quad_perm:[1,0,3,2] row_mask:0xf bank_mask:0xf')
    else:
        for k in range(4): a(f'ds_read_b128 {v(96+4*k,4)}, v10 offset:{buf-RED0+256*k}')
        a('s_waitcnt lgkmcnt(0)')
        a('v_pk_add_f32 v[96:97], v[96:97], v[100:101]\nv_pk_add_f32 v[98:99], v[98:99], v[102:103]')
        a('v_pk_add_f32 v[104:105], v[104:105], v[108:109]\nv_pk_add_f32 v[106:107], v[106:107], v[110:111]')
        a('v_pk_add_f32 v[44:45], v[96:97], v[104:105]\nv_pk_add_f32 v[46:47], v[98:99], v[106:107]')
        swapred([44,45,46,47],96)
def pub24(g,va,so,ex,n=4):
    a(f's_mov_b64 exec, {ex}\nbuffer_store_dwordx{n} {v(g,n)}, {va}, s[36:39], {so} offen sc1\ns_mov_b64 exec, -1')
def stats(X):
    a(f'v_pk_add_f32 v[56:57], {v(X,2)}, {v(X+2,2)}\nv_pk_add_f32 v[58:59], {v(X+4,2)}, {v(X+6,2)}')
    a(f'v_pk_add_f32 v[56:57], v[56:57], {v(X+8,2)}\nv_pk_add_f32 v[58:59], v[58:59], {v(X+10,2)}')
    a(f'v_pk_add_f32 v[56:57], v[56:57], {v(X+12,2)}\nv_pk_add_f32 v[58:59], v[58:59], {v(X+14,2)}')
    a('v_pk_add_f32 v[56:57], v[56:57], v[58:59]\nv_add_f32 v60, v56, v57')
    dppred([60],[0,1,2,3]); swapred([60],62)
    a(f'v_mul_f32 v60, {f2u(-1/1024)}, v60')
    for i in range(0,16,2): a(f'v_pk_add_f32 {v(X+i,2)}, {v(X+i,2)}, v[60:61] op_sel_hi:[1,0]')
    a(f'v_pk_mul_f32 v[56:57], {v(X,2)}, {v(X,2)}\nv_pk_mul_f32 v[58:59], {v(X+2,2)}, {v(X+2,2)}')
    for i in range(4,16,2): a(f'v_pk_fma_f32 {v(56+(i&2),2)}, {v(X+i,2)}, {v(X+i,2)}, {v(56+(i&2),2)}')
    a('v_pk_add_f32 v[56:57], v[56:57], v[58:59]\nv_add_f32 v61, v56, v57')
    dppred([61],[0,1,2,3]); swapred([61],62)
    a(f'v_mul_f32 v61, {f2u(1/1024)}, v61\nv_sub_f32 v60, 0, v60')
    rnd([60,61],62); a(f'v_add_f32 v61, {f2u(1e-5)}, v61'); rnd1(61); a('v_sqrt_f32 v61, v61'); rnd1(61); a('v_rcp_f32 v61, v61')
def norm(X,n,tmp):
    R=list(range(X,X+n))
    for r in R: a(f'v_sub_f32 v{r}, v{r}, v60')
    rnd(R,tmp)
    for r in R: a(f'v_mul_f32 v{r}, v{r}, v61')
    rnd(R,tmp)
def sigm(X,Y,n):
    for i in range(n): a(f'v_exp_f32 v{Y+i}, v{Y+i}')
    for i in range(n): a(f'v_add_f32 v{Y+i}, 1.0, v{Y+i}')
    for i in range(n): a(f'v_rcp_f32 v{Y+i}, v{Y+i}')
    for i in range(n): a(f'v_mul_f32 v{X+i}, v{X+i}, v{Y+i}')
def silu(dst,src):
    unpk(56,src,2)
    for i in range(4): a(f'v_mul_f32 v{60+i}, {f2u(-1.4426950408889634)}, v{56+i}')
    sigm(56,60,4); dup(dst,56)

a('''s_cmp_ge_u32 s2, 256
s_cbranch_scc1 EXIT
s_load_dwordx16 s[8:23], s[0:1], 0
s_load_dwordx8 s[24:31], s[0:1], 64
s_load_dwordx4 s[32:35], s[0:1], 96
v_lshrrev_b32 v2, 6, v0
v_and_b32 v1, 63, v0
s_and_b32 s3, s2, 7
s_lshl_b32 s3, s3, 5
s_lshr_b32 s6, s2, 3
s_add_u32 s3, s3, s6
v_readfirstlane_b32 s4, v2
v_lshrrev_b32 v2, 3, v1
v_and_b32 v9, 7, v1
v_lshlrev_b32 v9, 4, v9
s_mov_b32 s49, 0x200000
s_and_b32 s54, s3, 63
s_lshr_b32 s55, s3, 6
s_and_b32 s56, s3, 15
s_lshr_b32 s57, s3, 4
s_cmp_ge_u32 s3, 112
s_cselect_b32 s58, 1, 0
s_mul_i32 s6, s58, 112
s_sub_u32 s60, s3, s6
s_cmp_ge_u32 s60, 56
s_cselect_b32 s59, 1, 0
s_mul_i32 s6, s59, 56
s_sub_u32 s60, s60, s6
v_mov_b32 v15, %d
v_mov_b32 v162, 1
v_mov_b32 v126, 0
v_mov_b32 v14, 0
v_lshl_add_u32 v12, v1, 2, v15
s_mov_b32 exec_hi, 0
ds_write_b32 v12, v14
s_mov_b64 exec, -1
s_waitcnt lgkmcnt(0)
s_cmp_eq_u32 s4, 8
s_cbranch_scc1 LOADER'''%FL)
stamp(29)
a('''s_lshl_b32 s61, s4, 5
s_lshr_b32 s6, s3, 5
s_lshl_b32 s6, s6, 7
s_add_u32 s62, s6, s61
s_lshl_b32 s6, s55, 8
s_add_u32 s63, s6, s61
v_mul_u32_u24 v12, 49152, v2
v_add_u32 v12, v12, v9
s_mul_i32 s64, s62, 12288
s_and_b32 s6, s3, 31
s_lshl_b32 s6, s6, 7
s_add_u32 s64, s64, s6
v_lshlrev_b32 v13, 3, v2
v_lshlrev_b32 v14, 5, v1
s_lshl_b32 s65, s62, 1
s_lshl_b32 s66, s63, 1
s_load_dword s5, s[34:35], 0''')
srd(40,28,12582912)
a('s_cmp_ge_u32 s4, 4\ns_cbranch_scc1 CLEAR')
for t in range(4): a(f'buffer_load_dwordx4 {v(64+4*t,4)}, v12, s[40:43], s64 offen{P["NT"]}\ns_add_u32 s64, s64, 12288')
a.label('NOP1LD')
srd(40,26,2048)
a('buffer_load_dwordx2 v[20:21], v13, s[40:43], s65 offen\nbuffer_load_dwordx2 v[22:23], v13, s[40:43], s66 offen')
srd(40,8,2048)
a('''buffer_load_dwordx2 v[24:25], v13, s[40:43], s66 offen
buffer_load_dwordx4 v[136:139], v14, s[40:43], 0 offen
buffer_load_dwordx4 v[140:143], v14, s[40:43], 0 offen offset:16
v_and_b32 v12, 15, v1
v_lshlrev_b32 v12, 4, v12
v_bfe_u32 v14, v1, 4, 1
v_lshl_add_u32 v12, v14, 3, v12
s_lshl_b32 s6, s4, 8
buffer_load_dwordx2 v[156:157], v12, s[40:43], s6 offen''')
srd(36,34,WSEND if not P['DIAG'] else DG+0x100000)
a(f'''s_barrier
s_mov_b32 s48, 0xffff0000
s_mov_b32 s82, 0x55555555
s_mov_b32 s83, s82
v_and_b32 v12, 1, v1
v_cmp_eq_u32 vcc, 1, v12
v_mov_b32 v13, 0xffff
v_mov_b32 v14, s48
v_cndmask_b32 v13, v13, v14, vcc
v_bfe_u32 v12, v1, 1, 2''')
for q in range(4): a(f'v_cmp_eq_u32 vcc, {q}, v12\nv_cndmask_b32 v{3+q}, 0, v13, vcc')
a(f'''v_lshrrev_b32 v12, 5, v1
v_lshlrev_b32 v8, 8, v12
v_lshl_add_u32 v8, v9, 1, v8
v_and_b32 v12, 16, v1
v_add_u32 v8, v8, v12
s_lshl_b32 s6, s4, 9
s_add_u32 s6, s6, {RED0}
v_add_u32 v8, s6, v8
v_and_b32 v163, 15, v1
v_lshlrev_b32 v163, 4, v163
v_lshrrev_b32 v164, 4, v1
v_lshl_add_u32 v10, v164, 10, v163
v_add_u32 v10, {RED0}, v10
s_lshl_b32 s6, s4, 12
v_lshlrev_b32 v11, 4, v1
v_add_u32 v11, s6, v11
s_mov_b32 s52, 0x00ff00ff
s_mov_b32 s53, 0xff00ff00
s_waitcnt lgkmcnt(0)
s_add_u32 s5, s5, 1
''')
for q in range(4): a(f'v_and_b32 v{156+2+q}, 0x3f803f80, v{3+q}')
stamp(0); stamp(30,'s_memtime')
a('s_cmp_ge_u32 s4, 4\ns_cbranch_scc1 CLRW\ns_waitcnt vmcnt(5)')
silu(16,20)
stamp(1)
gemv(16,64)
reduce(RED0,C_P1,8,'A','P1DONE','P1MID',4)
a(f'''s_and_b32 s6, s3, 31
s_lshl_b32 s6, s6, 12
s_lshr_b32 s7, s3, 5
s_lshl_b32 s7, s7, 9
s_add_u32 s6, s6, s7
s_add_u32 s6, s6, {E1}
s_mov_b64 exec, s[82:83]
buffer_store_dwordx4 v[44:47], v12, s[36:39], s6 offen sc1
s_mov_b64 exec, -1''')
stamp(2)
a.label('P1DONE')
a('s_waitcnt vmcnt(1)')
silu(20,22)
unpk(104,136,8); unpk(16,24,2)
stats(104); norm(16,4,56)
landed(0); a(f'v_add_u32 v12, {R0}, v11'); rdw(64,0); arrive(F_FR0)
a(f'''s_lshr_b32 s6, s63, 6
s_lshl_b32 s6, s6, 12
s_and_b32 s7, s63, 63
s_lshl_b32 s7, s7, 3
s_add_u32 s6, s6, s7
s_add_u32 s6, s6, {E1}
s_add_u32 s7, s6, 65536
v_lshlrev_b32 v12, 5, v9
v_lshl_add_u32 v12, v2, 5, v12''')
stamp(3); stamp(21,'cnt')
a('v_lshlrev_b32 v13, 5, v9\nv_lshl_add_u32 v13, v2, 16, v13')
poll([ld(96,'v12','s6'),ld(100,'v12','s6',16),ld(104,'v12','s7'),ld(108,'v12','s7',16)],8,('0xffff',sc('v13','s6'),TG),pre=(1,sc('v13','s6'),TG,15))
stamp(4); stamp(22,'cnt')
if 1 in GU: arrive(G[1])
sa=[96,98,100,102]; ca=[104,106,108,110]
dppred(sa+ca,[0,1,2]); rnd(sa+ca,56)
for r in ca: a(f'v_add_f32 v{r}, 1.0, v{r}')
rnd(ca,56)
for i in range(4): a(f'v_mul_f32 v{16+i}, v{16+i}, v{ca[i]}')
rnd([16,17,18,19],56)
for i in range(4): a(f'v_add_f32 v{16+i}, v{16+i}, v{sa[i]}')
dup(56,16); gemv(56,64)
reduce(RED1,C_P2,8,'A','P2DONE')
a(f'''s_lshl_b32 s6, s54, 11
s_lshl_b32 s7, s55, 9
s_add_u32 s6, s6, s7
s_add_u32 s6, s6, {E2}
s_mov_b64 exec, s[82:83]
buffer_store_dwordx4 v[44:47], v12, s[36:39], s6 offen sc1
s_mov_b64 exec, -1''')
stamp(5)
a.label('P2DONE')
def m2blk():
    if P['ME']: spin(F_FR0,8); a(f'v_subrev_u32 v8, {RED0-R0}, v8\nv_subrev_u32 v10, {RED0-R0}, v10')
    landed(8 if P['ORD'] else 16); a(f'v_add_u32 v12, {R2}, v11'); rdw(64,0); arrive(F_FR2); gemv(20,64)
    reduce(RED0,C_M2,8,'B','M2DONE')
    a(f's_lshl_b32 s6, s55, 14\ns_lshl_b32 s7, s54, 8\ns_add_u32 s6, s6, s7\ns_add_u32 s6, s6, {M2}')
    pub24(44,'v163','s6','0xffff')
    a.label('M2DONE')
    if P['ME']: a(f'v_add_u32 v8, {RED0-R0}, v8\nv_add_u32 v10, {RED0-R0}, v10')
if P['ME']:
    assert P['ORD'] and P['G5']==3
    m2blk()
a('s_cmp_ge_u32 s4, 4\ns_cbranch_scc1 NOK')
landed(16 if P['ORD'] else 8)
a(f'''v_and_b32 v13, 15, v1
v_xor_b32 v12, v164, v13
v_lshlrev_b32 v12, 4, v12
v_lshl_add_u32 v12, v13, 8, v12
s_lshl_b32 s6, s4, 12
s_add_u32 s6, s6, {RK}
v_add_u32 v12, s6, v12''')
for s_ in range(4): a(f'v_xor_b32 v13, {64*s_}, v12\nds_read_b128 {v(136+4*s_,4)}, v13')
arrive(F_FR0)
a.label('NOK')
a(f's_mov_b32 s50, {24 if P["ORD"] else 16}'); landed('s50')
a(f'''v_bfe_u32 v12, v1, 2, 2
v_lshl_add_u32 v13, v164, 3, v12
v_and_b32 v14, 15, v13
v_bfe_u32 v12, v1, 1, 1
s_lshl_b32 s6, s4, 1
v_add_u32 v12, s6, v12
v_xor_b32 v12, v12, v14
v_lshlrev_b32 v12, 4, v12
v_lshl_add_u32 v12, v13, 8, v12
v_and_b32 v13, 1, v1
v_lshl_add_u32 v12, v13, 3, v12
v_add_u32 v12, {RV}, v12
v_xor_b32 v13, 64, v12
ds_read_b64_tr_b16 v[128:129], v12
ds_read_b64_tr_b16 v[130:131], v13 offset:1024
ds_read_b64_tr_b16 v[132:133], v12 offset:8192
ds_read_b64_tr_b16 v[134:135], v13 offset:9216
s_lshl_b32 s6, s55, 15
s_lshl_b32 s7, s4, 12
s_add_u32 s6, s6, s7
s_add_u32 s6, s6, {E2}
v_and_b32 v13, 31, v1
v_lshlrev_b32 v13, 4, v13
v_lshrrev_b32 v12, 5, v1
v_lshl_add_u32 v12, v12, 11, v13''')
stamp(6); stamp(23,'cnt')
a('v_lshlrev_b32 v13, 9, v1')
poll([ld(96+4*k,'v12','s6',512*k) for k in range(4)],8,('0xff',sc('v13','s6'),TG),pre=(2,sc('v13','s6'),TG,7))
stamp(7); stamp(24,'cnt')
if 2 in GU: arrive(G[2])
a(f'''v_add_f32 v96, v96, v100
v_add_f32 v98, v98, v102
v_add_f32 v104, v104, v108
v_add_f32 v106, v106, v110
v_add_f32 v96, v96, v104
v_add_f32 v98, v98, v106
s_mul_i32 s6, s4, 272
s_add_u32 s6, s6, {QL}
v_lshl_add_u32 v12, v1, 2, s6
v_cvt_pk_bf16_f32 v96, v96, v98
ds_write_b32 v12, v96''')
arrive(C_Q)
a(f'''v_and_b32 v13, 7, v1
v_mul_u32_u24 v13, 272, v13
s_cmp_ge_u32 s4, 4
s_cbranch_scc1 NOQK
v_lshl_add_u32 v12, v164, 4, v13
v_add_u32 v12, {QL}, v12''')
spin(C_Q,8)
for s_ in range(4): a(f'ds_read_b128 {v(96+4*s_,4)}, v12 offset:{64*s_}')
for s_ in range(4): a(f's_waitcnt lgkmcnt({3-s_})\nv_mfma_f32_16x16x32_bf16 v[44:47], {v(136+4*s_,4)}, {v(96+4*s_,4)}, {"0" if s_==0 else "v[44:47]"}')
a(f's_lshl_b32 s6, s4, 6\ns_add_u32 s6, s6, {SC-QL}\nv_add_u32 v12, s6, v12')
rnd([44,45,46,47],56)
for i in range(4): a(f'v_mul_f32 v{44+i}, 0x3db504f3, v{44+i}')
rnd([44,45,46,47],56)
a('s_mov_b32 exec_lo, s52\ns_mov_b32 exec_hi, s52\nds_write_b128 v12, v[44:47]\ns_mov_b64 exec, -1')
arrive(C_S)
a.label('NOQK')
a(f'v_lshl_add_u32 v12, v164, 5, v13\nv_add_u32 v12, {SC}, v12')
spin(C_S,4)
for i,o in enumerate([0,16,128,144]): a(f'ds_read_b128 {v(96+4*i,4)}, v12 offset:{o}')
a('s_waitcnt lgkmcnt(0)\nv_max3_f32 v56, v96, v97, v98')
for i in range(99,111,2): a(f'v_max3_f32 v56, v56, v{i}, v{i+1}')
a('v_max_f32 v56, v56, v111'); swapred([56],58,'max')
a(f'v_mul_f32 v57, {f2u(-1.4426950408889634)}, v56\ns_mov_b32 s6, 0x3fb8aa3b')
for i in range(96,112): a(f'v_fma_f32 v{i}, v{i}, s6, v57')
for i in range(96,112): a(f'v_exp_f32 v{i}, v{i}')
for i in range(8): a(f'v_cvt_pk_bf16_f32 v{112+i}, v{96+2*i}, v{97+2*i}')
a('v_mfma_f32_16x16x32_bf16 v[44:47], v[128:131], v[112:115], 0\nv_mfma_f32_16x16x32_bf16 v[44:47], v[132:135], v[116:119], v[44:47]')
a(f'''s_lshl_b32 s6, s55, 17
s_lshl_b32 s7, s54, 7
s_add_u32 s6, s6, s7
s_lshr_b32 s7, s4, 2
s_lshl_b32 s7, s7, 13
s_add_u32 s6, s6, s7
s_and_b32 s7, s4, 3
s_lshl_b32 s7, s7, 5
s_add_u32 s6, s6, s7
s_add_u32 s6, s6, {E3O}
v_lshlrev_b32 v12, 10, v9
v_lshl_add_u32 v12, v164, 3, v12
s_mov_b32 s50, 0xff
s_mov_b32 s51, 0xff
v_cvt_pk_bf16_f32 v44, v44, v45
v_cvt_pk_bf16_f32 v45, v46, v47
v_mov_b32 v46, v44
v_mov_b32 v47, v45
v_permlane16_swap_b32 v44, v46
v_permlane16_swap_b32 v45, v47''')
pub24(44,'v12','s6','s[50:51]')
a('s_cmp_lg_u32 s4, 0\ns_cbranch_scc1 NOML')
for m in (8,4,2):
    for i in range(0,m,2): a(f'v_pk_add_f32 {v(96+i,2)}, {v(96+i,2)}, {v(96+m+i,2)}')
a('v_add_f32 v57, v96, v97'); swapred([57],58)
a(f'''s_lshl_b32 s6, s55, 12
s_lshl_b32 s7, s54, 3
s_add_u32 s6, s6, s7
s_add_u32 s6, s6, {E3M}
v_lshlrev_b32 v12, 9, v1''')
pub24(56,'v12','s6','0xff',2)
a.label('NOML')
stamp(8)
if not P['ME']: m2blk()
stamp(9)
def e4addr(): a(f's_lshr_b32 s6, s56, 1\ns_lshl_b32 s6, s6, 12\ns_lshl_b32 s7, s57, 8\ns_add_u32 s6, s6, s7\ns_and_b32 s7, s56, 1\ns_lshl_b32 s7, s7, 7\ns_add_u32 s6, s6, s7\ns_add_u32 s64, s6, {E4}\ns_mov_b32 s6, s64')
def e5addr(): a(f's_lshl_b32 s6, s59, 1\ns_add_u32 s6, s6, s58\ns_mul_i32 s6, s6, 14336\ns_lshl_b32 s7, s60, 8\ns_add_u32 s6, s6, s7\ns_add_u32 s6, s6, {E5}')
R8='row_ror:8 row_mask:0xf bank_mask:0xf'
landed(24); a(f'v_add_u32 v12, {R3}, v11'); rdw(64,0)
e4addr()
a(f'''s_and_b32 s6, s4, 3
s_lshl_b32 s7, s57, 2
s_add_u32 s6, s6, s7
s_lshr_b32 s7, s6, 1
s_lshl_b32 s7, s7, 9
s_add_u32 s72, s7, {E3M}
s_lshr_b32 s7, s4, 2
v_and_b32 v13, 1, v1
v_xor_b32 v13, s7, v13
v_lshlrev_b32 v13, 8, v13
v_lshl_add_u32 v13, v2, 5, v13
s_lshl_b32 s6, s6, 1
s_add_u32 s6, s6, s7
s_lshl_b32 s6, s6, 12
s_add_u32 s65, s6, {E3O}
v_lshl_add_u32 v12, v2, 9, v9
s_lshr_b32 s6, s4, 1
s_lshl_b32 s6, s6, 9
s_and_b32 s7, s4, 1
s_lshl_b32 s7, s7, 7
s_add_u32 s6, s6, s7
s_add_u32 s6, s6, {RED1}
v_lshl_add_u32 v166, v2, 4, s6
s_lshl_b32 s66, s56, 8
s_add_u32 s66, s66, {M2}
v_lshl_add_u32 v167, v164, 14, v163''')
a('v_lshlrev_b32 v123, 3, v1')
stamp(10); stamp(25,'cnt')
poll([ld(96+4*t,'v12','s65',128*t) for t in range(4)]+[ld(112,'v13','s72'),ld(116,'v13','s72',16)],0,('-1',sc('v123','s72'),SN),pre=(4,sc('v12','s65'),SN,30))
stamp(11); stamp(26,'cnt')
if 3 in GU: arrive(G[3])
GA=ld(24,'v167','s66'); a(GA[1].replace(' sc1',''))
a(f'''s_lshl_b32 s62, s58, 9
s_lshl_b32 s6, s4, 6
s_add_u32 s62, s62, s6
s_lshl_b32 s62, s62, 2
s_add_u32 s67, s62, {M2+4096}
v_and_b32 v36, 3, v1
v_lshlrev_b32 v36, 14, v36
v_bfe_u32 v13, v1, 2, 1
v_lshl_add_u32 v36, v13, 12, v36
v_lshl_add_u32 v36, v2, 4, v36''')
SB=[ld(28,'v36','s67'),ld(32,'v36','s67',128)]
if P['SBE']:
    for g,t in SB: a(t.replace(' sc1',''))
a(f'v_max3_f32 v58, v112, v114, v116\nv_max_f32 v58, v58, v118'); dppred([58],[0],'max'); a(f'v_max_f32_dpp v58, v58, v58 {R8}'); swapred([58],59,'max')
a(f'v_mul_f32 v58, {f2u(-1.4426950408889634)}, v58\ns_mov_b32 s6, 0x3fb8aa3b')
for t in range(4): a(f'v_fma_f32 v{60+t}, v{112+2*t}, s6, v58')
for t in range(4): a(f'v_exp_f32 v{60+t}, v{60+t}')
dup(60,60)
for t in range(4): a(f'v_mov_b32_dpp v{56+t}, v{60+t} quad_perm:[0,0,2,2] row_mask:0xf bank_mask:0xf')
gemv(56,96)
for t in range(4): a(f'v_and_b32 v{60+t}, s48, v{60+t}')
a('v_mul_f32 v57, v60, v113\nv_fmac_f32 v57, v61, v115\nv_fmac_f32 v57, v62, v117\nv_fmac_f32 v57, v63, v119')
dppred([57],[0]); a(f'v_add_f32_dpp v57, v57, v57 {R8}'); swapred([57],59); a('v_rcp_f32 v57, v57')
for i in range(4): a(f'v_mul_f32 v{44+i}, v{44+i}, v57')
a(f's_mov_b64 exec, s[52:53]\nds_write_b128 v8, v[44:47] offset:{RED1-RED0}'); arrive(C_O); spin(C_O,8)
for i,o in enumerate([0,256,2048,2304]): a(f'ds_read_b128 {v(96+4*i,4)}, v166 offset:{o}')
a('''s_waitcnt lgkmcnt(2)
v_pk_add_f32 v[96:97], v[96:97], v[100:101]
v_pk_add_f32 v[98:99], v[98:99], v[102:103]
s_waitcnt lgkmcnt(0)
v_pk_add_f32 v[104:105], v[104:105], v[108:109]
v_pk_add_f32 v[106:107], v[106:107], v[110:111]
v_pk_add_f32 v[96:97], v[96:97], v[104:105]
v_pk_add_f32 v[98:99], v[98:99], v[106:107]''')
dup(56,96); gemv(56,64)
a('s_waitcnt vmcnt(%d)'%(2 if P['SBE'] else 0)); chk([24],0); a('s_cbranch_vccz GADONE'); poll([GA],0,plain=False); a.label('GADONE')
swapred([24,25,26,27],96); rnd([24,25,26,27],96)
reduce(RED0,C_P4,8,'B','P4DONE')
a('''v_pk_mul_f32 v[44:45], v[44:45], v[24:25]
v_pk_mul_f32 v[46:47], v[46:47], v[26:27]
v_lshrrev_b32 v12, 1, v163
v_cvt_pk_bf16_f32 v44, v44, v45
v_cvt_pk_bf16_f32 v45, v46, v47
v_mov_b32_dpp v46, v44 quad_perm:[1,0,3,2] row_mask:0xf bank_mask:0xf
v_mov_b32_dpp v47, v45 quad_perm:[1,0,3,2] row_mask:0xf bank_mask:0xf''')
if P['SBE']: a('s_waitcnt vmcnt(0)')
pub24(44,'v12','s64','0x5555')
stamp(12)
if P['SBE']: a('s_branch P4DONE2')
a.label('P4DONE')
if P['SBE']: a('s_waitcnt vmcnt(0)'); a.label('P4DONE2')
a(f'''s_cmp_ge_u32 s3, 224
s_cbranch_scc1 P5DONE
v_bfe_u32 v13, v1, 2, 1''')
if P['SBE']: chk([28,32],0); a('s_cbranch_vccz SBDONE')
poll(SB,0,plain=not P['SBE']); a.label('SBDONE')
unpk(152,156,2); dppred(list(range(28,36)),[0,1]); rnd(list(range(28,36)),56)
a('v_cmp_eq_u32 vcc, 1, v13')
for i in range(8): a(f'v_mov_b32_dpp v{96+i}, v{28+i} row_half_mirror row_mask:0xf bank_mask:0xf')
for i in range(8): a(f'v_cndmask_b32 v{36+i}, v{28+i}, v{96+i}, vcc\nv_cndmask_b32 v{28+i}, v{96+i}, v{28+i}, vcc')
for i in range(8): a(f'v_add_f32 v{28+i}, 1.0, v{28+i}')
rnd(list(range(28,36)),56)
e5addr()
a(f'''s_mov_b32 s64, s6
s_lshl_b32 s6, s4, 9
s_add_u32 s6, s6, {X2}
v_lshl_add_u32 v166, v163, 1, s6
v_lshl_add_u32 v166, v164, 4, v166
s_add_u32 s6, s62, {X2}
v_lshl_add_u32 v13, v2, 4, s6
v_lshlrev_b32 v12, 4, v1
v_add_u32 v167, {X2}, v12
s_lshl_b32 s51, s4, 1
s_add_u32 s51, s51, 34
s_lshl_b32 s6, s4, 12
v_add_u32 v16, s6, v11
s_add_u32 s6, s6, {E4}
ds_read_b32 v14, v15
s_waitcnt lgkmcnt(0)
v_cmp_gt_i32 vcc, s51, v14
s_mov_b32 s65, 0
s_cbranch_vccnz NOEARLY
s_mov_b32 s65, 1''')
for t in range(8): a(f'ds_read_b128 {v(64+4*t,4)}, v16 offset:{1024*t}')
a.label('NOEARLY')
a('v_lshlrev_b32 v123, 7, v1')
stamp(13); stamp(27,'cnt')
poll([ld(96+4*n,'v12','s6',1024*n) for n in range(4)],0,('LO',sc('v123','s6'),SN),pre=(8,sc('v123','s6'),SN,30))
stamp(14); stamp(28,'cnt')
for n in range(4): a(f'v_mfma_f32_16x16x32_bf16 v[44:47], v[158:161], {v(96+4*n,4)}, {"v[152:155]" if n==0 else "v[44:47]"}')
a('s_mov_b32 exec_hi, 0\nds_write_b128 v166, v[44:47]')
arrive(C_X); spin(C_X,8)
a('ds_read_b32 v60, v15 offset:%d'%(X2-FL))
for i in range(4): a(f'ds_read_b128 {v(96+4*i,4)}, v167 offset:{1024*i}')
a('ds_read_b128 v[112:115], v13\nds_read_b128 v[116:119], v13 offset:128\ns_waitcnt lgkmcnt(5)')
for i in range(0,16,2):
    if i in (4,8,12): a(f's_waitcnt lgkmcnt({5-i//4})')
    a(f'v_pk_add_f32 {v(96+i,2)}, {v(96+i,2)}, v[60:61] op_sel_hi:[1,0] neg_lo:[0,1] neg_hi:[0,1]')
a('v_pk_add_f32 v[56:57], v[96:97], v[98:99]\nv_pk_mul_f32 v[58:59], v[96:97], v[96:97]\nv_pk_fma_f32 v[58:59], v[98:99], v[98:99], v[58:59]')
for i in range(4,16,2): a(f'v_pk_add_f32 v[56:57], v[56:57], {v(96+i,2)}\nv_pk_fma_f32 v[58:59], {v(96+i,2)}, {v(96+i,2)}, v[58:59]')
a('v_add_f32 v56, v56, v57\nv_add_f32 v57, v58, v59')
dppred([56,57],[0,1,2,3]); swapred([56,57],58)
a(f'''v_mul_f32 v56, {f2u(1/1024)}, v56
v_mul_f32 v57, {f2u(1/1024)}, v57
v_fma_f32 v57, -v56, v56, v57
v_add_f32 v60, v60, v56
v_add_f32 v57, {f2u(1e-5)}, v57
v_rsq_f32 v58, v57
s_waitcnt lgkmcnt(0)''')
for i in range(0,8,2): a(f'v_pk_add_f32 {v(112+i,2)}, {v(112+i,2)}, v[60:61] op_sel_hi:[1,0] neg_lo:[0,1] neg_hi:[0,1]')
for i in range(0,8,2): a(f'v_pk_mul_f32 {v(28+i,2)}, {v(28+i,2)}, v[58:59] op_sel_hi:[1,0]')
for i in range(0,8,2): a(f'v_pk_fma_f32 {v(112+i,2)}, {v(112+i,2)}, {v(28+i,2)}, {v(36+i,2)}')
dup(56,112); dup(60,116)
a('s_cmp_eq_u32 s65, 1\ns_cbranch_scc1 EARLY'); landed('s51')
for t in range(8): a(f'ds_read_b128 {v(64+4*t,4)}, v16 offset:{1024*t}')
a('s_waitcnt lgkmcnt(0)')
a.label('EARLY')
stamp(15)
gemv(56,64); gemv(60,80,False)
reduce(RED0,C_P5,8,'B','P5DONE')
pub24(44,'v163','s64','0xffff')
stamp(16)
a.label('P5DONE')
a(f'v_subrev_u32 v8, {RED0-RV}, v8\nv_subrev_u32 v10, {RED0-RV}, v10')
a('v_mov_b32 v44, 0\nv_mov_b32 v45, 0\nv_mov_b32 v46, 0\nv_mov_b32 v47, 0\ns_cmp_eq_u32 s4, 7\ns_cbranch_scc1 P6RED')
landed(48); a(f'v_add_u32 v12, {R2}, v11'); rdw(64,0)
a(f'''s_mul_i32 s6, s57, 896
s_lshl_b32 s7, s4, 7
s_add_u32 s6, s6, s7
s_add_u32 s6, s6, {E5}
v_and_b32 v13, 3, v2
v_mul_u32_u24 v12, 14336, v13
v_add_u32 v12, v12, v9
v_lshlrev_b32 v13, 2, v2
s_mov_b32 exec_hi, 0''')
stamp(17)
poll([ld(96,'v12','s6')],0,plain=False,pre=(16,sc('v12','s6'),SN,30,'s_mov_b32 exec_lo, -1'))
a('s_mov_b64 exec, -1')
stamp(18)
for i in range(4): a(f'v_add_f32_dpp v{104+i}, v{96+i}, v{96+i} {R8}')
for i in range(4): a(f'v_mov_b32 v{108+i}, v{104+i}')
for i in range(4): a(f'v_permlane16_swap_b32 v{104+i}, v{108+i}')
c1=2*0.7978845608028654*1.4426950408889634
a(f's_mov_b32 s6, {f2u(-c1*0.044715)}\nv_mov_b32 v100, {f2u(-c1)}')
for i in range(4): a(f'v_mul_f32 v{96+i}, v{104+i}, v{104+i}')
for i in range(4): a(f'v_fma_f32 v{96+i}, v{96+i}, s6, v100')
for i in range(4): a(f'v_mul_f32 v{96+i}, v{96+i}, v{104+i}')
sigm(104,96,4)
for i in range(4): a(f'v_mul_f32 v{104+i}, v{104+i}, v{108+i}')
dup(60,104)
for i in range(4): a(f'ds_bpermute_b32 v{56+i}, v13, v{60+i}')
a('s_waitcnt lgkmcnt(0)'); gemv(56,64)
a.label('P6RED')
reduce(RED0,C_P6,8,'B','P6DONE')
a(f's_lshl_b32 s6, s57, 12\ns_lshl_b32 s7, s56, 8\ns_add_u32 s6, s6, s7\ns_add_u32 s6, s6, {E6}')
pub24(44,'v163','s6','0xffff')
stamp(19)
a.label('P6DONE')
a(f'''s_cmp_lg_u32 s4, 7
s_cbranch_scc1 TIMEOUT
s_cmp_ge_u32 s3, 64
s_cbranch_scc1 TIMEOUT
s_lshl_b32 s62, s3, 6
s_add_u32 s6, s62, {M2+12288}
v_and_b32 v12, 3, v1
v_lshlrev_b32 v12, 14, v12
v_lshl_add_u32 v12, v164, 4, v12
s_add_u32 s7, s62, {X2}
v_lshl_add_u32 v13, v164, 4, s7
ds_read_b128 v[28:31], v13''')
poll([ld(24,'v12','s6')],0)
dppred([24,25,26,27],[0,1]); rnd([24,25,26,27],56)
a(f's_add_u32 s6, s62, {E6}\nv_lshlrev_b32 v12, 8, v163\nv_lshl_add_u32 v12, v164, 4, v12')
srd(40,30,2048)
a('s_waitcnt lgkmcnt(0)'); poll([ld(96,'v12','s6')],0,plain=False,pre=(32,sc('v12','s6'),SN,30))
dppred([96,97,98,99],[0,1,2,3])
for i in range(4): a(f'v_fma_f32 v{96+i}, v{96+i}, v{24+i}, v{28+i}')
a('''v_cvt_pk_bf16_f32 v96, v96, v97
v_cvt_pk_bf16_f32 v97, v98, v99
v_lshlrev_b32 v12, 3, v164
s_lshl_b32 s6, s3, 5
s_mov_b32 exec_lo, 0x10001
s_mov_b32 exec_hi, 0x10001
buffer_store_dwordx2 v[96:97], v12, s[40:43], s6 offen''')
stamp(20); stamp(31,'s_memtime')
a('''s_cmp_lg_u32 s3, 0
s_cbranch_scc1 TIMEOUT
s_mov_b64 exec, 1
v_mov_b32 v12, 0
v_mov_b32 v13, s5
buffer_store_dword v13, v12, s[36:39], 0 offen sc1
TIMEOUT:''')
flush()
a('EXIT:\ns_endpgm')
a.label('CLEAR')
srd(36,34,WSEND)
a('v_and_b32 v163, 15, v1\nv_lshlrev_b32 v163, 4, v163')
a(f'''v_mov_b32 v44, -1
v_mov_b32 v45, -1
v_mov_b32 v46, -1
v_mov_b32 v47, -1
s_cmp_eq_u32 s4, 4
s_cbranch_scc0 CLR5
s_lshl_b32 s6, s55, 17
s_lshl_b32 s7, s54, 7
s_add_u32 s6, s6, s7
s_add_u32 s6, s6, {E3O}
s_add_u32 s7, s6, 65536
v_lshl_add_u32 v12, v2, 13, v9
buffer_store_dwordx4 v[44:47], v12, s[36:39], s6 offen sc1
buffer_store_dwordx4 v[44:47], v12, s[36:39], s7 offen sc1
s_branch CLRD
CLR5:
s_cmp_eq_u32 s4, 5
s_cbranch_scc0 CLR6
s_lshl_b32 s6, s55, 12
s_lshl_b32 s7, s54, 3
s_add_u32 s6, s6, s7
s_add_u32 s6, s6, {E3M}
v_lshlrev_b32 v12, 9, v1''')
pub24(44,'v12','s6','0xff',2)
a(f's_lshl_b32 s6, s55, 14\ns_lshl_b32 s7, s54, 8\ns_add_u32 s6, s6, s7\ns_add_u32 s6, s6, {M2}')
pub24(44,'v163','s6','0xffff')
a('s_branch CLRD\nCLR6:\ns_cmp_eq_u32 s4, 6\ns_cbranch_scc0 CLR7')
e4addr(); pub24(44,'v163','s6','0xff')
a(f's_lshl_b32 s6, s57, 12\ns_lshl_b32 s7, s56, 8\ns_add_u32 s6, s6, s7\ns_add_u32 s6, s6, {E6}')
pub24(44,'v163','s6','0xffff')
a('s_branch CLRD\nCLR7:\ns_cmp_ge_u32 s3, 224\ns_cbranch_scc1 CLRD')
e5addr(); pub24(44,'v163','s6','0xffff')
a('CLRD:\ns_branch NOP1LD\nCLRW:\ns_waitcnt vmcnt(0)\ns_branch P1MID')
a.label('LOADER')
def stream(ptr,nbytes,vo,S,BS,nblk,lds,N,flag=True):
    srd(40,ptr,nbytes)
    a(f's_mov_b32 m0, {lds}\ns_add_u32 s51, s50, {nblk}')
    L=a.newl(); a.label(L)
    for t in range(4):
        a(f'buffer_load_dwordx4 {vo[t]}, s[40:43], s6 offen{P["NT"]} lds\ns_add_u32 m0, m0, 0x400\ns_add_u32 s6, s6, {S if t<3 else BS-3*S}')
    a('s_add_u32 s50, s50, 1')
    if flag: a(f's_sub_u32 s7, s50, {N//4}\nv_mov_b32 v14, s7\ns_waitcnt vmcnt({N})\nds_max_i32 v15, v14')
    a(f's_cmp_lt_u32 s50, s51\ns_cbranch_scc1 {L}')
def drain(N):
    for k in range(N-4,-1,-4): a(f's_sub_u32 s7, s50, {k//4}\nv_mov_b32 v14, s7\ns_waitcnt vmcnt({k})\nds_max_i32 v15, v14')
def waitfree(addr,n,N):
    D=a.newl()
    a(f'ds_read_b32 v14, v15 offset:{addr-FL}\ns_waitcnt lgkmcnt(0)\nv_cmp_gt_i32 vcc, {n}, v14\ns_cbranch_vccz {D}')
    drain(N); spin(addr,n); a.label(D)
a('''v_lshl_add_u32 v3, v2, 15, v9
s_lshl_b32 s6, s55, 21
s_lshl_b32 s7, s54, 7
s_add_u32 s6, s6, s7
s_mov_b32 s50, 0''')
stream(14,8388608,['v3']*4,8192,32*8192,8,R0,32,False)
a('''v_lshrrev_b32 v4, 4, v1
v_and_b32 v5, 15, v1
v_xor_b32 v5, v5, v4
v_lshlrev_b32 v5, 4, v5
v_lshl_add_u32 v4, v4, 8, v5
v_xor_b32 v5, 64, v4
v_xor_b32 v6, 128, v4
v_xor_b32 v7, 192, v4
s_lshl_b32 s61, s55, 24
s_lshl_b32 s7, s54, 14
s_add_u32 s61, s61, s7
s_add_u32 s61, s61, %d
s_mov_b32 s6, s61
s_barrier'''%(61440*256))
if P['DIAG']: srd(36,34,DG+0x100000)
KV=['v4','v5','v6','v7']
def gate(k,N):
    if P[k]: waitfree(G[P[k]],P['TH'],N)
def sM(prev):
    a('v_mul_u32_u24 v3, 49152, v2\nv_add_u32 v3, v3, v9\ns_mul_i32 s6, s55, 3145728\ns_lshl_b32 s7, s54, 7\ns_add_u32 s6, s6, s7\ns_add_u32 s6, s6, 4096')
    gate('GM',prev); stream(28,12582912,['v3']*4,12288,32*12288,8,R2,P['NM']); stamp(2)
def sKV(prev):
    gate('GK',prev); a('s_mov_b32 s6, s61')
    stream(10,67108864,KV,1024,4096,4,RK,P['N0']); stamp(0)
    gate('GV',P['N0']); a('s_mov_b32 s6, s61'); stream(12,67108864,KV,1024,4096,4,RV,P['NV']); stamp(1)
if P['ORD']: sM(32); sKV(P['NM']); P['NM']=P['NV']
else: sKV(32); sM(P['NV'])
a('v_lshl_add_u32 v8, v2, 13, v9\ns_lshl_b32 s6, s57, 19\ns_lshl_b32 s7, s56, 7\ns_add_u32 s6, s6, s7')
gate('G4',P['NM']); stream(16,8388608,['v8']*4,2048,32*2048,8,R3,P['N2']); stamp(3)
a('s_cmp_ge_u32 s3, 224\ns_cbranch_scc1 NOP5')
waitfree(F_FR0,12,P['N2']); gate('G5',P['N2'])
a('''v_mul_u32_u24 v3, 28672, v2
v_add_u32 v3, v3, v9
s_mul_i32 s6, s58, 3670016
s_lshl_b32 s7, s60, 7
s_add_u32 s6, s6, s7
s_cmp_eq_u32 s59, 1
s_cselect_b32 s62, s22, s20
s_cselect_b32 s63, s23, s21''')
stream(62,7340032,['v3']*4,7168,32*7168,16,R0,P['N3']); stamp(4)
a('s_branch YESP5'); a.label('NOP5'); drain(P['N2']); a('s_mov_b32 s50, 48'); a.label('YESP5')
waitfree(F_FR2,8,P['N3']); gate('G6',P['N3'])
a('s_mul_i32 s6, s57, 458752\ns_lshl_b32 s7, s56, 7\ns_add_u32 s6, s6, s7')
stream(24,7340032,['v8']*4,2048,32*2048,7,R2,P['N4'])
drain(P['N4']); stamp(5)
flush()
a('s_waitcnt lgkmcnt(0)\ns_endpgm')
ref=open('cdna_kernels/'+NAME+'.s.ref').read()
head=ref[:ref.index('; Override launch')]
txt=head+('; DIAG\n' if P['DIAG'] else '')+f'''; @launch grid=(256,1,1) block=(576,1,1) lds={LDSZ}
.amdgcn_target "amdgcn-amd-amdhsa--gfx950"
.text
.globl {NAME}_kernel
.p2align 8
.type {NAME}_kernel,@function
{NAME}_kernel:
'''+a.text()+f'''.section .rodata,"a"
.p2align 6
.amdhsa_kernel {NAME}_kernel
  .amdhsa_next_free_vgpr %d
  .amdhsa_next_free_sgpr 96
  .amdhsa_accum_offset %d
  .amdhsa_group_segment_fixed_size 0
  .amdhsa_kernarg_size 112
  .amdhsa_user_sgpr_count 2
  .amdhsa_user_sgpr_kernarg_segment_ptr 1
  .amdhsa_system_sgpr_workgroup_id_x 1
.end_amdhsa_kernel
'''%((168,168))
open(sys.argv[1],'w').write(txt)
```

```python
import sys,struct
from asmlib import Asm
P=dict(DIAG=0,NT=' nt',N0=32,N1=20,N2=20,N3=20,SLEEP=1,PRESPIN=1,WARM=0,PRE3=0,PRE4=0,E3PRE=0,GK=0,GV=0,GM=0,G4=0,G5=0,G6=0,TH=8,N4=12,NV=0,NM=0,ORD=0,SBE=1,ME=0,MK=1,PS=0,PL=0,PW=0,NS=0,NP=0,H=0,NH=8)
for a in sys.argv[2:]:
    k,v=a.split('='); P[k]=v if k=='NT' else int(v)
if P['NT']=='0': P['NT']=''
NAME='adaLN_cond__sliding_block_cached__geglu_ffn__decode'
def f2u(x): return '0x%08x'%struct.unpack('<I',struct.pack('<f',x))[0]
E1,E2,E3O,E3M,M2,E4,E5,E6,WSEND=0x1000,0x21000,0x41000,0x141000,0x149000,0x159000,0x169000,0x177000,0x187000
DG=0x190000
R0,RK,RV,R2,R3,W=0,32768,65536,81920,114688,147456
FL=W; RED0=W+128; RED1=RED0+4096; QL=RED1+4096; SC=QL+2176; X2=QL; LDSZ=SC+2176
F_LAND,F_FR0,F_FR2,C_P1,C_P2,C_Q,C_S,C_M2,C_P4,C_X,C_P5,C_P6,C_O=[FL+4*i for i in range(13)]
G=[0,FL+52,FL+56,FL+60,FL+88]
GU={P[k] for k in ('GK','GV','GM','G4','G5','G6')}
P['NV']=P['NV'] or P['N1']; P['NM']=P['NM'] or P['N1']
a=Asm()
T=['s5','s44','s45','s46']
def v(i,n=1): return f'v{i}' if n==1 else f'v[{i}:{i+n-1}]'
def srd(d,p,n): a(f's_mov_b32 s{d}, s{p}\ns_mov_b32 s{d+1}, s{p+1}\ns_mov_b32 s{d+2}, {n}\ns_mov_b32 s{d+3}, 0x20000')
def stamp(i,ins='s_memrealtime'):
    if P['DIAG']:
        if ins=='cnt': a(f'v_writelane_b32 v126, s49, {i}')
        else: a(f'{ins} s[76:77]\ns_waitcnt lgkmcnt(0)\nv_writelane_b32 v126, s76, {i}')
def flush():
    if P['DIAG']==2:
        L=a.newl(); srd(36,32,256)
        a(f's_cmp_lg_u32 s3, 0\ns_cbranch_scc1 {L}\ns_cmp_lg_u32 s4, 7\ns_cbranch_scc1 {L}\nv_readlane_b32 s78, v126, 29\ns_mov_b64 exec, -1\ns_nop 4\nv_subrev_u32 v126, s78, v126\nv_lshlrev_b32 v127, 1, v1\ns_mov_b32 exec_hi, 0\nbuffer_store_short v126, v127, s[36:39], 0 offen'); a.label(L)
    elif P['DIAG']:
        srd(36,34,DG+0x100000)
        a(f's_mul_i32 s78, s3, 2304\ns_lshl_b32 s79, s4, 8\ns_add_u32 s78, s78, s79\ns_add_u32 s78, s78, {DG}\ns_mov_b64 exec, -1\nv_lshlrev_b32 v127, 2, v1\nbuffer_store_dword v126, v127, s[36:39], s78 offen')
def budget(): a('s_sub_u32 s49, s49, 1\ns_cbranch_scc1 TIMEOUT')
def spin(addr,thr):
    L=a.newl(); a.label(L); budget()
    a(f'ds_read_b32 v14, v15 offset:{addr-FL}\ns_waitcnt lgkmcnt(0)\nv_cmp_gt_i32 vcc, {thr}, v14\ns_cbranch_vccnz {L}')
def arrive(addr):
    a(f's_waitcnt lgkmcnt(0)\ns_mov_b64 exec, 1\nds_add_u32 v15, v162 offset:{addr-FL}\ns_mov_b64 exec, -1')
def landed(c):
    if isinstance(c,int): a(f's_add_u32 s50, s4, {c+1}'); c='s50'
    spin(F_LAND,c)
def chk(regs,fmt,acc='v165'):
    if fmt==0:
        R=[g+i for g in regs for i in range(4)]
        a(f'v_max3_u32 {acc}, v{R[0]}, v{R[1]}, v{R[2]}')
        for i in range(3,len(R)-1,2): a(f'v_max3_u32 {acc}, {acc}, v{R[i]}, v{R[i+1]}')
        a(f'v_max_u32 {acc}, {acc}, v{R[-1]}\nv_cmp_eq_u32 vcc, -1, {acc}'); return
    first=True
    for g in regs:
        if fmt==24: lst=[(g+i,T[i]) for i in range(4)]
        else: lst=[(g+1,T[0]),(g+3,T[0])]
        for r,t in lst:
            if first: a(f'v_xor_b32 {acc}, {t}, v{r}'); first=False
            else: a(f'v_bitop3_b32 {acc}, {acc}, v{r}, {t} bitop3:0xf6')
    if fmt==24: a(f'v_and_b32 {acc}, 0xff, {acc}')
    a(f'v_cmp_ne_u32 vcc, 0, {acc}')
MK='\ns_mov_b64 exec, vcc' if P['MK'] else ''
def poll(loads,fmt,scout=None,plain=True,pre=None):
    D=a.newl()
    def body(ls,pl):
        for g,t in ls: a(t.replace(' sc1','') if pl else t)
        a('s_waitcnt vmcnt(0)'); chk([g for g,t in ls],fmt)
    def again(L):
        budget()
        if P['SLEEP']: a(f's_sleep {P["SLEEP"]}')
        a(f's_branch {L}')
    if pre and P['PS']&pre[0]:
        L=a.newl(); E=a.newl(); Wt=a.newl(); CW=FL+64+4*(pre[0].bit_length()-1); pw=P['PW']&pre[0]
        if pw: a(f's_cmp_lg_u32 s4, 0\ns_cbranch_scc1 {Wt}')
        if P['PL']==2: a(f's_and_b32 s50, s3, {pre[3]|1}\ns_lshl_b64 exec, 1, s50')
        else: a(f's_mov_b64 exec, {hex(1<<(pre[3] if P["PL"] else 0))}')
        a.label(L)
        a(pre[1]+'\ns_waitcnt vmcnt(0)\n'+pre[2]+f'\ns_cbranch_vccz {E}'); again(L); a.label(E)
        if pw: arrive(CW); a.label(Wt); spin(CW,1)
        a(pre[4] if len(pre)>4 else 's_mov_b64 exec, -1')
    if pre and P['NP']&pre[0]: plain=False
    if scout and not P['NS']&pre[0]:
        ex,txt,cmp_=scout
        L=a.newl(); E=a.newl(); a('s_mov_b32 exec_hi, 0' if ex=='LO' else f's_mov_b64 exec, {ex}'); a.label(L)
        a(txt+'\ns_waitcnt vmcnt(0)\n'+cmp_+f'\ns_cbranch_vccz {E}'+MK); again(L); a.label(E); a('s_mov_b64 exec, -1')
    if plain: body(loads,True); a(f's_cbranch_vccz {D}'+MK)
    L=a.newl(); a.label(L); body(loads,False); a(f's_cbranch_vccz {D}'+MK); again(L); a.label(D)
    if P['MK']: a('s_mov_b64 exec, -1')
def sc(va,so): return f'buffer_load_dwordx2 v[124:125], {va}, s[36:39], {so} offen sc1'
TG='v_cmp_ne_u32 vcc, s5, v125'
SN='v_max_u32 v165, v124, v125\nv_cmp_eq_u32 vcc, -1, v165'
def ld(g,va,so,off=0): return (g,f'buffer_load_dwordx4 {v(g,4)}, {va}, s[36:39], {so} offen offset:{off} sc1')
def mask(g,n=4):
    for i in range(n): a(f'v_and_b32 v{g+i}, v7, v{g+i}')
DP=['quad_perm:[1,0,3,2]','quad_perm:[2,3,0,1]','row_half_mirror','row_mirror']
def dppred(regs,steps,op='add'):
    for s_ in steps:
        for r in regs: a(f'v_{op}_f32_dpp v{r}, v{r}, v{r} {DP[s_]} row_mask:0xf bank_mask:0xf')
def swapred(regs,tmp,op='add',which=(16,32)):
    for w_ in which:
        for i,r in enumerate(regs): a(f'v_mov_b32 v{tmp+i}, v{r}')
        for i,r in enumerate(regs): a(f'v_permlane{w_}_swap_b32 v{r}, v{tmp+i}')
        for i,r in enumerate(regs): a(f'v_{op}_f32 v{r}, v{r}, v{tmp+i}')
def rnd(regs,tmp):
    for i in range(0,len(regs),2): a(f'v_cvt_pk_bf16_f32 v{tmp+i//2}, v{regs[i]}, v{regs[i+1]}')
    for i in range(0,len(regs),2): a(f'v_lshlrev_b32 v{regs[i]}, 16, v{tmp+i//2}\nv_and_b32 v{regs[i+1]}, s48, v{tmp+i//2}')
def rnd1(r): a(f'v_cvt_pk_bf16_f32 v{r}, v{r}, v{r}\nv_and_b32 v{r}, s48, v{r}')
def dup(dst,src):
    for i in range(4): a(f'v_cvt_pk_bf16_f32 v{dst+i}, v{src+i}, v{src+i}')
def unpk(dst,src,n):
    for i in reversed(range(n)): a(f'v_and_b32 v{dst+2*i+1}, s48, v{src+i}\nv_lshlrev_b32 v{dst+2*i}, 16, v{src+i}')
def gemv(hh,wt,first=True):
    for t in range(4):
        A=48+4*(t&1)
        for q in range(4): a(f'v_and_b32 v{A+q}, v{hh+t}, v{3+q}')
        a(f'v_mfma_f32_16x16x32_bf16 v[44:47], {v(A,4)}, {v(wt+4*t,4)}, {"0" if first and t==0 else "v[44:47]"}')
def rdw(dst,base):
    for t in range(4): a(f'ds_read_b128 {v(dst+4*t,4)}, v12 offset:{1024*t}')
def reduce(buf,cnt,n,form,skip,mid=None,ns=8):
    a(f's_mov_b64 exec, s[52:53]\nds_write_b128 v8, v[44:47] offset:{buf-RED0}')
    if mid: a.label(mid)
    a(f'''s_waitcnt lgkmcnt(0)
    s_mov_b64 exec, 1
    ds_add_rtn_u32 v14, v15, v162 offset:{cnt-FL}
    s_mov_b64 exec, -1
    s_waitcnt lgkmcnt(0)
    v_readfirstlane_b32 s50, v14
    s_cmp_lg_u32 s50, {n-1}
    s_cbranch_scc1 {skip}''')
    if form=='A':
        a(f'v_lshlrev_b32 v12, 2, v1\nv_add_u32 v12, {buf}, v12')
        for i in range(ns): a(f'ds_read2st64_b32 {v(96+2*i,2)}, v12 offset0:{2*i} offset1:{2*i+1}')
        a('s_waitcnt lgkmcnt(0)')
        m=2*ns
        while m>2:
            m//=2
            for i in range(0,m,2): a(f'v_pk_add_f32 {v(96+i,2)}, {v(96+i,2)}, {v(96+m+i,2)}')
        a('v_add_f32 v44, v96, v97\nv_mov_b32 v45, s5\nv_mov_b32 v47, s5\nv_lshlrev_b32 v12, 3, v1\nv_mov_b32_dpp v46, v44 quad_perm:[1,0,3,2] row_mask:0xf bank_mask:0xf')
    else:
        for k in range(4): a(f'ds_read_b128 {v(96+4*k,4)}, v10 offset:{buf-RED0+256*k}')
        a('s_waitcnt lgkmcnt(0)')
        a('v_pk_add_f32 v[96:97], v[96:97], v[100:101]\nv_pk_add_f32 v[98:99], v[98:99], v[102:103]')
        a('v_pk_add_f32 v[104:105], v[104:105], v[108:109]\nv_pk_add_f32 v[106:107], v[106:107], v[110:111]')
        a('v_pk_add_f32 v[44:45], v[96:97], v[104:105]\nv_pk_add_f32 v[46:47], v[98:99], v[106:107]')
        swapred([44,45,46,47],96)
def pub24(g,va,so,ex,n=4):
    a(f's_mov_b64 exec, {ex}\nbuffer_store_dwordx{n} {v(g,n)}, {va}, s[36:39], {so} offen sc1\ns_mov_b64 exec, -1')
def stats(X):
    a(f'v_pk_add_f32 v[56:57], {v(X,2)}, {v(X+2,2)}\nv_pk_add_f32 v[58:59], {v(X+4,2)}, {v(X+6,2)}')
    a(f'v_pk_add_f32 v[56:57], v[56:57], {v(X+8,2)}\nv_pk_add_f32 v[58:59], v[58:59], {v(X+10,2)}')
    a(f'v_pk_add_f32 v[56:57], v[56:57], {v(X+12,2)}\nv_pk_add_f32 v[58:59], v[58:59], {v(X+14,2)}')
    a('v_pk_add_f32 v[56:57], v[56:57], v[58:59]\nv_add_f32 v60, v56, v57')
    dppred([60],[0,1,2,3]); swapred([60],62)
    a(f'v_mul_f32 v60, {f2u(-1/1024)}, v60')
    for i in range(0,16,2): a(f'v_pk_add_f32 {v(X+i,2)}, {v(X+i,2)}, v[60:61] op_sel_hi:[1,0]')
    a(f'v_pk_mul_f32 v[56:57], {v(X,2)}, {v(X,2)}\nv_pk_mul_f32 v[58:59], {v(X+2,2)}, {v(X+2,2)}')
    for i in range(4,16,2): a(f'v_pk_fma_f32 {v(56+(i&2),2)}, {v(X+i,2)}, {v(X+i,2)}, {v(56+(i&2),2)}')
    a('v_pk_add_f32 v[56:57], v[56:57], v[58:59]\nv_add_f32 v61, v56, v57')
    dppred([61],[0,1,2,3]); swapred([61],62)
    a(f'v_mul_f32 v61, {f2u(1/1024)}, v61\nv_sub_f32 v60, 0, v60')
    rnd([60,61],62); a(f'v_add_f32 v61, {f2u(1e-5)}, v61'); rnd1(61); a('v_sqrt_f32 v61, v61'); rnd1(61); a('v_rcp_f32 v61, v61')
def norm(X,n,tmp):
    R=list(range(X,X+n))
    for r in R: a(f'v_sub_f32 v{r}, v{r}, v60')
    rnd(R,tmp)
    for r in R: a(f'v_mul_f32 v{r}, v{r}, v61')
    rnd(R,tmp)
def sigm(X,Y,n):
    for i in range(n): a(f'v_exp_f32 v{Y+i}, v{Y+i}')
    for i in range(n): a(f'v_add_f32 v{Y+i}, 1.0, v{Y+i}')
    for i in range(n): a(f'v_rcp_f32 v{Y+i}, v{Y+i}')
    for i in range(n): a(f'v_mul_f32 v{X+i}, v{X+i}, v{Y+i}')
def silu(dst,src):
    unpk(56,src,2)
    for i in range(4): a(f'v_mul_f32 v{60+i}, {f2u(-1.4426950408889634)}, v{56+i}')
    sigm(56,60,4); dup(dst,56)

a('''s_cmp_ge_u32 s2, 256
s_cbranch_scc1 EXIT
s_load_dwordx16 s[8:23], s[0:1], 0
s_load_dwordx8 s[24:31], s[0:1], 64
s_load_dwordx4 s[32:35], s[0:1], 96
v_lshrrev_b32 v2, 6, v0
v_and_b32 v1, 63, v0
s_and_b32 s3, s2, 7
s_lshl_b32 s3, s3, 5
s_lshr_b32 s6, s2, 3
s_add_u32 s3, s3, s6
v_readfirstlane_b32 s4, v2
v_lshrrev_b32 v2, 3, v1
v_and_b32 v9, 7, v1
v_lshlrev_b32 v9, 4, v9
s_mov_b32 s49, 0x200000
s_and_b32 s54, s3, 63
s_lshr_b32 s55, s3, 6
s_and_b32 s56, s3, 15
s_lshr_b32 s57, s3, 4
s_cmp_ge_u32 s3, 112
s_cselect_b32 s58, 1, 0
s_mul_i32 s6, s58, 112
s_sub_u32 s60, s3, s6
s_cmp_ge_u32 s60, 56
s_cselect_b32 s59, 1, 0
s_mul_i32 s6, s59, 56
s_sub_u32 s60, s60, s6
v_mov_b32 v15, %d
v_mov_b32 v162, 1
v_mov_b32 v126, 0
v_mov_b32 v14, 0
v_lshl_add_u32 v12, v1, 2, v15
s_mov_b32 exec_hi, 0
ds_write_b32 v12, v14
s_mov_b64 exec, -1
s_waitcnt lgkmcnt(0)
s_cmp_eq_u32 s4, 8
s_cbranch_scc1 LOADER'''%FL)
stamp(29)
a('''s_lshl_b32 s61, s4, 5
s_lshr_b32 s6, s3, 5
s_lshl_b32 s6, s6, 7
s_add_u32 s62, s6, s61
s_lshl_b32 s6, s55, 8
s_add_u32 s63, s6, s61
v_mul_u32_u24 v12, 49152, v2
v_add_u32 v12, v12, v9
s_mul_i32 s64, s62, 12288
s_and_b32 s6, s3, 31
s_lshl_b32 s6, s6, 7
s_add_u32 s64, s64, s6
v_lshlrev_b32 v13, 3, v2
v_lshlrev_b32 v14, 5, v1
s_lshl_b32 s65, s62, 1
s_lshl_b32 s66, s63, 1
s_load_dword s5, s[34:35], 0''')
srd(40,28,12582912)
a('s_cmp_ge_u32 s4, 4\ns_cbranch_scc1 CLEAR')
for t in range(4): a(f'buffer_load_dwordx4 {v(64+4*t,4)}, v12, s[40:43], s64 offen{P["NT"]}\ns_add_u32 s64, s64, 12288')
a.label('NOP1LD')
srd(40,26,2048)
a('buffer_load_dwordx2 v[20:21], v13, s[40:43], s65 offen\nbuffer_load_dwordx2 v[22:23], v13, s[40:43], s66 offen')
srd(40,8,2048)
a('''buffer_load_dwordx2 v[24:25], v13, s[40:43], s66 offen
buffer_load_dwordx4 v[136:139], v14, s[40:43], 0 offen
buffer_load_dwordx4 v[140:143], v14, s[40:43], 0 offen offset:16
v_and_b32 v12, 15, v1
v_lshlrev_b32 v12, 4, v12
v_bfe_u32 v14, v1, 4, 1
v_lshl_add_u32 v12, v14, 3, v12
s_lshl_b32 s6, s4, 8
buffer_load_dwordx2 v[156:157], v12, s[40:43], s6 offen''')
srd(36,34,WSEND if not P['DIAG'] else DG+0x100000)
a(f'''s_barrier
s_mov_b32 s48, 0xffff0000
s_mov_b32 s82, 0x55555555
s_mov_b32 s83, s82
v_and_b32 v12, 1, v1
v_cmp_eq_u32 vcc, 1, v12
v_mov_b32 v13, 0xffff
v_mov_b32 v14, s48
v_cndmask_b32 v13, v13, v14, vcc
v_bfe_u32 v12, v1, 1, 2''')
for q in range(4): a(f'v_cmp_eq_u32 vcc, {q}, v12\nv_cndmask_b32 v{3+q}, 0, v13, vcc')
a(f'''v_lshrrev_b32 v12, 5, v1
v_lshlrev_b32 v8, 8, v12
v_lshl_add_u32 v8, v9, 1, v8
v_and_b32 v12, 16, v1
v_add_u32 v8, v8, v12
s_lshl_b32 s6, s4, 9
s_add_u32 s6, s6, {RED0}
v_add_u32 v8, s6, v8
v_and_b32 v163, 15, v1
v_lshlrev_b32 v163, 4, v163
v_lshrrev_b32 v164, 4, v1
v_lshl_add_u32 v10, v164, 10, v163
v_add_u32 v10, {RED0}, v10
s_lshl_b32 s6, s4, 12
v_lshlrev_b32 v11, 4, v1
v_add_u32 v11, s6, v11
s_mov_b32 s52, 0x00ff00ff
s_mov_b32 s53, 0xff00ff00
s_waitcnt lgkmcnt(0)
s_add_u32 s5, s5, 1
''')
for q in range(4): a(f'v_and_b32 v{156+2+q}, 0x3f803f80, v{3+q}')
stamp(0); stamp(30,'s_memtime')
a('s_cmp_ge_u32 s4, 4\ns_cbranch_scc1 CLRW\ns_waitcnt vmcnt(5)')
silu(16,20)
stamp(1)
gemv(16,64)
reduce(RED0,C_P1,8,'A','P1DONE','P1MID',4)
a(f'''s_and_b32 s6, s3, 31
s_lshl_b32 s6, s6, 12
s_lshr_b32 s7, s3, 5
s_lshl_b32 s7, s7, 9
s_add_u32 s6, s6, s7
s_add_u32 s6, s6, {E1}
s_mov_b64 exec, s[82:83]
buffer_store_dwordx4 v[44:47], v12, s[36:39], s6 offen sc1
s_mov_b64 exec, -1''')
stamp(2)
a.label('P1DONE')
a('s_waitcnt vmcnt(1)')
silu(20,22)
unpk(104,136,8); unpk(16,24,2)
stats(104); norm(16,4,56)
landed(0); a(f'v_add_u32 v12, {R0}, v11'); rdw(64,0); arrive(F_FR0)
a(f'''s_lshr_b32 s6, s63, 6
s_lshl_b32 s6, s6, 12
s_and_b32 s7, s63, 63
s_lshl_b32 s7, s7, 3
s_add_u32 s6, s6, s7
s_add_u32 s6, s6, {E1}
s_add_u32 s7, s6, 65536
v_lshlrev_b32 v12, 5, v9
v_lshl_add_u32 v12, v2, 5, v12''')
stamp(3); stamp(21,'cnt')
a('v_lshlrev_b32 v13, 5, v9\nv_lshl_add_u32 v13, v2, 16, v13')
poll([ld(96,'v12','s6'),ld(100,'v12','s6',16),ld(104,'v12','s7'),ld(108,'v12','s7',16)],8,('0xffff',sc('v13','s6'),TG),pre=(1,sc('v13','s6'),TG,15))
stamp(4); stamp(22,'cnt')
if 1 in GU: arrive(G[1])
sa=[96,98,100,102]; ca=[104,106,108,110]
dppred(sa+ca,[0,1,2]); rnd(sa+ca,56)
for r in ca: a(f'v_add_f32 v{r}, 1.0, v{r}')
rnd(ca,56)
for i in range(4): a(f'v_mul_f32 v{16+i}, v{16+i}, v{ca[i]}')
rnd([16,17,18,19],56)
for i in range(4): a(f'v_add_f32 v{16+i}, v{16+i}, v{sa[i]}')
dup(56,16); gemv(56,64)
reduce(RED1,C_P2,8,'A','P2DONE')
a(f'''s_lshl_b32 s6, s54, 11
s_lshl_b32 s7, s55, 9
s_add_u32 s6, s6, s7
s_add_u32 s6, s6, {E2}
s_mov_b64 exec, s[82:83]
buffer_store_dwordx4 v[44:47], v12, s[36:39], s6 offen sc1
s_mov_b64 exec, -1''')
stamp(5)
a.label('P2DONE')
def m2blk():
    if P['ME']: spin(F_FR0,8); a(f'v_subrev_u32 v8, {RED0-R0}, v8\nv_subrev_u32 v10, {RED0-R0}, v10')
    landed(8 if P['ORD'] else 16); a(f'v_add_u32 v12, {R2}, v11'); rdw(64,0); arrive(F_FR2); gemv(20,64)
    reduce(RED0,C_M2,8,'B','M2DONE')
    a(f's_lshl_b32 s6, s55, 14\ns_lshl_b32 s7, s54, 8\ns_add_u32 s6, s6, s7\ns_add_u32 s6, s6, {M2}')
    pub24(44,'v163','s6','0xffff')
    a.label('M2DONE')
    if P['ME']: a(f'v_add_u32 v8, {RED0-R0}, v8\nv_add_u32 v10, {RED0-R0}, v10')
if P['ME']:
    assert P['ORD'] and P['G5']==3
    m2blk()
a('s_cmp_ge_u32 s4, 4\ns_cbranch_scc1 NOK')
landed(16 if P['ORD'] else 8)
a(f'''v_and_b32 v13, 15, v1
v_xor_b32 v12, v164, v13
v_lshlrev_b32 v12, 4, v12
v_lshl_add_u32 v12, v13, 8, v12
s_lshl_b32 s6, s4, 12
s_add_u32 s6, s6, {RK}
v_add_u32 v12, s6, v12''')
for s_ in range(4): a(f'v_xor_b32 v13, {64*s_}, v12\nds_read_b128 {v(136+4*s_,4)}, v13')
arrive(F_FR0)
a.label('NOK')
a(f's_mov_b32 s50, {24 if P["ORD"] else 16}'); landed('s50')
a(f'''v_bfe_u32 v12, v1, 2, 2
v_lshl_add_u32 v13, v164, 3, v12
v_and_b32 v14, 15, v13
v_bfe_u32 v12, v1, 1, 1
s_lshl_b32 s6, s4, 1
v_add_u32 v12, s6, v12
v_xor_b32 v12, v12, v14
v_lshlrev_b32 v12, 4, v12
v_lshl_add_u32 v12, v13, 8, v12
v_and_b32 v13, 1, v1
v_lshl_add_u32 v12, v13, 3, v12
v_add_u32 v12, {RV}, v12
v_xor_b32 v13, 64, v12
ds_read_b64_tr_b16 v[128:129], v12
ds_read_b64_tr_b16 v[130:131], v13 offset:1024
ds_read_b64_tr_b16 v[132:133], v12 offset:8192
ds_read_b64_tr_b16 v[134:135], v13 offset:9216
s_lshl_b32 s6, s55, 15
s_lshl_b32 s7, s4, 12
s_add_u32 s6, s6, s7
s_add_u32 s6, s6, {E2}
v_and_b32 v13, 31, v1
v_lshlrev_b32 v13, 4, v13
v_lshrrev_b32 v12, 5, v1
v_lshl_add_u32 v12, v12, 11, v13''')
stamp(6); stamp(23,'cnt')
a('v_lshlrev_b32 v13, 9, v1')
poll([ld(96+4*k,'v12','s6',512*k) for k in range(4)],8,('0xff',sc('v13','s6'),TG),pre=(2,sc('v13','s6'),TG,7))
stamp(7); stamp(24,'cnt')
if 2 in GU: arrive(G[2])
a(f'''v_add_f32 v96, v96, v100
v_add_f32 v98, v98, v102
v_add_f32 v104, v104, v108
v_add_f32 v106, v106, v110
v_add_f32 v96, v96, v104
v_add_f32 v98, v98, v106
s_mul_i32 s6, s4, 272
s_add_u32 s6, s6, {QL}
v_lshl_add_u32 v12, v1, 2, s6
v_cvt_pk_bf16_f32 v96, v96, v98
ds_write_b32 v12, v96''')
arrive(C_Q)
a(f'''v_and_b32 v13, 7, v1
v_mul_u32_u24 v13, 272, v13
s_cmp_ge_u32 s4, 4
s_cbranch_scc1 NOQK
v_lshl_add_u32 v12, v164, 4, v13
v_add_u32 v12, {QL}, v12''')
spin(C_Q,8)
for s_ in range(4): a(f'ds_read_b128 {v(96+4*s_,4)}, v12 offset:{64*s_}')
for s_ in range(4): a(f's_waitcnt lgkmcnt({3-s_})\nv_mfma_f32_16x16x32_bf16 v[44:47], {v(136+4*s_,4)}, {v(96+4*s_,4)}, {"0" if s_==0 else "v[44:47]"}')
a(f's_lshl_b32 s6, s4, 6\ns_add_u32 s6, s6, {SC-QL}\nv_add_u32 v12, s6, v12')
rnd([44,45,46,47],56)
for i in range(4): a(f'v_mul_f32 v{44+i}, 0x3db504f3, v{44+i}')
rnd([44,45,46,47],56)
a('s_mov_b32 exec_lo, s52\ns_mov_b32 exec_hi, s52\nds_write_b128 v12, v[44:47]\ns_mov_b64 exec, -1')
arrive(C_S)
a.label('NOQK')
a(f'v_lshl_add_u32 v12, v164, 5, v13\nv_add_u32 v12, {SC}, v12')
spin(C_S,4)
for i,o in enumerate([0,16,128,144]): a(f'ds_read_b128 {v(96+4*i,4)}, v12 offset:{o}')
a('s_waitcnt lgkmcnt(0)\nv_max3_f32 v56, v96, v97, v98')
for i in range(99,111,2): a(f'v_max3_f32 v56, v56, v{i}, v{i+1}')
a('v_max_f32 v56, v56, v111'); swapred([56],58,'max')
a(f'v_mul_f32 v57, {f2u(-1.4426950408889634)}, v56\ns_mov_b32 s6, 0x3fb8aa3b')
for i in range(96,112): a(f'v_fma_f32 v{i}, v{i}, s6, v57')
for i in range(96,112): a(f'v_exp_f32 v{i}, v{i}')
for i in range(8): a(f'v_cvt_pk_bf16_f32 v{112+i}, v{96+2*i}, v{97+2*i}')
a('v_mfma_f32_16x16x32_bf16 v[44:47], v[128:131], v[112:115], 0\nv_mfma_f32_16x16x32_bf16 v[44:47], v[132:135], v[116:119], v[44:47]')
a(f'''s_lshl_b32 s6, s55, 17
s_lshl_b32 s7, s54, 7
s_add_u32 s6, s6, s7
s_lshr_b32 s7, s4, 2
s_lshl_b32 s7, s7, 13
s_add_u32 s6, s6, s7
s_and_b32 s7, s4, 3
s_lshl_b32 s7, s7, 5
s_add_u32 s6, s6, s7
s_add_u32 s6, s6, {E3O}
v_lshlrev_b32 v12, 10, v9
v_lshl_add_u32 v12, v164, 3, v12
s_mov_b32 s50, 0xff
s_mov_b32 s51, 0xff
v_cvt_pk_bf16_f32 v44, v44, v45
v_cvt_pk_bf16_f32 v45, v46, v47
v_mov_b32 v46, v44
v_mov_b32 v47, v45
v_permlane16_swap_b32 v44, v46
v_permlane16_swap_b32 v45, v47''')
pub24(44,'v12','s6','s[50:51]')
a('s_cmp_lg_u32 s4, 0\ns_cbranch_scc1 NOML')
for m in (8,4,2):
    for i in range(0,m,2): a(f'v_pk_add_f32 {v(96+i,2)}, {v(96+i,2)}, {v(96+m+i,2)}')
a('v_add_f32 v57, v96, v97'); swapred([57],58)
a(f'''s_lshl_b32 s6, s55, 12
s_lshl_b32 s7, s54, 3
s_add_u32 s6, s6, s7
s_add_u32 s6, s6, {E3M}
v_lshlrev_b32 v12, 9, v1''')
pub24(56,'v12','s6','0xff',2)
a.label('NOML')
stamp(8)
if not P['ME']: m2blk()
stamp(9)
def e4addr(): a(f's_lshr_b32 s6, s56, 1\ns_lshl_b32 s6, s6, 12\ns_lshl_b32 s7, s57, 8\ns_add_u32 s6, s6, s7\ns_and_b32 s7, s56, 1\ns_lshl_b32 s7, s7, 7\ns_add_u32 s6, s6, s7\ns_add_u32 s64, s6, {E4}\ns_mov_b32 s6, s64')
def e5addr(): a(f's_lshl_b32 s6, s59, 1\ns_add_u32 s6, s6, s58\ns_mul_i32 s6, s6, 14336\ns_lshl_b32 s7, s60, 8\ns_add_u32 s6, s6, s7\ns_add_u32 s6, s6, {E5}')
R8='row_ror:8 row_mask:0xf bank_mask:0xf'
landed(24); a(f'v_add_u32 v12, {R3}, v11'); rdw(64,0)
e4addr()
a(f'''s_and_b32 s6, s4, 3
s_lshl_b32 s7, s57, 2
s_add_u32 s6, s6, s7
s_lshr_b32 s7, s6, 1
s_lshl_b32 s7, s7, 9
s_add_u32 s72, s7, {E3M}
s_lshr_b32 s7, s4, 2
v_and_b32 v13, 1, v1
v_xor_b32 v13, s7, v13
v_lshlrev_b32 v13, 8, v13
v_lshl_add_u32 v13, v2, 5, v13
s_lshl_b32 s6, s6, 1
s_add_u32 s6, s6, s7
s_lshl_b32 s6, s6, 12
s_add_u32 s65, s6, {E3O}
v_lshl_add_u32 v12, v2, 9, v9
s_lshr_b32 s6, s4, 1
s_lshl_b32 s6, s6, 9
s_and_b32 s7, s4, 1
s_lshl_b32 s7, s7, 7
s_add_u32 s6, s6, s7
s_add_u32 s6, s6, {RED1}
v_lshl_add_u32 v166, v2, 4, s6
s_lshl_b32 s66, s56, 8
s_add_u32 s66, s66, {M2}
v_lshl_add_u32 v167, v164, 14, v163''')
a('v_lshlrev_b32 v123, 3, v1')
stamp(10); stamp(25,'cnt')
poll([ld(96+4*t,'v12','s65',128*t) for t in range(4)]+[ld(112,'v13','s72'),ld(116,'v13','s72',16)],0,('-1',sc('v123','s72'),SN),pre=(4,sc('v12','s65'),SN,30))
stamp(11); stamp(26,'cnt')
if 3 in GU: arrive(G[3])
GA=ld(24,'v167','s66'); a(GA[1].replace(' sc1',''))
a(f'''s_lshl_b32 s62, s58, 9
s_lshl_b32 s6, s4, 6
s_add_u32 s62, s62, s6
s_lshl_b32 s62, s62, 2
s_add_u32 s67, s62, {M2+4096}
v_and_b32 v36, 3, v1
v_lshlrev_b32 v36, 14, v36
v_bfe_u32 v13, v1, 2, 1
v_lshl_add_u32 v36, v13, 12, v36
v_lshl_add_u32 v36, v2, 4, v36''')
SB=[ld(28,'v36','s67'),ld(32,'v36','s67',128)]
if P['SBE']:
    for g,t in SB: a(t.replace(' sc1',''))
a(f'v_max3_f32 v58, v112, v114, v116\nv_max_f32 v58, v58, v118'); dppred([58],[0],'max'); a(f'v_max_f32_dpp v58, v58, v58 {R8}'); swapred([58],59,'max')
a(f'v_mul_f32 v58, {f2u(-1.4426950408889634)}, v58\ns_mov_b32 s6, 0x3fb8aa3b')
for t in range(4): a(f'v_fma_f32 v{60+t}, v{112+2*t}, s6, v58')
for t in range(4): a(f'v_exp_f32 v{60+t}, v{60+t}')
dup(60,60)
for t in range(4): a(f'v_mov_b32_dpp v{56+t}, v{60+t} quad_perm:[0,0,2,2] row_mask:0xf bank_mask:0xf')
gemv(56,96)
for t in range(4): a(f'v_and_b32 v{60+t}, s48, v{60+t}')
a('v_mul_f32 v57, v60, v113\nv_fmac_f32 v57, v61, v115\nv_fmac_f32 v57, v62, v117\nv_fmac_f32 v57, v63, v119')
dppred([57],[0]); a(f'v_add_f32_dpp v57, v57, v57 {R8}'); swapred([57],59); a('v_rcp_f32 v57, v57')
for i in range(4): a(f'v_mul_f32 v{44+i}, v{44+i}, v57')
a(f's_mov_b64 exec, s[52:53]\nds_write_b128 v8, v[44:47] offset:{RED1-RED0}'); arrive(C_O); spin(C_O,8)
for i,o in enumerate([0,256,2048,2304]): a(f'ds_read_b128 {v(96+4*i,4)}, v166 offset:{o}')
a('''s_waitcnt lgkmcnt(2)
v_pk_add_f32 v[96:97], v[96:97], v[100:101]
v_pk_add_f32 v[98:99], v[98:99], v[102:103]
s_waitcnt lgkmcnt(0)
v_pk_add_f32 v[104:105], v[104:105], v[108:109]
v_pk_add_f32 v[106:107], v[106:107], v[110:111]
v_pk_add_f32 v[96:97], v[96:97], v[104:105]
v_pk_add_f32 v[98:99], v[98:99], v[106:107]''')
dup(56,96); gemv(56,64)
a('s_waitcnt vmcnt(%d)'%(2 if P['SBE'] else 0)); chk([24],0); a('s_cbranch_vccz GADONE'); poll([GA],0,plain=False); a.label('GADONE')
swapred([24,25,26,27],96); rnd([24,25,26,27],96)
reduce(RED0,C_P4,8,'B','P4DONE')
a('''v_pk_mul_f32 v[44:45], v[44:45], v[24:25]
v_pk_mul_f32 v[46:47], v[46:47], v[26:27]
v_lshrrev_b32 v12, 1, v163
v_cvt_pk_bf16_f32 v44, v44, v45
v_cvt_pk_bf16_f32 v45, v46, v47
v_mov_b32_dpp v46, v44 quad_perm:[1,0,3,2] row_mask:0xf bank_mask:0xf
v_mov_b32_dpp v47, v45 quad_perm:[1,0,3,2] row_mask:0xf bank_mask:0xf''')
if P['SBE']: a('s_waitcnt vmcnt(0)')
pub24(44,'v12','s64','0x5555')
stamp(12)
if P['SBE']: a('s_branch P4DONE2')
a.label('P4DONE')
if P['SBE']: a('s_waitcnt vmcnt(0)'); a.label('P4DONE2')
a(f'''s_cmp_ge_u32 s3, 224
s_cbranch_scc1 P5DONE
v_bfe_u32 v13, v1, 2, 1''')
if P['SBE']: chk([28,32],0); a('s_cbranch_vccz SBDONE')
poll(SB,0,plain=not P['SBE']); a.label('SBDONE')
unpk(152,156,2); dppred(list(range(28,36)),[0,1]); rnd(list(range(28,36)),56)
a('v_cmp_eq_u32 vcc, 1, v13')
for i in range(8): a(f'v_mov_b32_dpp v{96+i}, v{28+i} row_half_mirror row_mask:0xf bank_mask:0xf')
for i in range(8): a(f'v_cndmask_b32 v{36+i}, v{28+i}, v{96+i}, vcc\nv_cndmask_b32 v{28+i}, v{96+i}, v{28+i}, vcc')
for i in range(8): a(f'v_add_f32 v{28+i}, 1.0, v{28+i}')
rnd(list(range(28,36)),56)
e5addr()
a(f'''s_mov_b32 s64, s6
s_lshl_b32 s6, s4, 9
s_add_u32 s6, s6, {X2}
v_lshl_add_u32 v166, v163, 1, s6
v_lshl_add_u32 v166, v164, 4, v166
s_add_u32 s6, s62, {X2}
v_lshl_add_u32 v13, v2, 4, s6
v_lshlrev_b32 v12, 4, v1
v_add_u32 v167, {X2}, v12
s_lshl_b32 s51, s4, 1
s_add_u32 s51, s51, 34
s_lshl_b32 s6, s4, 12
v_add_u32 v16, s6, v11
s_add_u32 s6, s6, {E4}
ds_read_b32 v14, v15
s_waitcnt lgkmcnt(0)
v_cmp_gt_i32 vcc, s51, v14
s_mov_b32 s65, 0
s_cbranch_vccnz NOEARLY
s_mov_b32 s65, 1''')
for t in range(8): a(f'ds_read_b128 {v(64+4*t,4)}, v16 offset:{1024*t}')
a.label('NOEARLY')
a('v_lshlrev_b32 v123, 7, v1')
stamp(13); stamp(27,'cnt')
poll([ld(96+4*n,'v12','s6',1024*n) for n in range(4)],0,('LO',sc('v123','s6'),SN),pre=(8,sc('v123','s6'),SN,30))
stamp(14); stamp(28,'cnt')
if 4 in GU: arrive(G[4])
for n in range(4): a(f'v_mfma_f32_16x16x32_bf16 v[44:47], v[158:161], {v(96+4*n,4)}, {"v[152:155]" if n==0 else "v[44:47]"}')
a('s_mov_b32 exec_hi, 0\nds_write_b128 v166, v[44:47]')
arrive(C_X); spin(C_X,8)
a('ds_read_b32 v60, v15 offset:%d'%(X2-FL))
for i in range(4): a(f'ds_read_b128 {v(96+4*i,4)}, v167 offset:{1024*i}')
a('ds_read_b128 v[112:115], v13\nds_read_b128 v[116:119], v13 offset:128\ns_waitcnt lgkmcnt(5)')
for i in range(0,16,2):
    if i in (4,8,12): a(f's_waitcnt lgkmcnt({5-i//4})')
    a(f'v_pk_add_f32 {v(96+i,2)}, {v(96+i,2)}, v[60:61] op_sel_hi:[1,0] neg_lo:[0,1] neg_hi:[0,1]')
a('v_pk_add_f32 v[56:57], v[96:97], v[98:99]\nv_pk_mul_f32 v[58:59], v[96:97], v[96:97]\nv_pk_fma_f32 v[58:59], v[98:99], v[98:99], v[58:59]')
for i in range(4,16,2): a(f'v_pk_add_f32 v[56:57], v[56:57], {v(96+i,2)}\nv_pk_fma_f32 v[58:59], {v(96+i,2)}, {v(96+i,2)}, v[58:59]')
a('v_add_f32 v56, v56, v57\nv_add_f32 v57, v58, v59')
dppred([56,57],[0,1,2,3]); swapred([56,57],58)
a(f'''v_mul_f32 v56, {f2u(1/1024)}, v56
v_mul_f32 v57, {f2u(1/1024)}, v57
v_fma_f32 v57, -v56, v56, v57
v_add_f32 v60, v60, v56
v_add_f32 v57, {f2u(1e-5)}, v57
v_rsq_f32 v58, v57
s_waitcnt lgkmcnt(0)''')
for i in range(0,8,2): a(f'v_pk_add_f32 {v(112+i,2)}, {v(112+i,2)}, v[60:61] op_sel_hi:[1,0] neg_lo:[0,1] neg_hi:[0,1]')
for i in range(0,8,2): a(f'v_pk_mul_f32 {v(28+i,2)}, {v(28+i,2)}, v[58:59] op_sel_hi:[1,0]')
for i in range(0,8,2): a(f'v_pk_fma_f32 {v(112+i,2)}, {v(112+i,2)}, {v(28+i,2)}, {v(36+i,2)}')
dup(56,112); dup(60,116)
a('s_cmp_eq_u32 s65, 1\ns_cbranch_scc1 EARLY'); landed('s51')
for t in range(8): a(f'ds_read_b128 {v(64+4*t,4)}, v16 offset:{1024*t}')
a('s_waitcnt lgkmcnt(0)')
a.label('EARLY')
stamp(15)
gemv(56,64); gemv(60,80,False)
reduce(RED0,C_P5,8,'B','P5DONE')
pub24(44,'v163','s64','0xffff')
stamp(16)
a.label('P5DONE')
a(f'v_subrev_u32 v8, {RED0-RV}, v8\nv_subrev_u32 v10, {RED0-RV}, v10')
a('v_mov_b32 v44, 0\nv_mov_b32 v45, 0\nv_mov_b32 v46, 0\nv_mov_b32 v47, 0\ns_cmp_eq_u32 s4, 7\ns_cbranch_scc1 P6RED')
landed(48); a(f'v_add_u32 v12, {R2}, v11'); rdw(64,0)
a(f'''s_mul_i32 s6, s57, 896
s_lshl_b32 s7, s4, 7
s_add_u32 s6, s6, s7
s_add_u32 s6, s6, {E5}
v_and_b32 v13, 3, v2
v_mul_u32_u24 v12, 14336, v13
v_add_u32 v12, v12, v9
v_lshlrev_b32 v13, 2, v2
s_mov_b32 exec_hi, 0''')
stamp(17)
poll([ld(96,'v12','s6')],0,plain=False,pre=(16,sc('v12','s6'),SN,30,'s_mov_b32 exec_lo, -1'))
a('s_mov_b64 exec, -1')
stamp(18)
for i in range(4): a(f'v_add_f32_dpp v{104+i}, v{96+i}, v{96+i} {R8}')
for i in range(4): a(f'v_mov_b32 v{108+i}, v{104+i}')
for i in range(4): a(f'v_permlane16_swap_b32 v{104+i}, v{108+i}')
c1=2*0.7978845608028654*1.4426950408889634
a(f's_mov_b32 s6, {f2u(-c1*0.044715)}\nv_mov_b32 v100, {f2u(-c1)}')
for i in range(4): a(f'v_mul_f32 v{96+i}, v{104+i}, v{104+i}')
for i in range(4): a(f'v_fma_f32 v{96+i}, v{96+i}, s6, v100')
for i in range(4): a(f'v_mul_f32 v{96+i}, v{96+i}, v{104+i}')
sigm(104,96,4)
for i in range(4): a(f'v_mul_f32 v{104+i}, v{104+i}, v{108+i}')
dup(60,104)
for i in range(4): a(f'ds_bpermute_b32 v{56+i}, v13, v{60+i}')
a('s_waitcnt lgkmcnt(0)'); gemv(56,64)
a.label('P6RED')
reduce(RED0,C_P6,8,'B','P6DONE')
a(f's_lshl_b32 s6, s57, 12\ns_lshl_b32 s7, s56, 8\ns_add_u32 s6, s6, s7\ns_add_u32 s6, s6, {E6}')
pub24(44,'v163','s6','0xffff')
stamp(19)
a.label('P6DONE')
a(f'''s_cmp_lg_u32 s4, 7
s_cbranch_scc1 TIMEOUT
s_cmp_ge_u32 s3, 64
s_cbranch_scc1 TIMEOUT
s_lshl_b32 s62, s3, 6
s_add_u32 s6, s62, {M2+12288}
v_and_b32 v12, 3, v1
v_lshlrev_b32 v12, 14, v12
v_lshl_add_u32 v12, v164, 4, v12
s_add_u32 s7, s62, {X2}
v_lshl_add_u32 v13, v164, 4, s7
ds_read_b128 v[28:31], v13''')
poll([ld(24,'v12','s6')],0)
dppred([24,25,26,27],[0,1]); rnd([24,25,26,27],56)
a(f's_add_u32 s6, s62, {E6}\nv_lshlrev_b32 v12, 8, v163\nv_lshl_add_u32 v12, v164, 4, v12')
srd(40,30,2048)
a('s_waitcnt lgkmcnt(0)'); poll([ld(96,'v12','s6')],0,plain=False,pre=(32,sc('v12','s6'),SN,30))
dppred([96,97,98,99],[0,1,2,3])
for i in range(4): a(f'v_fma_f32 v{96+i}, v{96+i}, v{24+i}, v{28+i}')
a('''v_cvt_pk_bf16_f32 v96, v96, v97
v_cvt_pk_bf16_f32 v97, v98, v99
v_lshlrev_b32 v12, 3, v164
s_lshl_b32 s6, s3, 5
s_mov_b32 exec_lo, 0x10001
s_mov_b32 exec_hi, 0x10001
buffer_store_dwordx2 v[96:97], v12, s[40:43], s6 offen''')
stamp(20); stamp(31,'s_memtime')
a('''s_cmp_lg_u32 s3, 0
s_cbranch_scc1 TIMEOUT
s_mov_b64 exec, 1
v_mov_b32 v12, 0
v_mov_b32 v13, s5
buffer_store_dword v13, v12, s[36:39], 0 offen sc1
TIMEOUT:''')
flush()
a('EXIT:\ns_endpgm')
a.label('CLEAR')
srd(36,34,WSEND)
a('v_and_b32 v163, 15, v1\nv_lshlrev_b32 v163, 4, v163')
a(f'''v_mov_b32 v44, -1
v_mov_b32 v45, -1
v_mov_b32 v46, -1
v_mov_b32 v47, -1
s_cmp_eq_u32 s4, 4
s_cbranch_scc0 CLR5
s_lshl_b32 s6, s55, 17
s_lshl_b32 s7, s54, 7
s_add_u32 s6, s6, s7
s_add_u32 s6, s6, {E3O}
s_add_u32 s7, s6, 65536
v_lshl_add_u32 v12, v2, 13, v9
buffer_store_dwordx4 v[44:47], v12, s[36:39], s6 offen sc1
buffer_store_dwordx4 v[44:47], v12, s[36:39], s7 offen sc1
s_branch CLRD
CLR5:
s_cmp_eq_u32 s4, 5
s_cbranch_scc0 CLR6
s_lshl_b32 s6, s55, 12
s_lshl_b32 s7, s54, 3
s_add_u32 s6, s6, s7
s_add_u32 s6, s6, {E3M}
v_lshlrev_b32 v12, 9, v1''')
pub24(44,'v12','s6','0xff',2)
a(f's_lshl_b32 s6, s55, 14\ns_lshl_b32 s7, s54, 8\ns_add_u32 s6, s6, s7\ns_add_u32 s6, s6, {M2}')
pub24(44,'v163','s6','0xffff')
a('s_branch CLRD\nCLR6:\ns_cmp_eq_u32 s4, 6\ns_cbranch_scc0 CLR7')
e4addr(); pub24(44,'v163','s6','0xff')
a(f's_lshl_b32 s6, s57, 12\ns_lshl_b32 s7, s56, 8\ns_add_u32 s6, s6, s7\ns_add_u32 s6, s6, {E6}')
pub24(44,'v163','s6','0xffff')
a('s_branch CLRD\nCLR7:\ns_cmp_ge_u32 s3, 224\ns_cbranch_scc1 CLRD')
e5addr(); pub24(44,'v163','s6','0xffff')
a('CLRD:\ns_branch NOP1LD\nCLRW:\ns_waitcnt vmcnt(0)\ns_branch P1MID')
a.label('LOADER')
def stream(ptr,nbytes,vo,S,BS,nblk,lds,N,flag=True):
    srd(40,ptr,nbytes)
    a(f's_mov_b32 m0, {lds}\ns_add_u32 s51, s50, {nblk}')
    L=a.newl(); a.label(L)
    for t in range(4):
        a(f'buffer_load_dwordx4 {vo[t]}, s[40:43], s6 offen{P["NT"]} lds\ns_add_u32 m0, m0, 0x400\ns_add_u32 s6, s6, {S if t<3 else BS-3*S}')
    a('s_add_u32 s50, s50, 1')
    if flag: a(f's_sub_u32 s7, s50, {N//4}\nv_mov_b32 v14, s7\ns_waitcnt vmcnt({N})\nds_max_i32 v15, v14')
    a(f's_cmp_lt_u32 s50, s51\ns_cbranch_scc1 {L}')
def drain(N):
    for k in range(N-4,-1,-4): a(f's_sub_u32 s7, s50, {k//4}\nv_mov_b32 v14, s7\ns_waitcnt vmcnt({k})\nds_max_i32 v15, v14')
def waitfree(addr,n,N):
    D=a.newl()
    a(f'ds_read_b32 v14, v15 offset:{addr-FL}\ns_waitcnt lgkmcnt(0)\nv_cmp_gt_i32 vcc, {n}, v14\ns_cbranch_vccz {D}')
    drain(N); spin(addr,n); a.label(D)
a('''v_lshl_add_u32 v3, v2, 15, v9
s_lshl_b32 s6, s55, 21
s_lshl_b32 s7, s54, 7
s_add_u32 s6, s6, s7
s_mov_b32 s50, 0''')
stream(14,8388608,['v3']*4,8192,32*8192,8,R0,32,False)
a('''v_lshrrev_b32 v4, 4, v1
v_and_b32 v5, 15, v1
v_xor_b32 v5, v5, v4
v_lshlrev_b32 v5, 4, v5
v_lshl_add_u32 v4, v4, 8, v5
v_xor_b32 v5, 64, v4
v_xor_b32 v6, 128, v4
v_xor_b32 v7, 192, v4
s_lshl_b32 s61, s55, 24
s_lshl_b32 s7, s54, 14
s_add_u32 s61, s61, s7
s_add_u32 s61, s61, %d
s_mov_b32 s6, s61
s_barrier'''%(61440*256))
if P['DIAG']: srd(36,34,DG+0x100000)
KV=['v4','v5','v6','v7']
def gate(k,N):
    if P[k]: waitfree(G[P[k]],P['TH'],N)
def sM(prev):
    a('v_mul_u32_u24 v3, 49152, v2\nv_add_u32 v3, v3, v9\ns_mul_i32 s6, s55, 3145728\ns_lshl_b32 s7, s54, 7\ns_add_u32 s6, s6, s7\ns_add_u32 s6, s6, 4096')
    gate('GM',prev); stream(28,12582912,['v3']*4,12288,32*12288,8,R2,P['NM']); stamp(2)
def sKV(prev):
    gate('GK',prev); a('s_mov_b32 s6, s61')
    stream(10,67108864,KV,1024,4096,4,RK,P['N0']); stamp(0)
    gate('GV',P['N0']); a('s_mov_b32 s6, s61'); stream(12,67108864,KV,1024,4096,4,RV,P['NV']); stamp(1)
if P['ORD']: sM(32); sKV(P['NM']); P['NM']=P['NV']
else: sKV(32); sM(P['NV'])
a('v_lshl_add_u32 v8, v2, 13, v9\ns_lshl_b32 s6, s57, 19\ns_lshl_b32 s7, s56, 7\ns_add_u32 s6, s6, s7')
gate('G4',P['NM']); stream(16,8388608,['v8']*4,2048,32*2048,8,R3,P['N2']); stamp(3)
a('s_cmp_ge_u32 s3, 224\ns_cbranch_scc1 NOP5')
waitfree(F_FR0,12,P['N2'])
if not P['H']: gate('G5',P['N2'])
a('''v_mul_u32_u24 v3, 28672, v2
v_add_u32 v3, v3, v9
s_mul_i32 s6, s58, 3670016
s_lshl_b32 s7, s60, 7
s_add_u32 s6, s6, s7
s_cmp_eq_u32 s59, 1
s_cselect_b32 s62, s22, s20
s_cselect_b32 s63, s23, s21''')
if P['H']: stream(62,7340032,['v3']*4,7168,32*7168,P['H'],R0,P['NH']); gate('G5',P['NH'])
stream(62,7340032,['v3']*4,7168,32*7168,16-P['H'],R0+4096*P['H'],P['N3']); stamp(4)
if P['G6']==4: gate('G6',P['N3'])
a('s_branch YESP5'); a.label('NOP5'); drain(P['N2']); a('s_mov_b32 s50, 48'); a.label('YESP5')
waitfree(F_FR2,8,P['N3'])
if P['G6']!=4: gate('G6',P['N3'])
a('s_mul_i32 s6, s57, 458752\ns_lshl_b32 s7, s56, 7\ns_add_u32 s6, s6, s7')
stream(24,7340032,['v8']*4,2048,32*2048,7,R2,P['N4'])
drain(P['N4']); stamp(5)
flush()
a('s_waitcnt lgkmcnt(0)\ns_endpgm')
ref=open('cdna_kernels/'+NAME+'.s.ref').read()
head=ref[:ref.index('; Override launch')]
txt=head+('; DIAG\n' if P['DIAG'] else '')+f'''; @launch grid=(256,1,1) block=(576,1,1) lds={LDSZ}
.amdgcn_target "amdgcn-amd-amdhsa--gfx950"
.text
.globl {NAME}_kernel
.p2align 8
.type {NAME}_kernel,@function
{NAME}_kernel:
'''+a.text()+f'''.section .rodata,"a"
.p2align 6
.amdhsa_kernel {NAME}_kernel
  .amdhsa_next_free_vgpr %d
  .amdhsa_next_free_sgpr 96
  .amdhsa_accum_offset %d
  .amdhsa_group_segment_fixed_size 0
  .amdhsa_kernarg_size 112
  .amdhsa_user_sgpr_count 2
  .amdhsa_user_sgpr_kernarg_segment_ptr 1
  .amdhsa_system_sgpr_workgroup_id_x 1
.end_amdhsa_kernel
'''%((168,168))
open(sys.argv[1],'w').write(txt)
```

```python
import sys,struct
from asmlib import Asm
P=dict(DIAG=0,NT=' nt',N0=32,N1=20,N2=20,N3=20,SLEEP=1,PRESPIN=1,WARM=0,PRE3=0,PRE4=0,E3PRE=0,GK=0,GV=0,GM=0,G4=0,G5=0,G6=0,TH=8,N4=12,NV=0,NM=0,ORD=0,SBE=1,ME=0,MK=1,PS=0,PL=0,PW=0,NS=0,NP=0,H=0,NH=8,GP=0,T3=0,T1=0)
for a in sys.argv[2:]:
    k,v=a.split('='); P[k]=v if k=='NT' else int(v)
if P['NT']=='0': P['NT']=''
NAME='adaLN_cond__sliding_block_cached__geglu_ffn__decode'
def f2u(x): return '0x%08x'%struct.unpack('<I',struct.pack('<f',x))[0]
E1,E2,E3O,E3M,M2,E4,E5,E6,WSEND=0x1000,0x21000,0x41000,0x141000,0x149000,0x159000,0x169000,0x177000,0x187000
DG=0x190000
R0,RK,RV,R2,R3,W=0,32768,65536,81920,114688,147456
FL=W; RED0=W+128; RED1=RED0+4096; QL=RED1+4096; SC=QL+2176; X2=QL; LDSZ=SC+2176
F_LAND,F_FR0,F_FR2,C_P1,C_P2,C_Q,C_S,C_M2,C_P4,C_X,C_P5,C_P6,C_O=[FL+4*i for i in range(13)]
G=[0,FL+52,FL+56,FL+60,FL+88]
GU={P[k] for k in ('GK','GV','GM','G4','G5','G6')}
P['NV']=P['NV'] or P['N1']; P['NM']=P['NM'] or P['N1']
a=Asm()
T=['s5','s44','s45','s46']
def v(i,n=1): return f'v{i}' if n==1 else f'v[{i}:{i+n-1}]'
def srd(d,p,n): a(f's_mov_b32 s{d}, s{p}\ns_mov_b32 s{d+1}, s{p+1}\ns_mov_b32 s{d+2}, {n}\ns_mov_b32 s{d+3}, 0x20000')
def stamp(i,ins='s_memrealtime'):
    if P['DIAG']:
        if ins=='cnt': a(f'v_writelane_b32 v126, s49, {i}')
        else: a(f'{ins} s[76:77]\ns_waitcnt lgkmcnt(0)\nv_writelane_b32 v126, s76, {i}')
def flush():
    if P['DIAG']==2:
        L=a.newl(); srd(36,32,256)
        a(f's_cmp_lg_u32 s3, 0\ns_cbranch_scc1 {L}\ns_cmp_lg_u32 s4, 7\ns_cbranch_scc1 {L}\nv_readlane_b32 s78, v126, 29\ns_mov_b64 exec, -1\ns_nop 4\nv_subrev_u32 v126, s78, v126\nv_lshlrev_b32 v127, 1, v1\ns_mov_b32 exec_hi, 0\nbuffer_store_short v126, v127, s[36:39], 0 offen'); a.label(L)
    elif P['DIAG']:
        srd(36,34,DG+0x100000)
        a(f's_mul_i32 s78, s3, 2304\ns_lshl_b32 s79, s4, 8\ns_add_u32 s78, s78, s79\ns_add_u32 s78, s78, {DG}\ns_mov_b64 exec, -1\nv_lshlrev_b32 v127, 2, v1\nbuffer_store_dword v126, v127, s[36:39], s78 offen')
def budget(): a('s_sub_u32 s49, s49, 1\ns_cbranch_scc1 TIMEOUT')
def spin(addr,thr):
    L=a.newl(); a.label(L); budget()
    a(f'ds_read_b32 v14, v15 offset:{addr-FL}\ns_waitcnt lgkmcnt(0)\nv_cmp_gt_i32 vcc, {thr}, v14\ns_cbranch_vccnz {L}')
def arrive(addr):
    a(f's_waitcnt lgkmcnt(0)\ns_mov_b64 exec, 1\nds_add_u32 v15, v162 offset:{addr-FL}\ns_mov_b64 exec, -1')
def landed(c):
    if isinstance(c,int): a(f's_add_u32 s50, s4, {c+1}'); c='s50'
    spin(F_LAND,c)
def chk(regs,fmt,acc='v165'):
    if fmt==0:
        R=[g+i for g in regs for i in range(4)]
        a(f'v_max3_u32 {acc}, v{R[0]}, v{R[1]}, v{R[2]}')
        for i in range(3,len(R)-1,2): a(f'v_max3_u32 {acc}, {acc}, v{R[i]}, v{R[i+1]}')
        a(f'v_max_u32 {acc}, {acc}, v{R[-1]}\nv_cmp_eq_u32 vcc, -1, {acc}'); return
    first=True
    for g in regs:
        if fmt==24: lst=[(g+i,T[i]) for i in range(4)]
        else: lst=[(g+1,T[0]),(g+3,T[0])]
        for r,t in lst:
            if first: a(f'v_xor_b32 {acc}, {t}, v{r}'); first=False
            else: a(f'v_bitop3_b32 {acc}, {acc}, v{r}, {t} bitop3:0xf6')
    if fmt==24: a(f'v_and_b32 {acc}, 0xff, {acc}')
    a(f'v_cmp_ne_u32 vcc, 0, {acc}')
MK='\ns_mov_b64 exec, vcc' if P['MK'] else ''
def poll(loads,fmt,scout=None,plain=True,pre=None):
    D=a.newl()
    def body(ls,pl):
        for g,t in ls: a(t.replace(' sc1','') if pl else t)
        a('s_waitcnt vmcnt(0)'); chk([g for g,t in ls],fmt)
    def again(L):
        budget()
        if P['SLEEP']: a(f's_sleep {P["SLEEP"]}')
        a(f's_branch {L}')
    if pre and P['PS']&pre[0]:
        L=a.newl(); E=a.newl(); Wt=a.newl(); CW=FL+64+4*(pre[0].bit_length()-1); pw=P['PW']&pre[0]
        if pw: a(f's_cmp_lg_u32 s4, 0\ns_cbranch_scc1 {Wt}')
        if P['PL']==2: a(f's_and_b32 s50, s3, {pre[3]|1}\ns_lshl_b64 exec, 1, s50')
        else: a(f's_mov_b64 exec, {hex(1<<(pre[3] if P["PL"] else 0))}')
        a.label(L)
        a(pre[1]+'\ns_waitcnt vmcnt(0)\n'+pre[2]+f'\ns_cbranch_vccz {E}'); again(L); a.label(E)
        if pw: arrive(CW); a.label(Wt); spin(CW,1)
        a(pre[4] if len(pre)>4 else 's_mov_b64 exec, -1')
    if pre and P['NP']&pre[0]: plain=False
    if scout and not P['NS']&pre[0]:
        ex,txt,cmp_=scout
        L=a.newl(); E=a.newl(); a('s_mov_b32 exec_hi, 0' if ex=='LO' else f's_mov_b64 exec, {ex}'); a.label(L)
        a(txt+'\ns_waitcnt vmcnt(0)\n'+cmp_+f'\ns_cbranch_vccz {E}'+MK); again(L); a.label(E); a('s_mov_b64 exec, -1')
    if plain: body(loads,True); a(f's_cbranch_vccz {D}'+MK)
    L=a.newl(); a.label(L); body(loads,False); a(f's_cbranch_vccz {D}'+MK); again(L); a.label(D)
    if P['MK']: a('s_mov_b64 exec, -1')
def sc(va,so): return f'buffer_load_dwordx2 v[124:125], {va}, s[36:39], {so} offen sc1'
TG='v_cmp_ne_u32 vcc, s5, v125'
SN='v_max_u32 v165, v124, v125\nv_cmp_eq_u32 vcc, -1, v165'
def ld(g,va,so,off=0): return (g,f'buffer_load_dwordx4 {v(g,4)}, {va}, s[36:39], {so} offen offset:{off} sc1')
def mask(g,n=4):
    for i in range(n): a(f'v_and_b32 v{g+i}, v7, v{g+i}')
DP=['quad_perm:[1,0,3,2]','quad_perm:[2,3,0,1]','row_half_mirror','row_mirror']
def dppred(regs,steps,op='add'):
    for s_ in steps:
        for r in regs: a(f'v_{op}_f32_dpp v{r}, v{r}, v{r} {DP[s_]} row_mask:0xf bank_mask:0xf')
def swapred(regs,tmp,op='add',which=(16,32)):
    for w_ in which:
        for i,r in enumerate(regs): a(f'v_mov_b32 v{tmp+i}, v{r}')
        for i,r in enumerate(regs): a(f'v_permlane{w_}_swap_b32 v{r}, v{tmp+i}')
        for i,r in enumerate(regs): a(f'v_{op}_f32 v{r}, v{r}, v{tmp+i}')
def rnd(regs,tmp):
    for i in range(0,len(regs),2): a(f'v_cvt_pk_bf16_f32 v{tmp+i//2}, v{regs[i]}, v{regs[i+1]}')
    for i in range(0,len(regs),2): a(f'v_lshlrev_b32 v{regs[i]}, 16, v{tmp+i//2}\nv_and_b32 v{regs[i+1]}, s48, v{tmp+i//2}')
def rnd1(r): a(f'v_cvt_pk_bf16_f32 v{r}, v{r}, v{r}\nv_and_b32 v{r}, s48, v{r}')
def dup(dst,src):
    for i in range(4): a(f'v_cvt_pk_bf16_f32 v{dst+i}, v{src+i}, v{src+i}')
def unpk(dst,src,n):
    for i in reversed(range(n)): a(f'v_and_b32 v{dst+2*i+1}, s48, v{src+i}\nv_lshlrev_b32 v{dst+2*i}, 16, v{src+i}')
def gemv(hh,wt,first=True):
    for t in range(4):
        A=48+4*(t&1)
        for q in range(4): a(f'v_and_b32 v{A+q}, v{hh+t}, v{3+q}')
        a(f'v_mfma_f32_16x16x32_bf16 v[44:47], {v(A,4)}, {v(wt+4*t,4)}, {"0" if first and t==0 else "v[44:47]"}')
def rdw(dst,base):
    for t in range(4): a(f'ds_read_b128 {v(dst+4*t,4)}, v12 offset:{1024*t}')
def reduce(buf,cnt,n,form,skip,mid=None,ns=8):
    a(f's_mov_b64 exec, s[52:53]\nds_write_b128 v8, v[44:47] offset:{buf-RED0}')
    if mid: a.label(mid)
    a(f'''s_waitcnt lgkmcnt(0)
    s_mov_b64 exec, 1
    ds_add_rtn_u32 v14, v15, v162 offset:{cnt-FL}
    s_mov_b64 exec, -1
    s_waitcnt lgkmcnt(0)
    v_readfirstlane_b32 s50, v14
    s_cmp_lg_u32 s50, {n-1}
    s_cbranch_scc1 {skip}''')
    if form=='A':
        a(f'v_lshlrev_b32 v12, 2, v1\nv_add_u32 v12, {buf}, v12')
        for i in range(ns): a(f'ds_read2st64_b32 {v(96+2*i,2)}, v12 offset0:{2*i} offset1:{2*i+1}')
        a('s_waitcnt lgkmcnt(0)')
        m=2*ns
        while m>2:
            m//=2
            for i in range(0,m,2): a(f'v_pk_add_f32 {v(96+i,2)}, {v(96+i,2)}, {v(96+m+i,2)}')
        a('v_add_f32 v44, v96, v97\nv_mov_b32 v45, s5\nv_mov_b32 v47, s5\nv_lshlrev_b32 v12, 3, v1\nv_mov_b32_dpp v46, v44 quad_perm:[1,0,3,2] row_mask:0xf bank_mask:0xf')
    else:
        for k in range(4): a(f'ds_read_b128 {v(96+4*k,4)}, v10 offset:{buf-RED0+256*k}')
        a('s_waitcnt lgkmcnt(0)')
        a('v_pk_add_f32 v[96:97], v[96:97], v[100:101]\nv_pk_add_f32 v[98:99], v[98:99], v[102:103]')
        a('v_pk_add_f32 v[104:105], v[104:105], v[108:109]\nv_pk_add_f32 v[106:107], v[106:107], v[110:111]')
        a('v_pk_add_f32 v[44:45], v[96:97], v[104:105]\nv_pk_add_f32 v[46:47], v[98:99], v[106:107]')
        swapred([44,45,46,47],96)
def pub24(g,va,so,ex,n=4):
    a(f's_mov_b64 exec, {ex}\nbuffer_store_dwordx{n} {v(g,n)}, {va}, s[36:39], {so} offen sc1\ns_mov_b64 exec, -1')
def stats(X):
    a(f'v_pk_add_f32 v[56:57], {v(X,2)}, {v(X+2,2)}\nv_pk_add_f32 v[58:59], {v(X+4,2)}, {v(X+6,2)}')
    a(f'v_pk_add_f32 v[56:57], v[56:57], {v(X+8,2)}\nv_pk_add_f32 v[58:59], v[58:59], {v(X+10,2)}')
    a(f'v_pk_add_f32 v[56:57], v[56:57], {v(X+12,2)}\nv_pk_add_f32 v[58:59], v[58:59], {v(X+14,2)}')
    a('v_pk_add_f32 v[56:57], v[56:57], v[58:59]\nv_add_f32 v60, v56, v57')
    dppred([60],[0,1,2,3]); swapred([60],62)
    a(f'v_mul_f32 v60, {f2u(-1/1024)}, v60')
    for i in range(0,16,2): a(f'v_pk_add_f32 {v(X+i,2)}, {v(X+i,2)}, v[60:61] op_sel_hi:[1,0]')
    a(f'v_pk_mul_f32 v[56:57], {v(X,2)}, {v(X,2)}\nv_pk_mul_f32 v[58:59], {v(X+2,2)}, {v(X+2,2)}')
    for i in range(4,16,2): a(f'v_pk_fma_f32 {v(56+(i&2),2)}, {v(X+i,2)}, {v(X+i,2)}, {v(56+(i&2),2)}')
    a('v_pk_add_f32 v[56:57], v[56:57], v[58:59]\nv_add_f32 v61, v56, v57')
    dppred([61],[0,1,2,3]); swapred([61],62)
    a(f'v_mul_f32 v61, {f2u(1/1024)}, v61\nv_sub_f32 v60, 0, v60')
    rnd([60,61],62); a(f'v_add_f32 v61, {f2u(1e-5)}, v61'); rnd1(61); a('v_sqrt_f32 v61, v61'); rnd1(61); a('v_rcp_f32 v61, v61')
def norm(X,n,tmp):
    R=list(range(X,X+n))
    for r in R: a(f'v_sub_f32 v{r}, v{r}, v60')
    rnd(R,tmp)
    for r in R: a(f'v_mul_f32 v{r}, v{r}, v61')
    rnd(R,tmp)
def sigm(X,Y,n):
    for i in range(n): a(f'v_exp_f32 v{Y+i}, v{Y+i}')
    for i in range(n): a(f'v_add_f32 v{Y+i}, 1.0, v{Y+i}')
    for i in range(n): a(f'v_rcp_f32 v{Y+i}, v{Y+i}')
    for i in range(n): a(f'v_mul_f32 v{X+i}, v{X+i}, v{Y+i}')
def silu(dst,src):
    unpk(56,src,2)
    for i in range(4): a(f'v_mul_f32 v{60+i}, {f2u(-1.4426950408889634)}, v{56+i}')
    sigm(56,60,4); dup(dst,56)

a('''s_cmp_ge_u32 s2, 256
s_cbranch_scc1 EXIT
s_load_dwordx16 s[8:23], s[0:1], 0
s_load_dwordx8 s[24:31], s[0:1], 64
s_load_dwordx4 s[32:35], s[0:1], 96
v_lshrrev_b32 v2, 6, v0
v_and_b32 v1, 63, v0
s_and_b32 s3, s2, 7
s_lshl_b32 s3, s3, 5
s_lshr_b32 s6, s2, 3
s_add_u32 s3, s3, s6
v_readfirstlane_b32 s4, v2
v_lshrrev_b32 v2, 3, v1
v_and_b32 v9, 7, v1
v_lshlrev_b32 v9, 4, v9
s_mov_b32 s49, 0x200000
s_and_b32 s54, s3, 63
s_lshr_b32 s55, s3, 6
s_and_b32 s56, s3, 15
s_lshr_b32 s57, s3, 4
s_cmp_ge_u32 s3, 112
s_cselect_b32 s58, 1, 0
s_mul_i32 s6, s58, 112
s_sub_u32 s60, s3, s6
s_cmp_ge_u32 s60, 56
s_cselect_b32 s59, 1, 0
s_mul_i32 s6, s59, 56
s_sub_u32 s60, s60, s6
v_mov_b32 v15, %d
v_mov_b32 v162, 1
v_mov_b32 v126, 0
v_mov_b32 v14, 0
v_lshl_add_u32 v12, v1, 2, v15
s_mov_b32 exec_hi, 0
ds_write_b32 v12, v14
s_mov_b64 exec, -1
s_waitcnt lgkmcnt(0)
s_cmp_eq_u32 s4, 8
s_cbranch_scc1 LOADER'''%FL)
stamp(29)
a('''s_lshl_b32 s61, s4, 5
s_lshr_b32 s6, s3, 5
s_lshl_b32 s6, s6, 7
s_add_u32 s62, s6, s61
s_lshl_b32 s6, s55, 8
s_add_u32 s63, s6, s61
v_mul_u32_u24 v12, 49152, v2
v_add_u32 v12, v12, v9
s_mul_i32 s64, s62, 12288
s_and_b32 s6, s3, 31
s_lshl_b32 s6, s6, 7
s_add_u32 s64, s64, s6
v_lshlrev_b32 v13, 3, v2
v_lshlrev_b32 v14, 5, v1
s_lshl_b32 s65, s62, 1
s_lshl_b32 s66, s63, 1
s_load_dword s5, s[34:35], 0''')
srd(40,28,12582912)
a('s_cmp_ge_u32 s4, 4\ns_cbranch_scc1 CLEAR')
for t in range(4): a(f'buffer_load_dwordx4 {v(64+4*t,4)}, v12, s[40:43], s64 offen{P["NT"]}\ns_add_u32 s64, s64, 12288')
a.label('NOP1LD')
srd(40,26,2048)
a('buffer_load_dwordx2 v[20:21], v13, s[40:43], s65 offen\nbuffer_load_dwordx2 v[22:23], v13, s[40:43], s66 offen')
srd(40,8,2048)
a('''buffer_load_dwordx2 v[24:25], v13, s[40:43], s66 offen
buffer_load_dwordx4 v[136:139], v14, s[40:43], 0 offen
buffer_load_dwordx4 v[140:143], v14, s[40:43], 0 offen offset:16
v_and_b32 v12, 15, v1
v_lshlrev_b32 v12, 4, v12
v_bfe_u32 v14, v1, 4, 1
v_lshl_add_u32 v12, v14, 3, v12
s_lshl_b32 s6, s4, 8
buffer_load_dwordx2 v[156:157], v12, s[40:43], s6 offen''')
srd(36,34,WSEND if not P['DIAG'] else DG+0x100000)
a(f'''s_barrier
s_mov_b32 s48, 0xffff0000
s_mov_b32 s82, 0x55555555
s_mov_b32 s83, s82
v_and_b32 v12, 1, v1
v_cmp_eq_u32 vcc, 1, v12
v_mov_b32 v13, 0xffff
v_mov_b32 v14, s48
v_cndmask_b32 v13, v13, v14, vcc
v_bfe_u32 v12, v1, 1, 2''')
for q in range(4): a(f'v_cmp_eq_u32 vcc, {q}, v12\nv_cndmask_b32 v{3+q}, 0, v13, vcc')
a(f'''v_lshrrev_b32 v12, 5, v1
v_lshlrev_b32 v8, 8, v12
v_lshl_add_u32 v8, v9, 1, v8
v_and_b32 v12, 16, v1
v_add_u32 v8, v8, v12
s_lshl_b32 s6, s4, 9
s_add_u32 s6, s6, {RED0}
v_add_u32 v8, s6, v8
v_and_b32 v163, 15, v1
v_lshlrev_b32 v163, 4, v163
v_lshrrev_b32 v164, 4, v1
v_lshl_add_u32 v10, v164, 10, v163
v_add_u32 v10, {RED0}, v10
s_lshl_b32 s6, s4, 12
v_lshlrev_b32 v11, 4, v1
v_add_u32 v11, s6, v11
s_mov_b32 s52, 0x00ff00ff
s_mov_b32 s53, 0xff00ff00
s_waitcnt lgkmcnt(0)
s_add_u32 s5, s5, 1
''')
for q in range(4): a(f'v_and_b32 v{156+2+q}, 0x3f803f80, v{3+q}')
stamp(0); stamp(30,'s_memtime')
a('s_cmp_ge_u32 s4, 4\ns_cbranch_scc1 CLRW\ns_waitcnt vmcnt(5)')
silu(16,20)
stamp(1)
gemv(16,64)
reduce(RED0,C_P1,8,'A','P1DONE','P1MID',4)
a(f'''s_and_b32 s6, s3, 31
s_lshl_b32 s6, s6, 12
s_lshr_b32 s7, s3, 5
s_lshl_b32 s7, s7, 9
s_add_u32 s6, s6, s7
s_add_u32 s6, s6, {E1}
s_mov_b64 exec, s[82:83]
buffer_store_dwordx4 v[44:47], v12, s[36:39], s6 offen sc1
s_mov_b64 exec, -1''')
stamp(2)
a.label('P1DONE')
a('s_waitcnt vmcnt(1)')
silu(20,22)
unpk(104,136,8); unpk(16,24,2)
stats(104); norm(16,4,56)
landed(0); a(f'v_add_u32 v12, {R0}, v11'); rdw(64,0); arrive(F_FR0)
a(f'''s_lshr_b32 s6, s63, 6
s_lshl_b32 s6, s6, 12
s_and_b32 s7, s63, 63
s_lshl_b32 s7, s7, 3
s_add_u32 s6, s6, s7
s_add_u32 s6, s6, {E1}
s_add_u32 s7, s6, 65536
v_lshlrev_b32 v12, 5, v9
v_lshl_add_u32 v12, v2, 5, v12''')
stamp(3); stamp(21,'cnt')
a('v_lshlrev_b32 v13, 5, v9\nv_lshl_add_u32 v13, v2, 16, v13')
poll([ld(96,'v12','s6'),ld(100,'v12','s6',16),ld(104,'v12','s7'),ld(108,'v12','s7',16)],8,('0xffff',sc('v13','s6'),TG),pre=(1,sc('v13','s6'),TG,15))
stamp(4); stamp(22,'cnt')
if 1 in GU: arrive(G[1])
sa=[96,98,100,102]; ca=[104,106,108,110]
dppred(sa+ca,[0,1,2]); rnd(sa+ca,56)
for r in ca: a(f'v_add_f32 v{r}, 1.0, v{r}')
rnd(ca,56)
for i in range(4): a(f'v_mul_f32 v{16+i}, v{16+i}, v{ca[i]}')
rnd([16,17,18,19],56)
for i in range(4): a(f'v_add_f32 v{16+i}, v{16+i}, v{sa[i]}')
dup(56,16); gemv(56,64)
reduce(RED1,C_P2,8,'A','P2DONE')
a(f'''s_lshl_b32 s6, s54, 11
s_lshl_b32 s7, s55, 9
s_add_u32 s6, s6, s7
s_add_u32 s6, s6, {E2}
s_mov_b64 exec, s[82:83]
buffer_store_dwordx4 v[44:47], v12, s[36:39], s6 offen sc1
s_mov_b64 exec, -1''')
stamp(5)
a.label('P2DONE')
def m2blk():
    if P['ME']: spin(F_FR0,8); a(f'v_subrev_u32 v8, {RED0-R0}, v8\nv_subrev_u32 v10, {RED0-R0}, v10')
    landed(8 if P['ORD'] else 16); a(f'v_add_u32 v12, {R2}, v11'); rdw(64,0); arrive(F_FR2); gemv(20,64)
    reduce(RED0,C_M2,8,'B','M2DONE')
    a(f's_lshl_b32 s6, s55, 14\ns_lshl_b32 s7, s54, 8\ns_add_u32 s6, s6, s7\ns_add_u32 s6, s6, {M2}')
    pub24(44,'v163','s6','0xffff')
    a.label('M2DONE')
    if P['ME']: a(f'v_add_u32 v8, {RED0-R0}, v8\nv_add_u32 v10, {RED0-R0}, v10')
if P['ME']:
    assert P['ORD'] and P['G5']==3
    m2blk()
a('s_cmp_ge_u32 s4, 4\ns_cbranch_scc1 NOK')
landed(16 if P['ORD'] else 8)
a(f'''v_and_b32 v13, 15, v1
v_xor_b32 v12, v164, v13
v_lshlrev_b32 v12, 4, v12
v_lshl_add_u32 v12, v13, 8, v12
s_lshl_b32 s6, s4, 12
s_add_u32 s6, s6, {RK}
v_add_u32 v12, s6, v12''')
for s_ in range(4): a(f'v_xor_b32 v13, {64*s_}, v12\nds_read_b128 {v(136+4*s_,4)}, v13')
arrive(F_FR0)
a.label('NOK')
a(f's_mov_b32 s50, {24 if P["ORD"] else 16}'); landed('s50')
a(f'''v_bfe_u32 v12, v1, 2, 2
v_lshl_add_u32 v13, v164, 3, v12
v_and_b32 v14, 15, v13
v_bfe_u32 v12, v1, 1, 1
s_lshl_b32 s6, s4, 1
v_add_u32 v12, s6, v12
v_xor_b32 v12, v12, v14
v_lshlrev_b32 v12, 4, v12
v_lshl_add_u32 v12, v13, 8, v12
v_and_b32 v13, 1, v1
v_lshl_add_u32 v12, v13, 3, v12
v_add_u32 v12, {RV}, v12
v_xor_b32 v13, 64, v12
ds_read_b64_tr_b16 v[128:129], v12
ds_read_b64_tr_b16 v[130:131], v13 offset:1024
ds_read_b64_tr_b16 v[132:133], v12 offset:8192
ds_read_b64_tr_b16 v[134:135], v13 offset:9216
s_lshl_b32 s6, s55, 15
s_lshl_b32 s7, s4, 12
s_add_u32 s6, s6, s7
s_add_u32 s6, s6, {E2}
v_and_b32 v13, 31, v1
v_lshlrev_b32 v13, 4, v13
v_lshrrev_b32 v12, 5, v1
v_lshl_add_u32 v12, v12, 11, v13''')
stamp(6); stamp(23,'cnt')
a('v_lshlrev_b32 v13, 9, v1')
poll([ld(96+4*k,'v12','s6',512*k) for k in range(4)],8,('0xff',sc('v13','s6'),TG),pre=(2,sc('v13','s6'),TG,7))
stamp(7); stamp(24,'cnt')
if 2 in GU: arrive(G[2])
a(f'''v_add_f32 v96, v96, v100
v_add_f32 v98, v98, v102
v_add_f32 v104, v104, v108
v_add_f32 v106, v106, v110
v_add_f32 v96, v96, v104
v_add_f32 v98, v98, v106
s_mul_i32 s6, s4, 272
s_add_u32 s6, s6, {QL}
v_lshl_add_u32 v12, v1, 2, s6
v_cvt_pk_bf16_f32 v96, v96, v98
ds_write_b32 v12, v96''')
arrive(C_Q)
a(f'''v_and_b32 v13, 7, v1
v_mul_u32_u24 v13, 272, v13
s_cmp_ge_u32 s4, 4
s_cbranch_scc1 NOQK
v_lshl_add_u32 v12, v164, 4, v13
v_add_u32 v12, {QL}, v12''')
spin(C_Q,8)
for s_ in range(4): a(f'ds_read_b128 {v(96+4*s_,4)}, v12 offset:{64*s_}')
for s_ in range(4): a(f's_waitcnt lgkmcnt({3-s_})\nv_mfma_f32_16x16x32_bf16 v[44:47], {v(136+4*s_,4)}, {v(96+4*s_,4)}, {"0" if s_==0 else "v[44:47]"}')
a(f's_lshl_b32 s6, s4, 6\ns_add_u32 s6, s6, {SC-QL}\nv_add_u32 v12, s6, v12')
rnd([44,45,46,47],56)
for i in range(4): a(f'v_mul_f32 v{44+i}, 0x3db504f3, v{44+i}')
rnd([44,45,46,47],56)
a('s_mov_b32 exec_lo, s52\ns_mov_b32 exec_hi, s52\nds_write_b128 v12, v[44:47]\ns_mov_b64 exec, -1')
arrive(C_S)
a.label('NOQK')
a(f'v_lshl_add_u32 v12, v164, 5, v13\nv_add_u32 v12, {SC}, v12')
spin(C_S,4)
for i,o in enumerate([0,16,128,144]): a(f'ds_read_b128 {v(96+4*i,4)}, v12 offset:{o}')
a('s_waitcnt lgkmcnt(0)\nv_max3_f32 v56, v96, v97, v98')
for i in range(99,111,2): a(f'v_max3_f32 v56, v56, v{i}, v{i+1}')
a('v_max_f32 v56, v56, v111'); swapred([56],58,'max')
a(f'v_mul_f32 v57, {f2u(-1.4426950408889634)}, v56\ns_mov_b32 s6, 0x3fb8aa3b')
for i in range(96,112): a(f'v_fma_f32 v{i}, v{i}, s6, v57')
for i in range(96,112): a(f'v_exp_f32 v{i}, v{i}')
for i in range(8): a(f'v_cvt_pk_bf16_f32 v{112+i}, v{96+2*i}, v{97+2*i}')
a('v_mfma_f32_16x16x32_bf16 v[44:47], v[128:131], v[112:115], 0\nv_mfma_f32_16x16x32_bf16 v[44:47], v[132:135], v[116:119], v[44:47]')
a(f'''s_lshl_b32 s6, s55, 17
s_lshl_b32 s7, s54, 7
s_add_u32 s6, s6, s7
s_lshr_b32 s7, s4, 2
s_lshl_b32 s7, s7, 13
s_add_u32 s6, s6, s7
s_and_b32 s7, s4, 3
s_lshl_b32 s7, s7, 5
s_add_u32 s6, s6, s7
s_add_u32 s6, s6, {E3O}
v_lshlrev_b32 v12, 10, v9
v_lshl_add_u32 v12, v164, 3, v12
s_mov_b32 s50, 0xff
s_mov_b32 s51, 0xff
v_cvt_pk_bf16_f32 v44, v44, v45
v_cvt_pk_bf16_f32 v45, v46, v47
v_mov_b32 v46, v44
v_mov_b32 v47, v45
v_permlane16_swap_b32 v44, v46
v_permlane16_swap_b32 v45, v47''')
pub24(44,'v12','s6','s[50:51]')
a('s_cmp_lg_u32 s4, 0\ns_cbranch_scc1 NOML')
for m in (8,4,2):
    for i in range(0,m,2): a(f'v_pk_add_f32 {v(96+i,2)}, {v(96+i,2)}, {v(96+m+i,2)}')
a('v_add_f32 v57, v96, v97'); swapred([57],58)
a(f'''s_lshl_b32 s6, s55, 12
s_lshl_b32 s7, s54, 3
s_add_u32 s6, s6, s7
s_add_u32 s6, s6, {E3M}
v_lshlrev_b32 v12, 9, v1''')
pub24(56,'v12','s6','0xff',2)
a.label('NOML')
stamp(8)
if not P['ME']: m2blk()
stamp(9)
def e4addr(): a(f's_lshr_b32 s6, s56, 1\ns_lshl_b32 s6, s6, 12\ns_lshl_b32 s7, s57, 8\ns_add_u32 s6, s6, s7\ns_and_b32 s7, s56, 1\ns_lshl_b32 s7, s7, 7\ns_add_u32 s6, s6, s7\ns_add_u32 s64, s6, {E4}\ns_mov_b32 s6, s64')
def e5addr(): a(f's_lshl_b32 s6, s59, 1\ns_add_u32 s6, s6, s58\ns_mul_i32 s6, s6, 14336\ns_lshl_b32 s7, s60, 8\ns_add_u32 s6, s6, s7\ns_add_u32 s6, s6, {E5}')
R8='row_ror:8 row_mask:0xf bank_mask:0xf'
landed(24); a(f'v_add_u32 v12, {R3}, v11'); rdw(64,0)
e4addr()
a(f'''s_and_b32 s6, s4, 3
s_lshl_b32 s7, s57, 2
s_add_u32 s6, s6, s7
s_lshr_b32 s7, s6, 1
s_lshl_b32 s7, s7, 9
s_add_u32 s72, s7, {E3M}
s_lshr_b32 s7, s4, 2
v_and_b32 v13, 1, v1
v_xor_b32 v13, s7, v13
v_lshlrev_b32 v13, 8, v13
v_lshl_add_u32 v13, v2, 5, v13
s_lshl_b32 s6, s6, 1
s_add_u32 s6, s6, s7
s_lshl_b32 s6, s6, 12
s_add_u32 s65, s6, {E3O}
v_lshl_add_u32 v12, v2, 9, v9
s_lshr_b32 s6, s4, 1
s_lshl_b32 s6, s6, 9
s_and_b32 s7, s4, 1
s_lshl_b32 s7, s7, 7
s_add_u32 s6, s6, s7
s_add_u32 s6, s6, {RED1}
v_lshl_add_u32 v166, v2, 4, s6
s_lshl_b32 s66, s56, 8
s_add_u32 s66, s66, {M2}
v_lshl_add_u32 v167, v164, 14, v163''')
a('v_lshlrev_b32 v123, 3, v1')
a(f'''s_lshl_b32 s62, s58, 9
s_lshl_b32 s6, s4, 6
s_add_u32 s62, s62, s6
s_lshl_b32 s62, s62, 2
s_add_u32 s67, s62, {M2+4096}
v_and_b32 v36, 3, v1
v_lshlrev_b32 v36, 14, v36
v_bfe_u32 v37, v1, 2, 1
v_lshl_add_u32 v36, v37, 12, v36
v_lshl_add_u32 v36, v2, 4, v36''')
SB=[ld(28,'v36','s67'),ld(32,'v36','s67',128)]
GA=ld(24,'v167','s66')
stamp(10); stamp(25,'cnt')
poll([ld(96+4*t,'v12','s65',128*t) for t in range(4)]+[ld(112,'v13','s72'),ld(116,'v13','s72',16)]+([GA]+SB if P['GP']==2 else []),0,('-1',sc('v123','s72'),SN),pre=(4,sc('v12','s65'),SN,30))
stamp(11); stamp(26,'cnt')
if 3 in GU and P['GP']!=1: arrive(G[3])
if P['GP']!=2: a(GA[1].replace(' sc1',''))
if P['SBE'] and P['GP']!=2:
    for g,t in SB: a(t.replace(' sc1',''))
if 3 in GU and P['GP']==1: arrive(G[3])
a(f'v_max3_f32 v58, v112, v114, v116\nv_max_f32 v58, v58, v118'); dppred([58],[0],'max'); a(f'v_max_f32_dpp v58, v58, v58 {R8}'); swapred([58],59,'max')
a(f'v_mul_f32 v58, {f2u(-1.4426950408889634)}, v58\ns_mov_b32 s6, 0x3fb8aa3b')
for t in range(4): a(f'v_fma_f32 v{60+t}, v{112+2*t}, s6, v58')
for t in range(4): a(f'v_exp_f32 v{60+t}, v{60+t}')
dup(60,60)
for t in range(4): a(f'v_mov_b32_dpp v{56+t}, v{60+t} quad_perm:[0,0,2,2] row_mask:0xf bank_mask:0xf')
gemv(56,96)
for t in range(4): a(f'v_and_b32 v{60+t}, s48, v{60+t}')
a('v_mul_f32 v57, v60, v113\nv_fmac_f32 v57, v61, v115\nv_fmac_f32 v57, v62, v117\nv_fmac_f32 v57, v63, v119')
dppred([57],[0]); a(f'v_add_f32_dpp v57, v57, v57 {R8}'); swapred([57],59); a('v_rcp_f32 v57, v57')
for i in range(4): a(f'v_mul_f32 v{44+i}, v{44+i}, v57')
a(f's_mov_b64 exec, s[52:53]\nds_write_b128 v8, v[44:47] offset:{RED1-RED0}'); arrive(C_O); spin(C_O,8)
for i,o in enumerate([0,256,2048,2304]): a(f'ds_read_b128 {v(96+4*i,4)}, v166 offset:{o}')
a('''s_waitcnt lgkmcnt(2)
v_pk_add_f32 v[96:97], v[96:97], v[100:101]
v_pk_add_f32 v[98:99], v[98:99], v[102:103]
s_waitcnt lgkmcnt(0)
v_pk_add_f32 v[104:105], v[104:105], v[108:109]
v_pk_add_f32 v[106:107], v[106:107], v[110:111]
v_pk_add_f32 v[96:97], v[96:97], v[104:105]
v_pk_add_f32 v[98:99], v[98:99], v[106:107]''')
dup(56,96); gemv(56,64)
a('s_waitcnt vmcnt(%d)'%(2 if P['SBE'] else 0)); chk([24],0); a('s_cbranch_vccz GADONE'); poll([GA],0,plain=False); a.label('GADONE')
swapred([24,25,26,27],96); rnd([24,25,26,27],96)
reduce(RED0,C_P4,8,'B','P4DONE')
a('''v_pk_mul_f32 v[44:45], v[44:45], v[24:25]
v_pk_mul_f32 v[46:47], v[46:47], v[26:27]
v_lshrrev_b32 v12, 1, v163
v_cvt_pk_bf16_f32 v44, v44, v45
v_cvt_pk_bf16_f32 v45, v46, v47
v_mov_b32_dpp v46, v44 quad_perm:[1,0,3,2] row_mask:0xf bank_mask:0xf
v_mov_b32_dpp v47, v45 quad_perm:[1,0,3,2] row_mask:0xf bank_mask:0xf''')
if P['SBE']: a('s_waitcnt vmcnt(0)')
pub24(44,'v12','s64','0x5555')
stamp(12)
if P['SBE']: a('s_branch P4DONE2')
a.label('P4DONE')
if P['SBE']: a('s_waitcnt vmcnt(0)'); a.label('P4DONE2')
a(f'''s_cmp_ge_u32 s3, 224
s_cbranch_scc1 P5DONE
v_bfe_u32 v13, v1, 2, 1''')
if P['SBE']: chk([28,32],0); a('s_cbranch_vccz SBDONE')
poll(SB,0,plain=not P['SBE']); a.label('SBDONE')
unpk(152,156,2); dppred(list(range(28,36)),[0,1]); rnd(list(range(28,36)),56)
a('v_cmp_eq_u32 vcc, 1, v13')
for i in range(8): a(f'v_mov_b32_dpp v{96+i}, v{28+i} row_half_mirror row_mask:0xf bank_mask:0xf')
for i in range(8): a(f'v_cndmask_b32 v{36+i}, v{28+i}, v{96+i}, vcc\nv_cndmask_b32 v{28+i}, v{96+i}, v{28+i}, vcc')
for i in range(8): a(f'v_add_f32 v{28+i}, 1.0, v{28+i}')
rnd(list(range(28,36)),56)
e5addr()
a(f'''s_mov_b32 s64, s6
s_lshl_b32 s6, s4, 9
s_add_u32 s6, s6, {X2}
v_lshl_add_u32 v166, v163, 1, s6
v_lshl_add_u32 v166, v164, 4, v166
s_add_u32 s6, s62, {X2}
v_lshl_add_u32 v13, v2, 4, s6
v_lshlrev_b32 v12, 4, v1
v_add_u32 v167, {X2}, v12
s_lshl_b32 s51, s4, 1
s_add_u32 s51, s51, 34
s_lshl_b32 s6, s4, 12
v_add_u32 v16, s6, v11
s_add_u32 s6, s6, {E4}
ds_read_b32 v14, v15
s_waitcnt lgkmcnt(0)
v_cmp_gt_i32 vcc, s51, v14
s_mov_b32 s65, 0
s_cbranch_vccnz NOEARLY
s_mov_b32 s65, 1''')
for t in range(8): a(f'ds_read_b128 {v(64+4*t,4)}, v16 offset:{1024*t}')
a.label('NOEARLY')
a('v_lshlrev_b32 v123, 7, v1')
stamp(13); stamp(27,'cnt')
poll([ld(96+4*n,'v12','s6',1024*n) for n in range(4)],0,('LO',sc('v123','s6'),SN),pre=(8,sc('v123','s6'),SN,30))
stamp(14); stamp(28,'cnt')
if 4 in GU: arrive(G[4])
for n in range(4): a(f'v_mfma_f32_16x16x32_bf16 v[44:47], v[158:161], {v(96+4*n,4)}, {"v[152:155]" if n==0 else "v[44:47]"}')
a('s_mov_b32 exec_hi, 0\nds_write_b128 v166, v[44:47]')
arrive(C_X); spin(C_X,8)
a('ds_read_b32 v60, v15 offset:%d'%(X2-FL))
for i in range(4): a(f'ds_read_b128 {v(96+4*i,4)}, v167 offset:{1024*i}')
a('ds_read_b128 v[112:115], v13\nds_read_b128 v[116:119], v13 offset:128\ns_waitcnt lgkmcnt(5)')
for i in range(0,16,2):
    if i in (4,8,12): a(f's_waitcnt lgkmcnt({5-i//4})')
    a(f'v_pk_add_f32 {v(96+i,2)}, {v(96+i,2)}, v[60:61] op_sel_hi:[1,0] neg_lo:[0,1] neg_hi:[0,1]')
a('v_pk_add_f32 v[56:57], v[96:97], v[98:99]\nv_pk_mul_f32 v[58:59], v[96:97], v[96:97]\nv_pk_fma_f32 v[58:59], v[98:99], v[98:99], v[58:59]')
for i in range(4,16,2): a(f'v_pk_add_f32 v[56:57], v[56:57], {v(96+i,2)}\nv_pk_fma_f32 v[58:59], {v(96+i,2)}, {v(96+i,2)}, v[58:59]')
a('v_add_f32 v56, v56, v57\nv_add_f32 v57, v58, v59')
dppred([56,57],[0,1,2,3]); swapred([56,57],58)
a(f'''v_mul_f32 v56, {f2u(1/1024)}, v56
v_mul_f32 v57, {f2u(1/1024)}, v57
v_fma_f32 v57, -v56, v56, v57
v_add_f32 v60, v60, v56
v_add_f32 v57, {f2u(1e-5)}, v57
v_rsq_f32 v58, v57
s_waitcnt lgkmcnt(0)''')
for i in range(0,8,2): a(f'v_pk_add_f32 {v(112+i,2)}, {v(112+i,2)}, v[60:61] op_sel_hi:[1,0] neg_lo:[0,1] neg_hi:[0,1]')
for i in range(0,8,2): a(f'v_pk_mul_f32 {v(28+i,2)}, {v(28+i,2)}, v[58:59] op_sel_hi:[1,0]')
for i in range(0,8,2): a(f'v_pk_fma_f32 {v(112+i,2)}, {v(112+i,2)}, {v(28+i,2)}, {v(36+i,2)}')
dup(56,112); dup(60,116)
a('s_cmp_eq_u32 s65, 1\ns_cbranch_scc1 EARLY'); landed('s51')
for t in range(8): a(f'ds_read_b128 {v(64+4*t,4)}, v16 offset:{1024*t}')
a('s_waitcnt lgkmcnt(0)')
a.label('EARLY')
stamp(15)
gemv(56,64); gemv(60,80,False)
reduce(RED0,C_P5,8,'B','P5DONE')
pub24(44,'v163','s64','0xffff')
stamp(16)
a.label('P5DONE')
a(f'v_subrev_u32 v8, {RED0-RV}, v8\nv_subrev_u32 v10, {RED0-RV}, v10')
a('v_mov_b32 v44, 0\nv_mov_b32 v45, 0\nv_mov_b32 v46, 0\nv_mov_b32 v47, 0\ns_cmp_eq_u32 s4, 7\ns_cbranch_scc1 P6RED')
landed(48); a(f'v_add_u32 v12, {R2}, v11'); rdw(64,0)
a(f'''s_mul_i32 s6, s57, 896
s_lshl_b32 s7, s4, 7
s_add_u32 s6, s6, s7
s_add_u32 s6, s6, {E5}
v_and_b32 v13, 3, v2
v_mul_u32_u24 v12, 14336, v13
v_add_u32 v12, v12, v9
v_lshlrev_b32 v13, 2, v2
s_mov_b32 exec_hi, 0''')
stamp(17)
poll([ld(96,'v12','s6')],0,plain=False,pre=(16,sc('v12','s6'),SN,30,'s_mov_b32 exec_lo, -1'))
a('s_mov_b64 exec, -1')
stamp(18)
for i in range(4): a(f'v_add_f32_dpp v{104+i}, v{96+i}, v{96+i} {R8}')
for i in range(4): a(f'v_mov_b32 v{108+i}, v{104+i}')
for i in range(4): a(f'v_permlane16_swap_b32 v{104+i}, v{108+i}')
c1=2*0.7978845608028654*1.4426950408889634
a(f's_mov_b32 s6, {f2u(-c1*0.044715)}\nv_mov_b32 v100, {f2u(-c1)}')
for i in range(4): a(f'v_mul_f32 v{96+i}, v{104+i}, v{104+i}')
for i in range(4): a(f'v_fma_f32 v{96+i}, v{96+i}, s6, v100')
for i in range(4): a(f'v_mul_f32 v{96+i}, v{96+i}, v{104+i}')
sigm(104,96,4)
for i in range(4): a(f'v_mul_f32 v{104+i}, v{104+i}, v{108+i}')
dup(60,104)
for i in range(4): a(f'ds_bpermute_b32 v{56+i}, v13, v{60+i}')
a('s_waitcnt lgkmcnt(0)'); gemv(56,64)
a.label('P6RED')
reduce(RED0,C_P6,8,'B','P6DONE')
a(f's_lshl_b32 s6, s57, 12\ns_lshl_b32 s7, s56, 8\ns_add_u32 s6, s6, s7\ns_add_u32 s6, s6, {E6}')
pub24(44,'v163','s6','0xffff')
stamp(19)
a.label('P6DONE')
a(f'''s_cmp_lg_u32 s4, 7
s_cbranch_scc1 TIMEOUT
s_cmp_ge_u32 s3, 64
s_cbranch_scc1 TIMEOUT
s_lshl_b32 s62, s3, 6
s_add_u32 s6, s62, {M2+12288}
v_and_b32 v12, 3, v1
v_lshlrev_b32 v12, 14, v12
v_lshl_add_u32 v12, v164, 4, v12
s_add_u32 s7, s62, {X2}
v_lshl_add_u32 v13, v164, 4, s7
ds_read_b128 v[28:31], v13''')
poll([ld(24,'v12','s6')],0)
dppred([24,25,26,27],[0,1]); rnd([24,25,26,27],56)
a(f's_add_u32 s6, s62, {E6}\nv_lshlrev_b32 v12, 8, v163\nv_lshl_add_u32 v12, v164, 4, v12')
srd(40,30,2048)
a('s_waitcnt lgkmcnt(0)'); poll([ld(96,'v12','s6')],0,plain=False,pre=(32,sc('v12','s6'),SN,30))
dppred([96,97,98,99],[0,1,2,3])
for i in range(4): a(f'v_fma_f32 v{96+i}, v{96+i}, v{24+i}, v{28+i}')
a('''v_cvt_pk_bf16_f32 v96, v96, v97
v_cvt_pk_bf16_f32 v97, v98, v99
v_lshlrev_b32 v12, 3, v164
s_lshl_b32 s6, s3, 5
s_mov_b32 exec_lo, 0x10001
s_mov_b32 exec_hi, 0x10001
buffer_store_dwordx2 v[96:97], v12, s[40:43], s6 offen''')
stamp(20); stamp(31,'s_memtime')
a('''s_cmp_lg_u32 s3, 0
s_cbranch_scc1 TIMEOUT
s_mov_b64 exec, 1
v_mov_b32 v12, 0
v_mov_b32 v13, s5
buffer_store_dword v13, v12, s[36:39], 0 offen sc1
TIMEOUT:''')
flush()
a('EXIT:\ns_endpgm')
a.label('CLEAR')
srd(36,34,WSEND)
a('v_and_b32 v163, 15, v1\nv_lshlrev_b32 v163, 4, v163')
a(f'''v_mov_b32 v44, -1
v_mov_b32 v45, -1
v_mov_b32 v46, -1
v_mov_b32 v47, -1
s_cmp_eq_u32 s4, 4
s_cbranch_scc0 CLR5
s_lshl_b32 s6, s55, 17
s_lshl_b32 s7, s54, 7
s_add_u32 s6, s6, s7
s_add_u32 s6, s6, {E3O}
s_add_u32 s7, s6, 65536
v_lshl_add_u32 v12, v2, 13, v9
buffer_store_dwordx4 v[44:47], v12, s[36:39], s6 offen sc1
buffer_store_dwordx4 v[44:47], v12, s[36:39], s7 offen sc1
s_branch CLRD
CLR5:
s_cmp_eq_u32 s4, 5
s_cbranch_scc0 CLR6
s_lshl_b32 s6, s55, 12
s_lshl_b32 s7, s54, 3
s_add_u32 s6, s6, s7
s_add_u32 s6, s6, {E3M}
v_lshlrev_b32 v12, 9, v1''')
pub24(44,'v12','s6','0xff',2)
a(f's_lshl_b32 s6, s55, 14\ns_lshl_b32 s7, s54, 8\ns_add_u32 s6, s6, s7\ns_add_u32 s6, s6, {M2}')
pub24(44,'v163','s6','0xffff')
a('s_branch CLRD\nCLR6:\ns_cmp_eq_u32 s4, 6\ns_cbranch_scc0 CLR7')
e4addr(); pub24(44,'v163','s6','0xff')
a(f's_lshl_b32 s6, s57, 12\ns_lshl_b32 s7, s56, 8\ns_add_u32 s6, s6, s7\ns_add_u32 s6, s6, {E6}')
pub24(44,'v163','s6','0xffff')
a('s_branch CLRD\nCLR7:\ns_cmp_ge_u32 s3, 224\ns_cbranch_scc1 CLRD')
e5addr(); pub24(44,'v163','s6','0xffff')
a('CLRD:\ns_branch NOP1LD\nCLRW:\ns_waitcnt vmcnt(0)\ns_branch P1MID')
a.label('LOADER')
def stream(ptr,nbytes,vo,S,BS,nblk,lds,N,flag=True):
    srd(40,ptr,nbytes)
    a(f's_mov_b32 m0, {lds}\ns_add_u32 s51, s50, {nblk}')
    L=a.newl(); a.label(L)
    for t in range(4):
        a(f'buffer_load_dwordx4 {vo[t]}, s[40:43], s6 offen{P["NT"]} lds\ns_add_u32 m0, m0, 0x400\ns_add_u32 s6, s6, {S if t<3 else BS-3*S}')
    a('s_add_u32 s50, s50, 1')
    if flag: a(f's_sub_u32 s7, s50, {N//4}\nv_mov_b32 v14, s7\ns_waitcnt vmcnt({N})\nds_max_i32 v15, v14')
    a(f's_cmp_lt_u32 s50, s51\ns_cbranch_scc1 {L}')
def drain(N):
    for k in range(N-4,-1,-4): a(f's_sub_u32 s7, s50, {k//4}\nv_mov_b32 v14, s7\ns_waitcnt vmcnt({k})\nds_max_i32 v15, v14')
def waitfree(addr,n,N):
    D=a.newl()
    a(f'ds_read_b32 v14, v15 offset:{addr-FL}\ns_waitcnt lgkmcnt(0)\nv_cmp_gt_i32 vcc, {n}, v14\ns_cbranch_vccz {D}')
    drain(N); spin(addr,n); a.label(D)
a('''v_lshl_add_u32 v3, v2, 15, v9
s_lshl_b32 s6, s55, 21
s_lshl_b32 s7, s54, 7
s_add_u32 s6, s6, s7
s_mov_b32 s50, 0''')
stream(14,8388608,['v3']*4,8192,32*8192,8,R0,32,False)
a('''v_lshrrev_b32 v4, 4, v1
v_and_b32 v5, 15, v1
v_xor_b32 v5, v5, v4
v_lshlrev_b32 v5, 4, v5
v_lshl_add_u32 v4, v4, 8, v5
v_xor_b32 v5, 64, v4
v_xor_b32 v6, 128, v4
v_xor_b32 v7, 192, v4
s_lshl_b32 s61, s55, 24
s_lshl_b32 s7, s54, 14
s_add_u32 s61, s61, s7
s_add_u32 s61, s61, %d
s_mov_b32 s6, s61
s_barrier'''%(61440*256))
if P['DIAG']: srd(36,34,DG+0x100000)
KV=['v4','v5','v6','v7']
def gate(k,N):
    if P[k]: waitfree(G[P[k]],(P[k]==3 and P['T3']) or (P[k]==1 and P['T1']) or P['TH'],N)
def sM(prev):
    a('v_mul_u32_u24 v3, 49152, v2\nv_add_u32 v3, v3, v9\ns_mul_i32 s6, s55, 3145728\ns_lshl_b32 s7, s54, 7\ns_add_u32 s6, s6, s7\ns_add_u32 s6, s6, 4096')
    gate('GM',prev); stream(28,12582912,['v3']*4,12288,32*12288,8,R2,P['NM']); stamp(2)
def sKV(prev):
    gate('GK',prev); a('s_mov_b32 s6, s61')
    stream(10,67108864,KV,1024,4096,4,RK,P['N0']); stamp(0)
    gate('GV',P['N0']); a('s_mov_b32 s6, s61'); stream(12,67108864,KV,1024,4096,4,RV,P['NV']); stamp(1)
if P['ORD']: sM(32); sKV(P['NM']); P['NM']=P['NV']
else: sKV(32); sM(P['NV'])
a('v_lshl_add_u32 v8, v2, 13, v9\ns_lshl_b32 s6, s57, 19\ns_lshl_b32 s7, s56, 7\ns_add_u32 s6, s6, s7')
gate('G4',P['NM']); stream(16,8388608,['v8']*4,2048,32*2048,8,R3,P['N2']); stamp(3)
a('s_cmp_ge_u32 s3, 224\ns_cbranch_scc1 NOP5')
waitfree(F_FR0,12,P['N2'])
if not P['H']: gate('G5',P['N2'])
a('''v_mul_u32_u24 v3, 28672, v2
v_add_u32 v3, v3, v9
s_mul_i32 s6, s58, 3670016
s_lshl_b32 s7, s60, 7
s_add_u32 s6, s6, s7
s_cmp_eq_u32 s59, 1
s_cselect_b32 s62, s22, s20
s_cselect_b32 s63, s23, s21''')
if P['H']: stream(62,7340032,['v3']*4,7168,32*7168,P['H'],R0,P['NH']); gate('G5',P['NH'])
stream(62,7340032,['v3']*4,7168,32*7168,16-P['H'],R0+4096*P['H'],P['N3']); stamp(4)
if P['G6']==4: gate('G6',P['N3'])
a('s_branch YESP5'); a.label('NOP5'); drain(P['N2']); a('s_mov_b32 s50, 48'); a.label('YESP5')
waitfree(F_FR2,8,P['N3'])
if P['G6']!=4: gate('G6',P['N3'])
a('s_mul_i32 s6, s57, 458752\ns_lshl_b32 s7, s56, 7\ns_add_u32 s6, s6, s7')
stream(24,7340032,['v8']*4,2048,32*2048,7,R2,P['N4'])
drain(P['N4']); stamp(5)
flush()
a('s_waitcnt lgkmcnt(0)\ns_endpgm')
ref=open('cdna_kernels/'+NAME+'.s.ref').read()
head=ref[:ref.index('; Override launch')]
txt=head+('; DIAG\n' if P['DIAG'] else '')+f'''; @launch grid=(256,1,1) block=(576,1,1) lds={LDSZ}
.amdgcn_target "amdgcn-amd-amdhsa--gfx950"
.text
.globl {NAME}_kernel
.p2align 8
.type {NAME}_kernel,@function
{NAME}_kernel:
'''+a.text()+f'''.section .rodata,"a"
.p2align 6
.amdhsa_kernel {NAME}_kernel
  .amdhsa_next_free_vgpr %d
  .amdhsa_next_free_sgpr 96
  .amdhsa_accum_offset %d
  .amdhsa_group_segment_fixed_size 0
  .amdhsa_kernarg_size 112
  .amdhsa_user_sgpr_count 2
  .amdhsa_user_sgpr_kernarg_segment_ptr 1
  .amdhsa_system_sgpr_workgroup_id_x 1
.end_amdhsa_kernel
'''%((168,168))
open(sys.argv[1],'w').write(txt)
```

```python
import sys,struct
from asmlib import Asm
P=dict(DIAG=0,NT=' nt',N0=32,N1=20,N2=20,N3=20,SLEEP=1,PRESPIN=1,WARM=0,PRE3=0,PRE4=0,E3PRE=0,GK=0,GV=0,GM=0,G4=0,G5=0,G6=0,TH=8,N4=12,NV=0,NM=0,ORD=0,SBE=1,ME=0,MK=1,PS=0,PL=0,PW=0,NS=0,NP=0,H=0,NH=8,GP=0,T3=0,T1=0,LS=0)
for a in sys.argv[2:]:
    k,v=a.split('='); P[k]=v if k=='NT' else int(v)
if P['NT']=='0': P['NT']=''
NAME='adaLN_cond__sliding_block_cached__geglu_ffn__decode'
def f2u(x): return '0x%08x'%struct.unpack('<I',struct.pack('<f',x))[0]
E1,E2,E3O,E3M,M2,E4,E5,E6,WSEND=0x1000,0x21000,0x41000,0x141000,0x149000,0x159000,0x169000,0x177000,0x187000
DG=0x190000
R0,RK,RV,R2,R3,W=0,32768,65536,81920,114688,147456
FL=W; RED0=W+128; RED1=RED0+4096; QL=RED1+4096; SC=QL+2176; X2=QL; LDSZ=SC+2176
F_LAND,F_FR0,F_FR2,C_P1,C_P2,C_Q,C_S,C_M2,C_P4,C_X,C_P5,C_P6,C_O=[FL+4*i for i in range(13)]
G=[0,FL+52,FL+56,FL+60,FL+88]
GU={P[k] for k in ('GK','GV','GM','G4','G5','G6')}
P['NV']=P['NV'] or P['N1']; P['NM']=P['NM'] or P['N1']
a=Asm()
T=['s5','s44','s45','s46']
def v(i,n=1): return f'v{i}' if n==1 else f'v[{i}:{i+n-1}]'
def srd(d,p,n): a(f's_mov_b32 s{d}, s{p}\ns_mov_b32 s{d+1}, s{p+1}\ns_mov_b32 s{d+2}, {n}\ns_mov_b32 s{d+3}, 0x20000')
def stamp(i,ins='s_memrealtime'):
    if P['DIAG']:
        if ins=='cnt': a(f'v_writelane_b32 v126, s49, {i}')
        else: a(f'{ins} s[76:77]\ns_waitcnt lgkmcnt(0)\nv_writelane_b32 v126, s76, {i}')
def flush():
    if P['DIAG']==2:
        L=a.newl(); srd(36,32,256)
        a(f's_cmp_lg_u32 s3, 0\ns_cbranch_scc1 {L}\ns_cmp_lg_u32 s4, 7\ns_cbranch_scc1 {L}\nv_readlane_b32 s78, v126, 29\ns_mov_b64 exec, -1\ns_nop 4\nv_subrev_u32 v126, s78, v126\nv_lshlrev_b32 v127, 1, v1\ns_mov_b32 exec_hi, 0\nbuffer_store_short v126, v127, s[36:39], 0 offen'); a.label(L)
    elif P['DIAG']:
        srd(36,34,DG+0x100000)
        a(f's_mul_i32 s78, s3, 2304\ns_lshl_b32 s79, s4, 8\ns_add_u32 s78, s78, s79\ns_add_u32 s78, s78, {DG}\ns_mov_b64 exec, -1\nv_lshlrev_b32 v127, 2, v1\nbuffer_store_dword v126, v127, s[36:39], s78 offen')
def budget(): a('s_sub_u32 s49, s49, 1\ns_cbranch_scc1 TIMEOUT')
def spin(addr,thr,sl=0):
    L=a.newl(); a.label(L); budget()
    if sl: a('s_sleep 1')
    a(f'ds_read_b32 v14, v15 offset:{addr-FL}\ns_waitcnt lgkmcnt(0)\nv_cmp_gt_i32 vcc, {thr}, v14\ns_cbranch_vccnz {L}')
def arrive(addr):
    a(f's_waitcnt lgkmcnt(0)\ns_mov_b64 exec, 1\nds_add_u32 v15, v162 offset:{addr-FL}\ns_mov_b64 exec, -1')
def landed(c):
    if isinstance(c,int): a(f's_add_u32 s50, s4, {c+1}'); c='s50'
    spin(F_LAND,c)
def chk(regs,fmt,acc='v165'):
    if fmt==0:
        R=[g+i for g in regs for i in range(4)]
        a(f'v_max3_u32 {acc}, v{R[0]}, v{R[1]}, v{R[2]}')
        for i in range(3,len(R)-1,2): a(f'v_max3_u32 {acc}, {acc}, v{R[i]}, v{R[i+1]}')
        a(f'v_max_u32 {acc}, {acc}, v{R[-1]}\nv_cmp_eq_u32 vcc, -1, {acc}'); return
    first=True
    for g in regs:
        if fmt==24: lst=[(g+i,T[i]) for i in range(4)]
        else: lst=[(g+1,T[0]),(g+3,T[0])]
        for r,t in lst:
            if first: a(f'v_xor_b32 {acc}, {t}, v{r}'); first=False
            else: a(f'v_bitop3_b32 {acc}, {acc}, v{r}, {t} bitop3:0xf6')
    if fmt==24: a(f'v_and_b32 {acc}, 0xff, {acc}')
    a(f'v_cmp_ne_u32 vcc, 0, {acc}')
MK='\ns_mov_b64 exec, vcc' if P['MK'] else ''
def poll(loads,fmt,scout=None,plain=True,pre=None):
    D=a.newl()
    def body(ls,pl):
        for g,t in ls: a(t.replace(' sc1','') if pl else t)
        a('s_waitcnt vmcnt(0)'); chk([g for g,t in ls],fmt)
    def again(L):
        budget()
        if P['SLEEP']: a(f's_sleep {P["SLEEP"]}')
        a(f's_branch {L}')
    if pre and P['PS']&pre[0]:
        L=a.newl(); E=a.newl(); Wt=a.newl(); CW=FL+64+4*(pre[0].bit_length()-1); pw=P['PW']&pre[0]
        if pw: a(f's_cmp_lg_u32 s4, 0\ns_cbranch_scc1 {Wt}')
        if P['PL']==2: a(f's_and_b32 s50, s3, {pre[3]|1}\ns_lshl_b64 exec, 1, s50')
        else: a(f's_mov_b64 exec, {hex(1<<(pre[3] if P["PL"] else 0))}')
        a.label(L)
        a(pre[1]+'\ns_waitcnt vmcnt(0)\n'+pre[2]+f'\ns_cbranch_vccz {E}'); again(L); a.label(E)
        if pw: X=a.newl(); arrive(CW); a(f's_branch {X}'); a.label(Wt); spin(CW,1,P['LS']&2); a.label(X)
        a(pre[4] if len(pre)>4 else 's_mov_b64 exec, -1')
    if pre and P['NP']&pre[0]: plain=False
    if scout and not P['NS']&pre[0]:
        ex,txt,cmp_=scout
        L=a.newl(); E=a.newl(); a('s_mov_b32 exec_hi, 0' if ex=='LO' else f's_mov_b64 exec, {ex}'); a.label(L)
        a(txt+'\ns_waitcnt vmcnt(0)\n'+cmp_+f'\ns_cbranch_vccz {E}'+MK); again(L); a.label(E); a('s_mov_b64 exec, -1')
    if plain: body(loads,True); a(f's_cbranch_vccz {D}'+MK)
    L=a.newl(); a.label(L); body(loads,False); a(f's_cbranch_vccz {D}'+MK); again(L); a.label(D)
    if P['MK']: a('s_mov_b64 exec, -1')
def sc(va,so): return f'buffer_load_dwordx2 v[124:125], {va}, s[36:39], {so} offen sc1'
TG='v_cmp_ne_u32 vcc, s5, v125'
SN='v_max_u32 v165, v124, v125\nv_cmp_eq_u32 vcc, -1, v165'
def ld(g,va,so,off=0): return (g,f'buffer_load_dwordx4 {v(g,4)}, {va}, s[36:39], {so} offen offset:{off} sc1')
def mask(g,n=4):
    for i in range(n): a(f'v_and_b32 v{g+i}, v7, v{g+i}')
DP=['quad_perm:[1,0,3,2]','quad_perm:[2,3,0,1]','row_half_mirror','row_mirror']
def dppred(regs,steps,op='add'):
    for s_ in steps:
        for r in regs: a(f'v_{op}_f32_dpp v{r}, v{r}, v{r} {DP[s_]} row_mask:0xf bank_mask:0xf')
def swapred(regs,tmp,op='add',which=(16,32)):
    for w_ in which:
        for i,r in enumerate(regs): a(f'v_mov_b32 v{tmp+i}, v{r}')
        for i,r in enumerate(regs): a(f'v_permlane{w_}_swap_b32 v{r}, v{tmp+i}')
        for i,r in enumerate(regs): a(f'v_{op}_f32 v{r}, v{r}, v{tmp+i}')
def rnd(regs,tmp):
    for i in range(0,len(regs),2): a(f'v_cvt_pk_bf16_f32 v{tmp+i//2}, v{regs[i]}, v{regs[i+1]}')
    for i in range(0,len(regs),2): a(f'v_lshlrev_b32 v{regs[i]}, 16, v{tmp+i//2}\nv_and_b32 v{regs[i+1]}, s48, v{tmp+i//2}')
def rnd1(r): a(f'v_cvt_pk_bf16_f32 v{r}, v{r}, v{r}\nv_and_b32 v{r}, s48, v{r}')
def dup(dst,src):
    for i in range(4): a(f'v_cvt_pk_bf16_f32 v{dst+i}, v{src+i}, v{src+i}')
def unpk(dst,src,n):
    for i in reversed(range(n)): a(f'v_and_b32 v{dst+2*i+1}, s48, v{src+i}\nv_lshlrev_b32 v{dst+2*i}, 16, v{src+i}')
def gemv(hh,wt,first=True):
    for t in range(4):
        A=48+4*(t&1)
        for q in range(4): a(f'v_and_b32 v{A+q}, v{hh+t}, v{3+q}')
        a(f'v_mfma_f32_16x16x32_bf16 v[44:47], {v(A,4)}, {v(wt+4*t,4)}, {"0" if first and t==0 else "v[44:47]"}')
def rdw(dst,base):
    for t in range(4): a(f'ds_read_b128 {v(dst+4*t,4)}, v12 offset:{1024*t}')
def reduce(buf,cnt,n,form,skip,mid=None,ns=8):
    a(f's_mov_b64 exec, s[52:53]\nds_write_b128 v8, v[44:47] offset:{buf-RED0}')
    if mid: a.label(mid)
    a(f'''s_waitcnt lgkmcnt(0)
    s_mov_b64 exec, 1
    ds_add_rtn_u32 v14, v15, v162 offset:{cnt-FL}
    s_mov_b64 exec, -1
    s_waitcnt lgkmcnt(0)
    v_readfirstlane_b32 s50, v14
    s_cmp_lg_u32 s50, {n-1}
    s_cbranch_scc1 {skip}''')
    if form=='A':
        a(f'v_lshlrev_b32 v12, 2, v1\nv_add_u32 v12, {buf}, v12')
        for i in range(ns): a(f'ds_read2st64_b32 {v(96+2*i,2)}, v12 offset0:{2*i} offset1:{2*i+1}')
        a('s_waitcnt lgkmcnt(0)')
        m=2*ns
        while m>2:
            m//=2
            for i in range(0,m,2): a(f'v_pk_add_f32 {v(96+i,2)}, {v(96+i,2)}, {v(96+m+i,2)}')
        a('v_add_f32 v44, v96, v97\nv_mov_b32 v45, s5\nv_mov_b32 v47, s5\nv_lshlrev_b32 v12, 3, v1\nv_mov_b32_dpp v46, v44 quad_perm:[1,0,3,2] row_mask:0xf bank_mask:0xf')
    else:
        for k in range(4): a(f'ds_read_b128 {v(96+4*k,4)}, v10 offset:{buf-RED0+256*k}')
        a('s_waitcnt lgkmcnt(0)')
        a('v_pk_add_f32 v[96:97], v[96:97], v[100:101]\nv_pk_add_f32 v[98:99], v[98:99], v[102:103]')
        a('v_pk_add_f32 v[104:105], v[104:105], v[108:109]\nv_pk_add_f32 v[106:107], v[106:107], v[110:111]')
        a('v_pk_add_f32 v[44:45], v[96:97], v[104:105]\nv_pk_add_f32 v[46:47], v[98:99], v[106:107]')
        swapred([44,45,46,47],96)
def pub24(g,va,so,ex,n=4):
    a(f's_mov_b64 exec, {ex}\nbuffer_store_dwordx{n} {v(g,n)}, {va}, s[36:39], {so} offen sc1\ns_mov_b64 exec, -1')
def stats(X):
    a(f'v_pk_add_f32 v[56:57], {v(X,2)}, {v(X+2,2)}\nv_pk_add_f32 v[58:59], {v(X+4,2)}, {v(X+6,2)}')
    a(f'v_pk_add_f32 v[56:57], v[56:57], {v(X+8,2)}\nv_pk_add_f32 v[58:59], v[58:59], {v(X+10,2)}')
    a(f'v_pk_add_f32 v[56:57], v[56:57], {v(X+12,2)}\nv_pk_add_f32 v[58:59], v[58:59], {v(X+14,2)}')
    a('v_pk_add_f32 v[56:57], v[56:57], v[58:59]\nv_add_f32 v60, v56, v57')
    dppred([60],[0,1,2,3]); swapred([60],62)
    a(f'v_mul_f32 v60, {f2u(-1/1024)}, v60')
    for i in range(0,16,2): a(f'v_pk_add_f32 {v(X+i,2)}, {v(X+i,2)}, v[60:61] op_sel_hi:[1,0]')
    a(f'v_pk_mul_f32 v[56:57], {v(X,2)}, {v(X,2)}\nv_pk_mul_f32 v[58:59], {v(X+2,2)}, {v(X+2,2)}')
    for i in range(4,16,2): a(f'v_pk_fma_f32 {v(56+(i&2),2)}, {v(X+i,2)}, {v(X+i,2)}, {v(56+(i&2),2)}')
    a('v_pk_add_f32 v[56:57], v[56:57], v[58:59]\nv_add_f32 v61, v56, v57')
    dppred([61],[0,1,2,3]); swapred([61],62)
    a(f'v_mul_f32 v61, {f2u(1/1024)}, v61\nv_sub_f32 v60, 0, v60')
    rnd([60,61],62); a(f'v_add_f32 v61, {f2u(1e-5)}, v61'); rnd1(61); a('v_sqrt_f32 v61, v61'); rnd1(61); a('v_rcp_f32 v61, v61')
def norm(X,n,tmp):
    R=list(range(X,X+n))
    for r in R: a(f'v_sub_f32 v{r}, v{r}, v60')
    rnd(R,tmp)
    for r in R: a(f'v_mul_f32 v{r}, v{r}, v61')
    rnd(R,tmp)
def sigm(X,Y,n):
    for i in range(n): a(f'v_exp_f32 v{Y+i}, v{Y+i}')
    for i in range(n): a(f'v_add_f32 v{Y+i}, 1.0, v{Y+i}')
    for i in range(n): a(f'v_rcp_f32 v{Y+i}, v{Y+i}')
    for i in range(n): a(f'v_mul_f32 v{X+i}, v{X+i}, v{Y+i}')
def silu(dst,src):
    unpk(56,src,2)
    for i in range(4): a(f'v_mul_f32 v{60+i}, {f2u(-1.4426950408889634)}, v{56+i}')
    sigm(56,60,4); dup(dst,56)

a('''s_cmp_ge_u32 s2, 256
s_cbranch_scc1 EXIT
s_load_dwordx16 s[8:23], s[0:1], 0
s_load_dwordx8 s[24:31], s[0:1], 64
s_load_dwordx4 s[32:35], s[0:1], 96
v_lshrrev_b32 v2, 6, v0
v_and_b32 v1, 63, v0
s_and_b32 s3, s2, 7
s_lshl_b32 s3, s3, 5
s_lshr_b32 s6, s2, 3
s_add_u32 s3, s3, s6
v_readfirstlane_b32 s4, v2
v_lshrrev_b32 v2, 3, v1
v_and_b32 v9, 7, v1
v_lshlrev_b32 v9, 4, v9
s_mov_b32 s49, 0x200000
s_and_b32 s54, s3, 63
s_lshr_b32 s55, s3, 6
s_and_b32 s56, s3, 15
s_lshr_b32 s57, s3, 4
s_cmp_ge_u32 s3, 112
s_cselect_b32 s58, 1, 0
s_mul_i32 s6, s58, 112
s_sub_u32 s60, s3, s6
s_cmp_ge_u32 s60, 56
s_cselect_b32 s59, 1, 0
s_mul_i32 s6, s59, 56
s_sub_u32 s60, s60, s6
v_mov_b32 v15, %d
v_mov_b32 v162, 1
v_mov_b32 v126, 0
v_mov_b32 v14, 0
v_lshl_add_u32 v12, v1, 2, v15
s_mov_b32 exec_hi, 0
ds_write_b32 v12, v14
s_mov_b64 exec, -1
s_waitcnt lgkmcnt(0)
s_cmp_eq_u32 s4, 8
s_cbranch_scc1 LOADER'''%FL)
stamp(29)
a('''s_lshl_b32 s61, s4, 5
s_lshr_b32 s6, s3, 5
s_lshl_b32 s6, s6, 7
s_add_u32 s62, s6, s61
s_lshl_b32 s6, s55, 8
s_add_u32 s63, s6, s61
v_mul_u32_u24 v12, 49152, v2
v_add_u32 v12, v12, v9
s_mul_i32 s64, s62, 12288
s_and_b32 s6, s3, 31
s_lshl_b32 s6, s6, 7
s_add_u32 s64, s64, s6
v_lshlrev_b32 v13, 3, v2
v_lshlrev_b32 v14, 5, v1
s_lshl_b32 s65, s62, 1
s_lshl_b32 s66, s63, 1
s_load_dword s5, s[34:35], 0''')
srd(40,28,12582912)
a('s_cmp_ge_u32 s4, 4\ns_cbranch_scc1 CLEAR')
for t in range(4): a(f'buffer_load_dwordx4 {v(64+4*t,4)}, v12, s[40:43], s64 offen{P["NT"]}\ns_add_u32 s64, s64, 12288')
a.label('NOP1LD')
srd(40,26,2048)
a('buffer_load_dwordx2 v[20:21], v13, s[40:43], s65 offen\nbuffer_load_dwordx2 v[22:23], v13, s[40:43], s66 offen')
srd(40,8,2048)
a('''buffer_load_dwordx2 v[24:25], v13, s[40:43], s66 offen
buffer_load_dwordx4 v[136:139], v14, s[40:43], 0 offen
buffer_load_dwordx4 v[140:143], v14, s[40:43], 0 offen offset:16
v_and_b32 v12, 15, v1
v_lshlrev_b32 v12, 4, v12
v_bfe_u32 v14, v1, 4, 1
v_lshl_add_u32 v12, v14, 3, v12
s_lshl_b32 s6, s4, 8
buffer_load_dwordx2 v[156:157], v12, s[40:43], s6 offen''')
srd(36,34,WSEND if not P['DIAG'] else DG+0x100000)
a(f'''s_barrier
s_mov_b32 s48, 0xffff0000
s_mov_b32 s82, 0x55555555
s_mov_b32 s83, s82
v_and_b32 v12, 1, v1
v_cmp_eq_u32 vcc, 1, v12
v_mov_b32 v13, 0xffff
v_mov_b32 v14, s48
v_cndmask_b32 v13, v13, v14, vcc
v_bfe_u32 v12, v1, 1, 2''')
for q in range(4): a(f'v_cmp_eq_u32 vcc, {q}, v12\nv_cndmask_b32 v{3+q}, 0, v13, vcc')
a(f'''v_lshrrev_b32 v12, 5, v1
v_lshlrev_b32 v8, 8, v12
v_lshl_add_u32 v8, v9, 1, v8
v_and_b32 v12, 16, v1
v_add_u32 v8, v8, v12
s_lshl_b32 s6, s4, 9
s_add_u32 s6, s6, {RED0}
v_add_u32 v8, s6, v8
v_and_b32 v163, 15, v1
v_lshlrev_b32 v163, 4, v163
v_lshrrev_b32 v164, 4, v1
v_lshl_add_u32 v10, v164, 10, v163
v_add_u32 v10, {RED0}, v10
s_lshl_b32 s6, s4, 12
v_lshlrev_b32 v11, 4, v1
v_add_u32 v11, s6, v11
s_mov_b32 s52, 0x00ff00ff
s_mov_b32 s53, 0xff00ff00
s_waitcnt lgkmcnt(0)
s_add_u32 s5, s5, 1
''')
for q in range(4): a(f'v_and_b32 v{156+2+q}, 0x3f803f80, v{3+q}')
stamp(0); stamp(30,'s_memtime')
a('s_cmp_ge_u32 s4, 4\ns_cbranch_scc1 CLRW\ns_waitcnt vmcnt(5)')
silu(16,20)
stamp(1)
gemv(16,64)
reduce(RED0,C_P1,8,'A','P1DONE','P1MID',4)
a(f'''s_and_b32 s6, s3, 31
s_lshl_b32 s6, s6, 12
s_lshr_b32 s7, s3, 5
s_lshl_b32 s7, s7, 9
s_add_u32 s6, s6, s7
s_add_u32 s6, s6, {E1}
s_mov_b64 exec, s[82:83]
buffer_store_dwordx4 v[44:47], v12, s[36:39], s6 offen sc1
s_mov_b64 exec, -1''')
stamp(2)
a.label('P1DONE')
a('s_waitcnt vmcnt(1)')
silu(20,22)
unpk(104,136,8); unpk(16,24,2)
stats(104); norm(16,4,56)
landed(0); a(f'v_add_u32 v12, {R0}, v11'); rdw(64,0); arrive(F_FR0)
a(f'''s_lshr_b32 s6, s63, 6
s_lshl_b32 s6, s6, 12
s_and_b32 s7, s63, 63
s_lshl_b32 s7, s7, 3
s_add_u32 s6, s6, s7
s_add_u32 s6, s6, {E1}
s_add_u32 s7, s6, 65536
v_lshlrev_b32 v12, 5, v9
v_lshl_add_u32 v12, v2, 5, v12''')
stamp(3); stamp(21,'cnt')
a('v_lshlrev_b32 v13, 5, v9\nv_lshl_add_u32 v13, v2, 16, v13')
poll([ld(96,'v12','s6'),ld(100,'v12','s6',16),ld(104,'v12','s7'),ld(108,'v12','s7',16)],8,('0xffff',sc('v13','s6'),TG),pre=(1,sc('v13','s6'),TG,15))
stamp(4); stamp(22,'cnt')
if 1 in GU: arrive(G[1])
sa=[96,98,100,102]; ca=[104,106,108,110]
dppred(sa+ca,[0,1,2]); rnd(sa+ca,56)
for r in ca: a(f'v_add_f32 v{r}, 1.0, v{r}')
rnd(ca,56)
for i in range(4): a(f'v_mul_f32 v{16+i}, v{16+i}, v{ca[i]}')
rnd([16,17,18,19],56)
for i in range(4): a(f'v_add_f32 v{16+i}, v{16+i}, v{sa[i]}')
dup(56,16); gemv(56,64)
reduce(RED1,C_P2,8,'A','P2DONE')
a(f'''s_lshl_b32 s6, s54, 11
s_lshl_b32 s7, s55, 9
s_add_u32 s6, s6, s7
s_add_u32 s6, s6, {E2}
s_mov_b64 exec, s[82:83]
buffer_store_dwordx4 v[44:47], v12, s[36:39], s6 offen sc1
s_mov_b64 exec, -1''')
stamp(5)
a.label('P2DONE')
def m2blk():
    if P['ME']: spin(F_FR0,8); a(f'v_subrev_u32 v8, {RED0-R0}, v8\nv_subrev_u32 v10, {RED0-R0}, v10')
    landed(8 if P['ORD'] else 16); a(f'v_add_u32 v12, {R2}, v11'); rdw(64,0); arrive(F_FR2); gemv(20,64)
    reduce(RED0,C_M2,8,'B','M2DONE')
    a(f's_lshl_b32 s6, s55, 14\ns_lshl_b32 s7, s54, 8\ns_add_u32 s6, s6, s7\ns_add_u32 s6, s6, {M2}')
    pub24(44,'v163','s6','0xffff')
    a.label('M2DONE')
    if P['ME']: a(f'v_add_u32 v8, {RED0-R0}, v8\nv_add_u32 v10, {RED0-R0}, v10')
if P['ME']:
    assert P['ORD'] and P['G5']==3
    m2blk()
a('s_cmp_ge_u32 s4, 4\ns_cbranch_scc1 NOK')
landed(16 if P['ORD'] else 8)
a(f'''v_and_b32 v13, 15, v1
v_xor_b32 v12, v164, v13
v_lshlrev_b32 v12, 4, v12
v_lshl_add_u32 v12, v13, 8, v12
s_lshl_b32 s6, s4, 12
s_add_u32 s6, s6, {RK}
v_add_u32 v12, s6, v12''')
for s_ in range(4): a(f'v_xor_b32 v13, {64*s_}, v12\nds_read_b128 {v(136+4*s_,4)}, v13')
arrive(F_FR0)
a.label('NOK')
a(f's_mov_b32 s50, {24 if P["ORD"] else 16}'); landed('s50')
a(f'''v_bfe_u32 v12, v1, 2, 2
v_lshl_add_u32 v13, v164, 3, v12
v_and_b32 v14, 15, v13
v_bfe_u32 v12, v1, 1, 1
s_lshl_b32 s6, s4, 1
v_add_u32 v12, s6, v12
v_xor_b32 v12, v12, v14
v_lshlrev_b32 v12, 4, v12
v_lshl_add_u32 v12, v13, 8, v12
v_and_b32 v13, 1, v1
v_lshl_add_u32 v12, v13, 3, v12
v_add_u32 v12, {RV}, v12
v_xor_b32 v13, 64, v12
ds_read_b64_tr_b16 v[128:129], v12
ds_read_b64_tr_b16 v[130:131], v13 offset:1024
ds_read_b64_tr_b16 v[132:133], v12 offset:8192
ds_read_b64_tr_b16 v[134:135], v13 offset:9216
s_lshl_b32 s6, s55, 15
s_lshl_b32 s7, s4, 12
s_add_u32 s6, s6, s7
s_add_u32 s6, s6, {E2}
v_and_b32 v13, 31, v1
v_lshlrev_b32 v13, 4, v13
v_lshrrev_b32 v12, 5, v1
v_lshl_add_u32 v12, v12, 11, v13''')
stamp(6); stamp(23,'cnt')
a('v_lshlrev_b32 v13, 9, v1')
poll([ld(96+4*k,'v12','s6',512*k) for k in range(4)],8,('0xff',sc('v13','s6'),TG),pre=(2,sc('v13','s6'),TG,7))
stamp(7); stamp(24,'cnt')
if 2 in GU: arrive(G[2])
a(f'''v_add_f32 v96, v96, v100
v_add_f32 v98, v98, v102
v_add_f32 v104, v104, v108
v_add_f32 v106, v106, v110
v_add_f32 v96, v96, v104
v_add_f32 v98, v98, v106
s_mul_i32 s6, s4, 272
s_add_u32 s6, s6, {QL}
v_lshl_add_u32 v12, v1, 2, s6
v_cvt_pk_bf16_f32 v96, v96, v98
ds_write_b32 v12, v96''')
arrive(C_Q)
a(f'''v_and_b32 v13, 7, v1
v_mul_u32_u24 v13, 272, v13
s_cmp_ge_u32 s4, 4
s_cbranch_scc1 NOQK
v_lshl_add_u32 v12, v164, 4, v13
v_add_u32 v12, {QL}, v12''')
spin(C_Q,8)
for s_ in range(4): a(f'ds_read_b128 {v(96+4*s_,4)}, v12 offset:{64*s_}')
for s_ in range(4): a(f's_waitcnt lgkmcnt({3-s_})\nv_mfma_f32_16x16x32_bf16 v[44:47], {v(136+4*s_,4)}, {v(96+4*s_,4)}, {"0" if s_==0 else "v[44:47]"}')
a(f's_lshl_b32 s6, s4, 6\ns_add_u32 s6, s6, {SC-QL}\nv_add_u32 v12, s6, v12')
rnd([44,45,46,47],56)
for i in range(4): a(f'v_mul_f32 v{44+i}, 0x3db504f3, v{44+i}')
rnd([44,45,46,47],56)
a('s_mov_b32 exec_lo, s52\ns_mov_b32 exec_hi, s52\nds_write_b128 v12, v[44:47]\ns_mov_b64 exec, -1')
arrive(C_S)
a.label('NOQK')
a(f'v_lshl_add_u32 v12, v164, 5, v13\nv_add_u32 v12, {SC}, v12')
spin(C_S,4)
for i,o in enumerate([0,16,128,144]): a(f'ds_read_b128 {v(96+4*i,4)}, v12 offset:{o}')
a('s_waitcnt lgkmcnt(0)\nv_max3_f32 v56, v96, v97, v98')
for i in range(99,111,2): a(f'v_max3_f32 v56, v56, v{i}, v{i+1}')
a('v_max_f32 v56, v56, v111'); swapred([56],58,'max')
a(f'v_mul_f32 v57, {f2u(-1.4426950408889634)}, v56\ns_mov_b32 s6, 0x3fb8aa3b')
for i in range(96,112): a(f'v_fma_f32 v{i}, v{i}, s6, v57')
for i in range(96,112): a(f'v_exp_f32 v{i}, v{i}')
for i in range(8): a(f'v_cvt_pk_bf16_f32 v{112+i}, v{96+2*i}, v{97+2*i}')
a('v_mfma_f32_16x16x32_bf16 v[44:47], v[128:131], v[112:115], 0\nv_mfma_f32_16x16x32_bf16 v[44:47], v[132:135], v[116:119], v[44:47]')
a(f'''s_lshl_b32 s6, s55, 17
s_lshl_b32 s7, s54, 7
s_add_u32 s6, s6, s7
s_lshr_b32 s7, s4, 2
s_lshl_b32 s7, s7, 13
s_add_u32 s6, s6, s7
s_and_b32 s7, s4, 3
s_lshl_b32 s7, s7, 5
s_add_u32 s6, s6, s7
s_add_u32 s6, s6, {E3O}
v_lshlrev_b32 v12, 10, v9
v_lshl_add_u32 v12, v164, 3, v12
s_mov_b32 s50, 0xff
s_mov_b32 s51, 0xff
v_cvt_pk_bf16_f32 v44, v44, v45
v_cvt_pk_bf16_f32 v45, v46, v47
v_mov_b32 v46, v44
v_mov_b32 v47, v45
v_permlane16_swap_b32 v44, v46
v_permlane16_swap_b32 v45, v47''')
pub24(44,'v12','s6','s[50:51]')
a('s_cmp_lg_u32 s4, 0\ns_cbranch_scc1 NOML')
for m in (8,4,2):
    for i in range(0,m,2): a(f'v_pk_add_f32 {v(96+i,2)}, {v(96+i,2)}, {v(96+m+i,2)}')
a('v_add_f32 v57, v96, v97'); swapred([57],58)
a(f'''s_lshl_b32 s6, s55, 12
s_lshl_b32 s7, s54, 3
s_add_u32 s6, s6, s7
s_add_u32 s6, s6, {E3M}
v_lshlrev_b32 v12, 9, v1''')
pub24(56,'v12','s6','0xff',2)
a.label('NOML')
stamp(8)
if not P['ME']: m2blk()
stamp(9)
def e4addr(): a(f's_lshr_b32 s6, s56, 1\ns_lshl_b32 s6, s6, 12\ns_lshl_b32 s7, s57, 8\ns_add_u32 s6, s6, s7\ns_and_b32 s7, s56, 1\ns_lshl_b32 s7, s7, 7\ns_add_u32 s6, s6, s7\ns_add_u32 s64, s6, {E4}\ns_mov_b32 s6, s64')
def e5addr(): a(f's_lshl_b32 s6, s59, 1\ns_add_u32 s6, s6, s58\ns_mul_i32 s6, s6, 14336\ns_lshl_b32 s7, s60, 8\ns_add_u32 s6, s6, s7\ns_add_u32 s6, s6, {E5}')
R8='row_ror:8 row_mask:0xf bank_mask:0xf'
landed(24); a(f'v_add_u32 v12, {R3}, v11'); rdw(64,0)
e4addr()
a(f'''s_and_b32 s6, s4, 3
s_lshl_b32 s7, s57, 2
s_add_u32 s6, s6, s7
s_lshr_b32 s7, s6, 1
s_lshl_b32 s7, s7, 9
s_add_u32 s72, s7, {E3M}
s_lshr_b32 s7, s4, 2
v_and_b32 v13, 1, v1
v_xor_b32 v13, s7, v13
v_lshlrev_b32 v13, 8, v13
v_lshl_add_u32 v13, v2, 5, v13
s_lshl_b32 s6, s6, 1
s_add_u32 s6, s6, s7
s_lshl_b32 s6, s6, 12
s_add_u32 s65, s6, {E3O}
v_lshl_add_u32 v12, v2, 9, v9
s_lshr_b32 s6, s4, 1
s_lshl_b32 s6, s6, 9
s_and_b32 s7, s4, 1
s_lshl_b32 s7, s7, 7
s_add_u32 s6, s6, s7
s_add_u32 s6, s6, {RED1}
v_lshl_add_u32 v166, v2, 4, s6
s_lshl_b32 s66, s56, 8
s_add_u32 s66, s66, {M2}
v_lshl_add_u32 v167, v164, 14, v163''')
a('v_lshlrev_b32 v123, 3, v1')
a(f'''s_lshl_b32 s62, s58, 9
s_lshl_b32 s6, s4, 6
s_add_u32 s62, s62, s6
s_lshl_b32 s62, s62, 2
s_add_u32 s67, s62, {M2+4096}
v_and_b32 v36, 3, v1
v_lshlrev_b32 v36, 14, v36
v_bfe_u32 v37, v1, 2, 1
v_lshl_add_u32 v36, v37, 12, v36
v_lshl_add_u32 v36, v2, 4, v36''')
SB=[ld(28,'v36','s67'),ld(32,'v36','s67',128)]
GA=ld(24,'v167','s66')
stamp(10); stamp(25,'cnt')
poll([ld(96+4*t,'v12','s65',128*t) for t in range(4)]+[ld(112,'v13','s72'),ld(116,'v13','s72',16)]+([GA]+SB if P['GP']==2 else []),0,('-1',sc('v123','s72'),SN),pre=(4,sc('v12','s65'),SN,30))
stamp(11); stamp(26,'cnt')
if 3 in GU and P['GP']!=1: arrive(G[3])
if P['GP']!=2: a(GA[1].replace(' sc1',''))
if P['SBE'] and P['GP']!=2:
    for g,t in SB: a(t.replace(' sc1',''))
if 3 in GU and P['GP']==1: arrive(G[3])
a(f'v_max3_f32 v58, v112, v114, v116\nv_max_f32 v58, v58, v118'); dppred([58],[0],'max'); a(f'v_max_f32_dpp v58, v58, v58 {R8}'); swapred([58],59,'max')
a(f'v_mul_f32 v58, {f2u(-1.4426950408889634)}, v58\ns_mov_b32 s6, 0x3fb8aa3b')
for t in range(4): a(f'v_fma_f32 v{60+t}, v{112+2*t}, s6, v58')
for t in range(4): a(f'v_exp_f32 v{60+t}, v{60+t}')
dup(60,60)
for t in range(4): a(f'v_mov_b32_dpp v{56+t}, v{60+t} quad_perm:[0,0,2,2] row_mask:0xf bank_mask:0xf')
gemv(56,96)
for t in range(4): a(f'v_and_b32 v{60+t}, s48, v{60+t}')
a('v_mul_f32 v57, v60, v113\nv_fmac_f32 v57, v61, v115\nv_fmac_f32 v57, v62, v117\nv_fmac_f32 v57, v63, v119')
dppred([57],[0]); a(f'v_add_f32_dpp v57, v57, v57 {R8}'); swapred([57],59); a('v_rcp_f32 v57, v57')
for i in range(4): a(f'v_mul_f32 v{44+i}, v{44+i}, v57')
a(f's_mov_b64 exec, s[52:53]\nds_write_b128 v8, v[44:47] offset:{RED1-RED0}'); arrive(C_O); spin(C_O,8)
for i,o in enumerate([0,256,2048,2304]): a(f'ds_read_b128 {v(96+4*i,4)}, v166 offset:{o}')
a('''s_waitcnt lgkmcnt(2)
v_pk_add_f32 v[96:97], v[96:97], v[100:101]
v_pk_add_f32 v[98:99], v[98:99], v[102:103]
s_waitcnt lgkmcnt(0)
v_pk_add_f32 v[104:105], v[104:105], v[108:109]
v_pk_add_f32 v[106:107], v[106:107], v[110:111]
v_pk_add_f32 v[96:97], v[96:97], v[104:105]
v_pk_add_f32 v[98:99], v[98:99], v[106:107]''')
dup(56,96); gemv(56,64)
a('s_waitcnt vmcnt(%d)'%(2 if P['SBE'] else 0)); chk([24],0); a('s_cbranch_vccz GADONE'); poll([GA],0,plain=False); a.label('GADONE')
swapred([24,25,26,27],96); rnd([24,25,26,27],96)
reduce(RED0,C_P4,8,'B','P4DONE')
a('''v_pk_mul_f32 v[44:45], v[44:45], v[24:25]
v_pk_mul_f32 v[46:47], v[46:47], v[26:27]
v_lshrrev_b32 v12, 1, v163
v_cvt_pk_bf16_f32 v44, v44, v45
v_cvt_pk_bf16_f32 v45, v46, v47
v_mov_b32_dpp v46, v44 quad_perm:[1,0,3,2] row_mask:0xf bank_mask:0xf
v_mov_b32_dpp v47, v45 quad_perm:[1,0,3,2] row_mask:0xf bank_mask:0xf''')
if P['SBE']: a('s_waitcnt vmcnt(0)')
pub24(44,'v12','s64','0x5555')
stamp(12)
if P['SBE']: a('s_branch P4DONE2')
a.label('P4DONE')
if P['SBE']: a('s_waitcnt vmcnt(0)'); a.label('P4DONE2')
a(f'''s_cmp_ge_u32 s3, 224
s_cbranch_scc1 P5DONE
v_bfe_u32 v13, v1, 2, 1''')
if P['SBE']: chk([28,32],0); a('s_cbranch_vccz SBDONE')
poll(SB,0,plain=not P['SBE']); a.label('SBDONE')
unpk(152,156,2); dppred(list(range(28,36)),[0,1]); rnd(list(range(28,36)),56)
a('v_cmp_eq_u32 vcc, 1, v13')
for i in range(8): a(f'v_mov_b32_dpp v{96+i}, v{28+i} row_half_mirror row_mask:0xf bank_mask:0xf')
for i in range(8): a(f'v_cndmask_b32 v{36+i}, v{28+i}, v{96+i}, vcc\nv_cndmask_b32 v{28+i}, v{96+i}, v{28+i}, vcc')
for i in range(8): a(f'v_add_f32 v{28+i}, 1.0, v{28+i}')
rnd(list(range(28,36)),56)
e5addr()
a(f'''s_mov_b32 s64, s6
s_lshl_b32 s6, s4, 9
s_add_u32 s6, s6, {X2}
v_lshl_add_u32 v166, v163, 1, s6
v_lshl_add_u32 v166, v164, 4, v166
s_add_u32 s6, s62, {X2}
v_lshl_add_u32 v13, v2, 4, s6
v_lshlrev_b32 v12, 4, v1
v_add_u32 v167, {X2}, v12
s_lshl_b32 s51, s4, 1
s_add_u32 s51, s51, 34
s_lshl_b32 s6, s4, 12
v_add_u32 v16, s6, v11
s_add_u32 s6, s6, {E4}
ds_read_b32 v14, v15
s_waitcnt lgkmcnt(0)
v_cmp_gt_i32 vcc, s51, v14
s_mov_b32 s65, 0
s_cbranch_vccnz NOEARLY
s_mov_b32 s65, 1''')
for t in range(8): a(f'ds_read_b128 {v(64+4*t,4)}, v16 offset:{1024*t}')
a.label('NOEARLY')
a('v_lshlrev_b32 v123, 7, v1')
stamp(13); stamp(27,'cnt')
poll([ld(96+4*n,'v12','s6',1024*n) for n in range(4)],0,('LO',sc('v123','s6'),SN),pre=(8,sc('v123','s6'),SN,30))
stamp(14); stamp(28,'cnt')
if 4 in GU: arrive(G[4])
for n in range(4): a(f'v_mfma_f32_16x16x32_bf16 v[44:47], v[158:161], {v(96+4*n,4)}, {"v[152:155]" if n==0 else "v[44:47]"}')
a('s_mov_b32 exec_hi, 0\nds_write_b128 v166, v[44:47]')
arrive(C_X); spin(C_X,8)
a('ds_read_b32 v60, v15 offset:%d'%(X2-FL))
for i in range(4): a(f'ds_read_b128 {v(96+4*i,4)}, v167 offset:{1024*i}')
a('ds_read_b128 v[112:115], v13\nds_read_b128 v[116:119], v13 offset:128\ns_waitcnt lgkmcnt(5)')
for i in range(0,16,2):
    if i in (4,8,12): a(f's_waitcnt lgkmcnt({5-i//4})')
    a(f'v_pk_add_f32 {v(96+i,2)}, {v(96+i,2)}, v[60:61] op_sel_hi:[1,0] neg_lo:[0,1] neg_hi:[0,1]')
a('v_pk_add_f32 v[56:57], v[96:97], v[98:99]\nv_pk_mul_f32 v[58:59], v[96:97], v[96:97]\nv_pk_fma_f32 v[58:59], v[98:99], v[98:99], v[58:59]')
for i in range(4,16,2): a(f'v_pk_add_f32 v[56:57], v[56:57], {v(96+i,2)}\nv_pk_fma_f32 v[58:59], {v(96+i,2)}, {v(96+i,2)}, v[58:59]')
a('v_add_f32 v56, v56, v57\nv_add_f32 v57, v58, v59')
dppred([56,57],[0,1,2,3]); swapred([56,57],58)
a(f'''v_mul_f32 v56, {f2u(1/1024)}, v56
v_mul_f32 v57, {f2u(1/1024)}, v57
v_fma_f32 v57, -v56, v56, v57
v_add_f32 v60, v60, v56
v_add_f32 v57, {f2u(1e-5)}, v57
v_rsq_f32 v58, v57
s_waitcnt lgkmcnt(0)''')
for i in range(0,8,2): a(f'v_pk_add_f32 {v(112+i,2)}, {v(112+i,2)}, v[60:61] op_sel_hi:[1,0] neg_lo:[0,1] neg_hi:[0,1]')
for i in range(0,8,2): a(f'v_pk_mul_f32 {v(28+i,2)}, {v(28+i,2)}, v[58:59] op_sel_hi:[1,0]')
for i in range(0,8,2): a(f'v_pk_fma_f32 {v(112+i,2)}, {v(112+i,2)}, {v(28+i,2)}, {v(36+i,2)}')
dup(56,112); dup(60,116)
a('s_cmp_eq_u32 s65, 1\ns_cbranch_scc1 EARLY'); landed('s51')
for t in range(8): a(f'ds_read_b128 {v(64+4*t,4)}, v16 offset:{1024*t}')
a('s_waitcnt lgkmcnt(0)')
a.label('EARLY')
stamp(15)
gemv(56,64); gemv(60,80,False)
reduce(RED0,C_P5,8,'B','P5DONE')
pub24(44,'v163','s64','0xffff')
stamp(16)
a.label('P5DONE')
a(f'v_subrev_u32 v8, {RED0-RV}, v8\nv_subrev_u32 v10, {RED0-RV}, v10')
a('v_mov_b32 v44, 0\nv_mov_b32 v45, 0\nv_mov_b32 v46, 0\nv_mov_b32 v47, 0\ns_cmp_eq_u32 s4, 7\ns_cbranch_scc1 P6RED')
landed(48); a(f'v_add_u32 v12, {R2}, v11'); rdw(64,0)
a(f'''s_mul_i32 s6, s57, 896
s_lshl_b32 s7, s4, 7
s_add_u32 s6, s6, s7
s_add_u32 s6, s6, {E5}
v_and_b32 v13, 3, v2
v_mul_u32_u24 v12, 14336, v13
v_add_u32 v12, v12, v9
v_lshlrev_b32 v13, 2, v2
s_mov_b32 exec_hi, 0''')
stamp(17)
poll([ld(96,'v12','s6')],0,plain=False,pre=(16,sc('v12','s6'),SN,30,'s_mov_b32 exec_lo, -1'))
a('s_mov_b64 exec, -1')
stamp(18)
for i in range(4): a(f'v_add_f32_dpp v{104+i}, v{96+i}, v{96+i} {R8}')
for i in range(4): a(f'v_mov_b32 v{108+i}, v{104+i}')
for i in range(4): a(f'v_permlane16_swap_b32 v{104+i}, v{108+i}')
c1=2*0.7978845608028654*1.4426950408889634
a(f's_mov_b32 s6, {f2u(-c1*0.044715)}\nv_mov_b32 v100, {f2u(-c1)}')
for i in range(4): a(f'v_mul_f32 v{96+i}, v{104+i}, v{104+i}')
for i in range(4): a(f'v_fma_f32 v{96+i}, v{96+i}, s6, v100')
for i in range(4): a(f'v_mul_f32 v{96+i}, v{96+i}, v{104+i}')
sigm(104,96,4)
for i in range(4): a(f'v_mul_f32 v{104+i}, v{104+i}, v{108+i}')
dup(60,104)
for i in range(4): a(f'ds_bpermute_b32 v{56+i}, v13, v{60+i}')
a('s_waitcnt lgkmcnt(0)'); gemv(56,64)
a.label('P6RED')
reduce(RED0,C_P6,8,'B','P6DONE')
a(f's_lshl_b32 s6, s57, 12\ns_lshl_b32 s7, s56, 8\ns_add_u32 s6, s6, s7\ns_add_u32 s6, s6, {E6}')
pub24(44,'v163','s6','0xffff')
stamp(19)
a.label('P6DONE')
a(f'''s_cmp_lg_u32 s4, 7
s_cbranch_scc1 TIMEOUT
s_cmp_ge_u32 s3, 64
s_cbranch_scc1 TIMEOUT
s_lshl_b32 s62, s3, 6
s_add_u32 s6, s62, {M2+12288}
v_and_b32 v12, 3, v1
v_lshlrev_b32 v12, 14, v12
v_lshl_add_u32 v12, v164, 4, v12
s_add_u32 s7, s62, {X2}
v_lshl_add_u32 v13, v164, 4, s7
ds_read_b128 v[28:31], v13''')
poll([ld(24,'v12','s6')],0)
dppred([24,25,26,27],[0,1]); rnd([24,25,26,27],56)
a(f's_add_u32 s6, s62, {E6}\nv_lshlrev_b32 v12, 8, v163\nv_lshl_add_u32 v12, v164, 4, v12')
srd(40,30,2048)
a('s_waitcnt lgkmcnt(0)'); poll([ld(96,'v12','s6')],0,plain=False,pre=(32,sc('v12','s6'),SN,30))
dppred([96,97,98,99],[0,1,2,3])
for i in range(4): a(f'v_fma_f32 v{96+i}, v{96+i}, v{24+i}, v{28+i}')
a('''v_cvt_pk_bf16_f32 v96, v96, v97
v_cvt_pk_bf16_f32 v97, v98, v99
v_lshlrev_b32 v12, 3, v164
s_lshl_b32 s6, s3, 5
s_mov_b32 exec_lo, 0x10001
s_mov_b32 exec_hi, 0x10001
buffer_store_dwordx2 v[96:97], v12, s[40:43], s6 offen''')
stamp(20); stamp(31,'s_memtime')
a('''s_cmp_lg_u32 s3, 0
s_cbranch_scc1 TIMEOUT
s_mov_b64 exec, 1
v_mov_b32 v12, 0
v_mov_b32 v13, s5
buffer_store_dword v13, v12, s[36:39], 0 offen sc1
TIMEOUT:''')
flush()
a('EXIT:\ns_endpgm')
a.label('CLEAR')
srd(36,34,WSEND)
a('v_and_b32 v163, 15, v1\nv_lshlrev_b32 v163, 4, v163')
a(f'''v_mov_b32 v44, -1
v_mov_b32 v45, -1
v_mov_b32 v46, -1
v_mov_b32 v47, -1
s_cmp_eq_u32 s4, 4
s_cbranch_scc0 CLR5
s_lshl_b32 s6, s55, 17
s_lshl_b32 s7, s54, 7
s_add_u32 s6, s6, s7
s_add_u32 s6, s6, {E3O}
s_add_u32 s7, s6, 65536
v_lshl_add_u32 v12, v2, 13, v9
buffer_store_dwordx4 v[44:47], v12, s[36:39], s6 offen sc1
buffer_store_dwordx4 v[44:47], v12, s[36:39], s7 offen sc1
s_branch CLRD
CLR5:
s_cmp_eq_u32 s4, 5
s_cbranch_scc0 CLR6
s_lshl_b32 s6, s55, 12
s_lshl_b32 s7, s54, 3
s_add_u32 s6, s6, s7
s_add_u32 s6, s6, {E3M}
v_lshlrev_b32 v12, 9, v1''')
pub24(44,'v12','s6','0xff',2)
a(f's_lshl_b32 s6, s55, 14\ns_lshl_b32 s7, s54, 8\ns_add_u32 s6, s6, s7\ns_add_u32 s6, s6, {M2}')
pub24(44,'v163','s6','0xffff')
a('s_branch CLRD\nCLR6:\ns_cmp_eq_u32 s4, 6\ns_cbranch_scc0 CLR7')
e4addr(); pub24(44,'v163','s6','0xff')
a(f's_lshl_b32 s6, s57, 12\ns_lshl_b32 s7, s56, 8\ns_add_u32 s6, s6, s7\ns_add_u32 s6, s6, {E6}')
pub24(44,'v163','s6','0xffff')
a('s_branch CLRD\nCLR7:\ns_cmp_ge_u32 s3, 224\ns_cbranch_scc1 CLRD')
e5addr(); pub24(44,'v163','s6','0xffff')
a('CLRD:\ns_branch NOP1LD\nCLRW:\ns_waitcnt vmcnt(0)\ns_branch P1MID')
a.label('LOADER')
def stream(ptr,nbytes,vo,S,BS,nblk,lds,N,flag=True):
    srd(40,ptr,nbytes)
    a(f's_mov_b32 m0, {lds}\ns_add_u32 s51, s50, {nblk}')
    L=a.newl(); a.label(L)
    for t in range(4):
        a(f'buffer_load_dwordx4 {vo[t]}, s[40:43], s6 offen{P["NT"]} lds\ns_add_u32 m0, m0, 0x400\ns_add_u32 s6, s6, {S if t<3 else BS-3*S}')
    a('s_add_u32 s50, s50, 1')
    if flag: a(f's_sub_u32 s7, s50, {N//4}\nv_mov_b32 v14, s7\ns_waitcnt vmcnt({N})\nds_max_i32 v15, v14')
    a(f's_cmp_lt_u32 s50, s51\ns_cbranch_scc1 {L}')
def drain(N):
    for k in range(N-4,-1,-4): a(f's_sub_u32 s7, s50, {k//4}\nv_mov_b32 v14, s7\ns_waitcnt vmcnt({k})\nds_max_i32 v15, v14')
def waitfree(addr,n,N):
    D=a.newl()
    a(f'ds_read_b32 v14, v15 offset:{addr-FL}\ns_waitcnt lgkmcnt(0)\nv_cmp_gt_i32 vcc, {n}, v14\ns_cbranch_vccz {D}')
    drain(N); spin(addr,n,P['LS']&1); a.label(D)
a('''v_lshl_add_u32 v3, v2, 15, v9
s_lshl_b32 s6, s55, 21
s_lshl_b32 s7, s54, 7
s_add_u32 s6, s6, s7
s_mov_b32 s50, 0''')
stream(14,8388608,['v3']*4,8192,32*8192,8,R0,32,False)
a('''v_lshrrev_b32 v4, 4, v1
v_and_b32 v5, 15, v1
v_xor_b32 v5, v5, v4
v_lshlrev_b32 v5, 4, v5
v_lshl_add_u32 v4, v4, 8, v5
v_xor_b32 v5, 64, v4
v_xor_b32 v6, 128, v4
v_xor_b32 v7, 192, v4
s_lshl_b32 s61, s55, 24
s_lshl_b32 s7, s54, 14
s_add_u32 s61, s61, s7
s_add_u32 s61, s61, %d
s_mov_b32 s6, s61
s_barrier'''%(61440*256))
if P['DIAG']: srd(36,34,DG+0x100000)
KV=['v4','v5','v6','v7']
def gate(k,N):
    if P[k]: waitfree(G[P[k]],(P[k]==3 and P['T3']) or (P[k]==1 and P['T1']) or P['TH'],N)
def sM(prev):
    a('v_mul_u32_u24 v3, 49152, v2\nv_add_u32 v3, v3, v9\ns_mul_i32 s6, s55, 3145728\ns_lshl_b32 s7, s54, 7\ns_add_u32 s6, s6, s7\ns_add_u32 s6, s6, 4096')
    gate('GM',prev); stream(28,12582912,['v3']*4,12288,32*12288,8,R2,P['NM']); stamp(2)
def sKV(prev):
    gate('GK',prev); a('s_mov_b32 s6, s61')
    stream(10,67108864,KV,1024,4096,4,RK,P['N0']); stamp(0)
    gate('GV',P['N0']); a('s_mov_b32 s6, s61'); stream(12,67108864,KV,1024,4096,4,RV,P['NV']); stamp(1)
if P['ORD']: sM(32); sKV(P['NM']); P['NM']=P['NV']
else: sKV(32); sM(P['NV'])
a('v_lshl_add_u32 v8, v2, 13, v9\ns_lshl_b32 s6, s57, 19\ns_lshl_b32 s7, s56, 7\ns_add_u32 s6, s6, s7')
gate('G4',P['NM']); stream(16,8388608,['v8']*4,2048,32*2048,8,R3,P['N2']); stamp(3)
a('s_cmp_ge_u32 s3, 224\ns_cbranch_scc1 NOP5')
waitfree(F_FR0,12,P['N2'])
if not P['H']: gate('G5',P['N2'])
a('''v_mul_u32_u24 v3, 28672, v2
v_add_u32 v3, v3, v9
s_mul_i32 s6, s58, 3670016
s_lshl_b32 s7, s60, 7
s_add_u32 s6, s6, s7
s_cmp_eq_u32 s59, 1
s_cselect_b32 s62, s22, s20
s_cselect_b32 s63, s23, s21''')
if P['H']: stream(62,7340032,['v3']*4,7168,32*7168,P['H'],R0,P['NH']); gate('G5',P['NH'])
stream(62,7340032,['v3']*4,7168,32*7168,16-P['H'],R0+4096*P['H'],P['N3']); stamp(4)
if P['G6']==4: gate('G6',P['N3'])
a('s_branch YESP5'); a.label('NOP5'); drain(P['N2']); a('s_mov_b32 s50, 48'); a.label('YESP5')
waitfree(F_FR2,8,P['N3'])
if P['G6']!=4: gate('G6',P['N3'])
a('s_mul_i32 s6, s57, 458752\ns_lshl_b32 s7, s56, 7\ns_add_u32 s6, s6, s7')
stream(24,7340032,['v8']*4,2048,32*2048,7,R2,P['N4'])
drain(P['N4']); stamp(5)
flush()
a('s_waitcnt lgkmcnt(0)\ns_endpgm')
ref=open('cdna_kernels/'+NAME+'.s.ref').read()
head=ref[:ref.index('; Override launch')]
txt=head+('; DIAG\n' if P['DIAG'] else '')+f'''; @launch grid=(256,1,1) block=(576,1,1) lds={LDSZ}
.amdgcn_target "amdgcn-amd-amdhsa--gfx950"
.text
.globl {NAME}_kernel
.p2align 8
.type {NAME}_kernel,@function
{NAME}_kernel:
'''+a.text()+f'''.section .rodata,"a"
.p2align 6
.amdhsa_kernel {NAME}_kernel
  .amdhsa_next_free_vgpr %d
  .amdhsa_next_free_sgpr 96
  .amdhsa_accum_offset %d
  .amdhsa_group_segment_fixed_size 0
  .amdhsa_kernarg_size 112
  .amdhsa_user_sgpr_count 2
  .amdhsa_user_sgpr_kernarg_segment_ptr 1
  .amdhsa_system_sgpr_workgroup_id_x 1
.end_amdhsa_kernel
'''%((168,168))
open(sys.argv[1],'w').write(txt)
```
